```python
import torch

def _softmax(x, axis=-1):
    return torch.softmax(x, dim=axis)
def _gelu(x):
    return torch.nn.functional.gelu(x, approximate="tanh")
def _silu(x):
    return torch.nn.functional.silu(x)
def _sigmoid(x):
    return torch.sigmoid(x)
def _layernorm(x, axis=-1, eps=1e-5):
    m = x.mean(dim=axis, keepdim=True)
    v = x.var(dim=axis, keepdim=True, unbiased=False)
    return (x - m) / torch.sqrt(v + eps)
def _scatter_add(tgt, idx, src, axis=0):
    return tgt.clone().index_add_(axis, idx, src)
def _segment_sum(src, seg, n):
    out = torch.zeros((n,) + src.shape[1:], dtype=src.dtype)
    return out.index_add_(0, seg, src)
def _pad(x, pw):
    flat = tuple(v for pair in reversed(pw) for v in pair)
    return torch.nn.functional.pad(x, flat)

kernel_name = 'gather_scatter__cheap_equivariant_egnn__graph'

def setup_inputs():

    _w = (lambda a: (lambda t: t.to(torch.bfloat16) if t.is_floating_point() else t)(torch.as_tensor(a)))
    N, deg, D, De = 50000, 16, 64, max(16, 1)
    E = N * deg
    return {
        "h": _w((lambda *s: torch.randn(*s, dtype=torch.bfloat16) * 0.2)(N, D)),
        "pos": _w((lambda *s: torch.randn(*s, dtype=torch.bfloat16) * 0.8)(N, 3)),
        "e_attr": _w((lambda *s: torch.randn(*s, dtype=torch.bfloat16) * 0.8)(E, De)),
        "src": _w((lambda lo, hi, *s: torch.randint(lo, hi, s))(0, N, E).to(torch.int64)),
        "dst": _w((lambda lo, hi, *s: torch.randint(lo, hi, s))(0, N, E).to(torch.int64)),
        "w_e": _w(0.1 * (lambda *s: torch.randn(*s, dtype=torch.bfloat16) * 0.8)(2 * D + 1 + De, D)),
        "w_x": _w(0.1 * (lambda *s: torch.randn(*s, dtype=torch.bfloat16) * 0.2)(D, 1)),
        "w_h": _w(0.1 * (lambda *s: torch.randn(*s, dtype=torch.bfloat16) * 0.2)(2 * D, D)),
    }

def reference(h, pos, e_attr, src, dst, w_e, w_x, w_h):
    N, D = h.shape[0], h.shape[1]
    diff = pos[dst] - pos[src]
    dist2 = torch.sum(diff * diff, axis=-1, keepdims=True)
    e_in = torch.concatenate([h[dst], h[src], dist2, e_attr], axis=-1)
    m_ij = _silu(e_in @ w_e)
    coord_scale = m_ij @ w_x
    pos_new = pos + _segment_sum(diff * coord_scale, dst, N)
    m_i = _segment_sum(m_ij, dst, N)
    h_new = h + _silu(torch.concatenate([h, m_i], axis=-1) @ w_h)
    return h_new, pos_new
```

```python
import sys

NAME = "gather_scatter__cheap_equivariant_egnn__graph"
N = 50000
E = 800000
G = 250
C = 3200
NBK = 250
BN = 200
FBN = 25
REC_BYTES = E * 16
TBL_OFF = REC_BYTES
WS_USED = TBL_OFF + 256 * 256 * 4

out = []
def A(s=""):
    out.append(s)

def srd(base, lo, hi, nbytes):
    A(f"    s_mov_b32 s{base}, s{lo}")
    A(f"    s_and_b32 s{base+1}, s{hi}, 0xffff")
    A(f"    s_mov_b32 s{base+2}, {nbytes}")
    A(f"    s_mov_b32 s{base+3}, 0x00020000")

def vr(a, n):
    return f"v[{a}:{a+n-1}]"

def wave_scan(x, tmp):
    for sh in (1, 2, 4, 8):
        A("    s_nop 1")
        A(f"    v_add_u32_dpp v{x}, v{x}, v{x} row_shr:{sh} row_mask:0xf bank_mask:0xf bound_ctrl:0")
    A("    s_nop 1")
    A(f"    v_add_u32_dpp v{x}, v{x}, v{x} row_bcast:15 row_mask:0xa bank_mask:0xf")
    A("    s_nop 1")
    A(f"    v_add_u32_dpp v{x}, v{x}, v{x} row_bcast:31 row_mask:0xc bank_mask:0xf")
    A("    s_nop 1")

SORT_LDS = C * 16 + 2048
CAP = 3584
L_PRE = 0
L_DELTA = 1024
L_RAW = 2048
L_FCNT = 3072
L_WB = L_FCNT + 64
L_PACC = 3584
L_LIST = L_PACC + 8 * 512
L_AT = L_LIST + (CAP + 256) * 16
AT_RS = 272
AT_W = FBN * AT_RS
L_MS = L_AT + 8 * AT_W
MS_RS = 136
MS_W = 32 * MS_RS
MAIN_LDS = L_MS + 8 * MS_W
assert MAIN_LDS <= 163840, MAIN_LDS

A(f"; @launch kernel=egnn_sort_kernel grid=({G},1,1) block=(640,1,1) lds={SORT_LDS}")
A(f"; @launch kernel=egnn_main_kernel grid=({NBK},1,1) block=(512,1,1) lds={MAIN_LDS}")
A('.amdgcn_target "amdgcn-amd-amdhsa--gfx950"')
A(".text")

S_STAGE = 0
S_HIST = C * 16
S_OFF = S_HIST + 1024
A(".globl egnn_sort_kernel")
A(".p2align 8")
A(".type egnn_sort_kernel,@function")
A("egnn_sort_kernel:")
A(f"    s_cmp_ge_u32 s2, {G}")
A("    s_cbranch_scc1 LS_end")
A("    s_load_dwordx2 s[4:5], s[0:1], 8      ; pos")
A("    s_load_dwordx4 s[8:11], s[0:1], 24")
A("    s_load_dwordx2 s[6:7], s[0:1], 80     ; ws")
A("    v_lshlrev_b32 v1, 2, v0")
A("    v_mov_b32 v2, 0")
A("    v_cmp_gt_u32 vcc, 256, v0")
A("    s_and_saveexec_b64 s[12:13], vcc")
A(f"    ds_write_b32 v1, v2 offset:{S_HIST}")
A("    s_mov_b64 exec, s[12:13]")
A("    s_waitcnt lgkmcnt(0)")
srd(16, 4, 5, N * 6)
srd(20, 8, 9, E * 4)
srd(24, 10, 11, E * 4)
srd(28, 6, 7, WS_USED)
A(f"    s_mul_i32 s3, s2, {C * 4}")
A("    v_add_u32 v1, s3, v1")
SL = 5
for k in range(1, SL):
    A(f"    s_mov_b32 s{32+k}, {k*2560}")
for k in range(SL):
    so = "0" if k == 0 else f"s{32+k}"
    A(f"    buffer_load_dword v{10+k}, v1, s[24:27], {so} offen")
    A(f"    buffer_load_dword v{15+k}, v1, s[20:23], {so} offen")
A("    s_barrier")
A("    s_mov_b32 s14, 83887")
A("    v_mov_b32 v3, 1")
for k in range(SL):
    A(f"    s_waitcnt vmcnt({2*(SL-1)})")
    d, s = 10 + k, 15 + k
    A(f"    v_mul_u32_u24 v4, s14, v{d}")
    A(f"    v_lshrrev_b32 v4, 24, v4             ; bucket")
    A(f"    v_mul_u32_u24 v5, {BN}, v4")
    A(f"    v_sub_u32 v5, v{d}, v5               ; dl")
    A(f"    v_mul_u32_u24 v6, 41, v5")
    A(f"    v_lshrrev_b32 v6, 10, v6             ; fb")
    A(f"    v_mul_u32_u24 v7, {FBN}, v6")
    A(f"    v_sub_u32 v7, v5, v7                 ; nb")
    A(f"    v_lshlrev_b32 v{20+k}, 2, v4")
    A(f"    ds_add_rtn_u32 v{30+k}, v{20+k}, v3 offset:{S_HIST}")
    A(f"    v_mul_u32_u24 v8, 0x21, v7")
    A(f"    v_lshl_or_b32 v8, v6, 10, v8         ; | fb<<10")
    A(f"    v_lshl_or_b32 v{25+k}, v8, 16, v{s}  ; w0")
    A(f"    v_mul_u32_u24 v8, 6, v{d}")
    A(f"    v_mul_u32_u24 v9, 6, v{s}")
    A(f"    v_and_b32 v{60+k}, 2, v8")
    A(f"    v_lshlrev_b32 v{60+k}, 3, v{60+k}")
    A(f"    v_and_b32 v{65+k}, 2, v9")
    A(f"    v_lshlrev_b32 v{65+k}, 3, v{65+k}")
    A(f"    v_and_b32 v8, -4, v8")
    A(f"    v_and_b32 v9, -4, v9")
    A(f"    buffer_load_dwordx2 v[{40+4*k}:{41+4*k}], v8, s[16:19], 0 offen")
    A(f"    buffer_load_dwordx2 v[{42+4*k}:{43+4*k}], v9, s[16:19], 0 offen")
A("    s_waitcnt lgkmcnt(0)")
A("    s_barrier")
A("    v_cmp_gt_u32 vcc, 64, v0")
A("    s_and_saveexec_b64 s[12:13], vcc")
A("    s_cbranch_execz LS_noscan")
A("    v_lshlrev_b32 v2, 4, v0")
A(f"    ds_read_b128 v[4:7], v2 offset:{S_HIST}")
A("    s_waitcnt lgkmcnt(0)")
A("    v_add_u32 v8, v4, v5                 ; c0+c1")
A("    v_add_u32 v9, v8, v6                 ; +c2")
A("    v_add_u32 v70, v9, v7                ; total")
A("    v_mov_b32 v71, v70")
wave_scan(71, 72)
A("    v_sub_u32 v71, v71, v70              ; exclusive")
A("    v_mov_b32 v72, v71")
A("    v_add_u32 v73, v71, v4")
A("    v_add_u32 v74, v71, v8")
A("    v_add_u32 v75, v71, v9")
A(f"    ds_write_b128 v2, v[72:75] offset:{S_OFF}")
A("    v_lshl_or_b32 v76, v4, 16, v72")
A("    v_lshl_or_b32 v77, v5, 16, v73")
A("    v_lshl_or_b32 v78, v6, 16, v74")
A("    v_lshl_or_b32 v79, v7, 16, v75")
A("    s_lshl_b32 s3, s2, 2")
A(f"    s_add_u32 s3, s3, {TBL_OFF}")
A("    v_lshlrev_b32 v80, 12, v0            ; i*4*256*4")
A("    v_add_u32 v80, s3, v80")
A("    buffer_store_dword v76, v80, s[28:31], 0 offen")
A("    buffer_store_dword v77, v80, s[28:31], 0 offen offset:1024")
A("    buffer_store_dword v78, v80, s[28:31], 0 offen offset:2048")
A("    buffer_store_dword v79, v80, s[28:31], 0 offen offset:3072")
A("    s_waitcnt lgkmcnt(0)")
A("LS_noscan:")
A("    s_mov_b64 exec, s[12:13]")
A("    s_barrier")
for k in range(SL):
    A(f"    ds_read_b32 v{35+k}, v{20+k} offset:{S_OFF}")
A(f"    s_mul_i32 s3, s2, {C}")
A("    v_add_u32 v1, s3, v0")
A("    s_waitcnt vmcnt(0)")
A("    s_mov_b32 s15, 0xffff0000")
for k in range(SL):
    pd, ps = 40 + 4 * k, 42 + 4 * k
    shd, shs = 60 + k, 65 + k
    A(f"    v_alignbit_b32 v2, v{pd+1}, v{pd}, v{shd}")
    A(f"    v_lshrrev_b32 v6, v{shd}, v{pd+1}")
    A(f"    v_lshlrev_b32 v4, 16, v2")
    A(f"    v_and_b32 v5, s15, v2")
    A(f"    v_lshlrev_b32 v6, 16, v6")
    A(f"    v_alignbit_b32 v2, v{ps+1}, v{ps}, v{shs}")
    A(f"    v_lshrrev_b32 v9, v{shs}, v{ps+1}")
    A(f"    v_lshlrev_b32 v7, 16, v2")
    A(f"    v_and_b32 v8, s15, v2")
    A(f"    v_lshlrev_b32 v9, 16, v9")
    A(f"    v_sub_f32 v4, v4, v7")
    A(f"    v_sub_f32 v5, v5, v8")
    A(f"    v_sub_f32 v6, v6, v9")
    A(f"    v_cvt_pk_bf16_f32 v86, v4, v5")
    A(f"    v_cvt_pk_bf16_f32 v2, v6, v6         ; dz")
    A(f"    v_lshlrev_b32 v4, 16, v86")
    A(f"    v_and_b32 v5, s15, v86")
    A(f"    v_lshlrev_b32 v6, 16, v2")
    A(f"    v_mul_f32 v4, v4, v4")
    A(f"    v_mul_f32 v5, v5, v5")
    A(f"    v_mul_f32 v6, v6, v6")
    A(f"    v_cvt_pk_bf16_f32 v7, v4, v5")
    A(f"    v_cvt_pk_bf16_f32 v8, v6, v6")
    A(f"    v_lshlrev_b32 v4, 16, v7")
    A(f"    v_and_b32 v5, s15, v7")
    A(f"    v_lshlrev_b32 v6, 16, v8")
    A(f"    v_add_f32 v4, v4, v5")
    A(f"    v_add_f32 v4, v4, v6")
    A(f"    v_cvt_pk_bf16_f32 v7, v4, v4")
    A(f"    v_and_b32 v2, 0xffff, v2")
    A(f"    v_lshl_or_b32 v87, v7, 16, v2")
    A(f"    v_mov_b32 v84, v{25+k}")
    A(f"    v_add_u32 v85, {k*640}, v1")
    if k == 0:
        A("    s_waitcnt lgkmcnt(0)")
    A(f"    v_add_u32 v2, v{35+k}, v{30+k}")
    A(f"    v_lshlrev_b32 v2, 4, v2")
    A(f"    ds_write_b128 v2, v[84:87] offset:{S_STAGE}")
    A("    s_nop 1")
A("    s_waitcnt lgkmcnt(0)")
A("    s_barrier")
A("    v_lshlrev_b32 v1, 4, v0")
for k in range(SL):
    A(f"    ds_read_b128 v[{88+4*k}:{91+4*k}], v1 offset:{S_STAGE + k*10240}")
A(f"    s_mul_i32 s3, s2, {C*16}")
A("    v_add_u32 v2, s3, v1")
for k in range(SL):
    A(f"    s_waitcnt lgkmcnt({SL-1-k})")
    A(f"    v_add_u32 v3, {k*10240}, v2")
    A(f"    buffer_store_dwordx4 v[{88+4*k}:{91+4*k}], v3, s[28:31], 0 offen")
A("LS_end:")
A("    s_endpgm")

S_H, S_EA, S_WS, S_WE, S_WH, S_WX, S_POS, S_OUT = 8, 12, 16, 20, 24, 28, 32, 36
sW, sT, sBASE, sCNT, sLB, sNT = 40, 41, 42, 43, 44, 45
sLOW = 50
sM25 = 52
vLANE, vE32, vHH, vH16, vATL, vMWL, vSWL, vTRL, vPACC, vLIST, vDW, vONE, vZERO = 1, 2, 3, 4, 5, 6, 7, 8, 9, 10, 11, 12, 13
RA, RB = 16, 20
vATA, vSA, vPA, vDX, vDY, vDZ, vHOFF, vEOFF = 24, 25, 26, 27, 28, 29, 30, 31
T0 = 32
vCS0, vCS1, vCS2, vCS3 = 48, 49, 50, 51
DB = 56
WA = 64
ACC = 112
SEG = 144
HB = (176, 196)
PK = 224
WX = 240
def wa(ks, t): return WA + (ks * 2 + t) * 4

A(".globl egnn_main_kernel")
A(".p2align 8")
A(".type egnn_main_kernel,@function")
A("egnn_main_kernel:")
A(f"    s_cmp_ge_u32 s2, {NBK}")
A("    s_cbranch_scc1 LM_end")
A("    s_load_dwordx4 s[64:67], s[0:1], 0     ; h, pos")
A("    s_load_dwordx2 s[68:69], s[0:1], 16    ; e_attr")
A("    s_load_dwordx4 s[72:75], s[0:1], 40    ; w_e, w_x")
A("    s_load_dwordx4 s[76:79], s[0:1], 56    ; w_h, out")
A("    s_load_dwordx2 s[80:81], s[0:1], 80    ; ws")
A(f"    v_and_b32 v{vLANE}, 63, v0")
A(f"    v_and_b32 v{vE32}, 31, v0")
A(f"    v_bfe_u32 v{vHH}, v0, 5, 1")
A(f"    v_lshlrev_b32 v{vH16}, 4, v{vHH}")
A(f"    v_lshrrev_b32 v14, 6, v0")
A("    s_nop 0")
A(f"    v_readfirstlane_b32 s{sW}, v14")
A(f"    s_mov_b32 s{sLOW}, -1")
A(f"    s_mov_b32 s{sLOW+1}, 0")
A(f"    s_mov_b32 s{sM25}, 0x01ffffff")
A(f"    s_mov_b32 s{sM25+1}, 0x01ffffff")
A("    s_waitcnt lgkmcnt(0)")
srd(S_H, 64, 65, N * 128)
srd(S_POS, 66, 67, N * 6)
srd(S_EA, 68, 69, E * 32)
srd(S_WE, 72, 73, 145 * 128)
srd(S_WX, 74, 75, 128)
srd(S_WH, 76, 77, 128 * 128)
srd(S_OUT, 78, 79, N * 128 + N * 6)
srd(S_WS, 80, 81, WS_USED)
A(f"    s_lshl_b32 s3, s2, 10")
A(f"    s_add_u32 s3, s3, {TBL_OFF}")
A("    v_lshlrev_b32 v14, 2, v0")
A("    v_add_u32 v15, s3, v14")
A(f"    buffer_load_dword v32, v15, s[{S_WS}:{S_WS+3}], 0 offen")
A("    v_lshlrev_b32 v15, 4, v0")
for k in range(3):
    A(f"    v_add_u32 v33, {k*8192}, v15")
    A(f"    buffer_load_dwordx4 v[{36+4*k}:{39+4*k}], v33, s[{S_WE}:{S_WE+3}], 0 offen")
A(f"    s_mul_i32 s3, s2, {BN}")
A(f"    s_mul_i32 s4, s{sW}, {FBN}")
A("    s_add_u32 s46, s3, s4")
A(f"    v_add_u32 v33, s46, v{vE32}")
A(f"    v_lshl_add_u32 v33, v33, 7, v{vH16}")
for s in range(4):
    A(f"    buffer_load_dwordx4 {vr(HB[0]+4*s,4)}, v33, s[{S_H}:{S_H+3}], 0 offen offset:{32*s}")
A(f"    v_lshlrev_b32 v33, 3, v{vHH}")
for t in range(2):
    for q in range(4):
        A(f"    buffer_load_dwordx2 {vr(WX+8*t+2*q,2)}, v33, s[{S_WX}:{S_WX+3}], 0 offen offset:{64*t+16*q}")
A(f"    s_mul_i32 s3, s{sW}, {AT_W}")
A(f"    s_add_u32 s3, s3, {L_AT}")
A(f"    v_add_u32 v{vATL}, s3, v{vH16}")
A(f"    s_mul_i32 s4, s{sW}, {MS_W}")
A(f"    s_add_u32 s4, s4, {L_MS}")
A(f"    v_mul_u32_u24 v33, {MS_RS}, v{vE32}")
A(f"    v_add_u32 v33, s4, v33")
A(f"    v_lshl_add_u32 v{vMWL}, v{vHH}, 3, v33")
A(f"    v_add_u32 v{vSWL}, 64, v33")
A(f"    v_bfe_u32 v33, v{vLANE}, 2, 2          ; r")
A(f"    v_lshlrev_b32 v33, 2, v33             ; 4r")
A(f"    v_add_u32 v33, v33, v{vHH}            ; 4r+h'")
A(f"    v_mul_u32_u24 v33, {2*MS_RS}, v33")
A(f"    v_bfe_u32 v34, v{vLANE}, 4, 1          ; ch")
A(f"    v_lshl_add_u32 v33, v34, 5, v33")
A(f"    v_and_b32 v34, 3, v{vLANE}")
A(f"    v_lshl_add_u32 v33, v34, 3, v33")
A(f"    v_add_u32 v{vTRL}, s4, v33")
A(f"    s_lshl_b32 s3, s{sW}, 9")
A(f"    s_add_u32 s3, s3, {L_PACC}")
A(f"    v_mov_b32 v{vPACC}, s3")
A(f"    v_sub_u32 v{vDW}, 16, v{vH16}")
A(f"    v_mov_b32 v{vONE}, 0x3f80")
A(f"    v_mov_b32 v{vZERO}, 0")
A(f"    v_mov_b32 v{DB+1}, 0")
A(f"    v_mov_b32 v{DB+2}, 0")
A(f"    v_mov_b32 v{DB+3}, 0")
for r in range(32):
    A(f"    v_mov_b32 v{SEG+r}, 0")
A(f"    v_lshl_add_u32 v33, v{vLANE}, 3, v{vPACC}")
A(f"    v_mov_b32 v34, 0")
A(f"    v_mov_b32 v35, 0")
A(f"    ds_write_b64 v33, v[34:35]")
A("    v_cmp_gt_u32 vcc, 16, v0")
A("    s_and_saveexec_b64 s[48:49], vcc")
A(f"    ds_write_b32 v14, v34 offset:{L_FCNT}")
A("    s_mov_b64 exec, s[48:49]")
A("    s_waitcnt vmcnt(15)")
A(f"    v_cmp_gt_u32 vcc, {G}, v0")
A("    s_nop 1")
A("    v_cndmask_b32 v32, 0, v32, vcc")
A("    v_cmp_gt_u32 vcc, 256, v0")
A("    s_and_saveexec_b64 s[48:49], vcc")
A(f"    ds_write_b32 v14, v32 offset:{L_RAW}")
A("    s_mov_b64 exec, s[48:49]")
A("    s_waitcnt vmcnt(12)")
for k in range(3):
    A(f"    v_add_u32 v33, {L_MS + k*8192}, v15")
    A(f"    ds_write_b128 v33, v[{36+4*k}:{39+4*k}]")
A("    s_waitcnt lgkmcnt(0)")
A("    s_barrier")
A(f"    v_lshlrev_b32 v33, 4, v{vLANE}")
A(f"    ds_read_b128 v[36:39], v33 offset:{L_RAW}")
A(f"    v_bfe_u32 v34, v{vLANE}, 2, 2          ; r")
A(f"    v_lshl_add_u32 v34, v{vHH}, 3, v34     ; 8h'+r")
A(f"    v_lshlrev_b32 v34, 7, v34")
A(f"    v_bfe_u32 v35, v{vLANE}, 4, 1")
A(f"    v_lshl_add_u32 v34, v35, 5, v34")
A(f"    v_and_b32 v35, 3, v{vLANE}")
A(f"    v_lshl_add_u32 v34, v35, 3, v34")
A(f"    v_add_u32 v60, {L_MS}, v34")
rows = [64, 80, 96, 112, 129, 128]
for ks in range(6):
    for t in range(2):
        for p in range(2):
            off = (rows[ks] + 4 * p) * 128 + 64 * t
            A(f"    ds_read_b64_tr_b16 {vr(wa(ks,t)+2*p,2)}, v60 offset:{off}")
        if (ks * 2 + t) % 3 == 2:
            A("    s_waitcnt lgkmcnt(0)")
WD = (HB[1], PK)
for t in range(2):
    for s in range(4):
        for p in range(2):
            off = (16 * s + 4 * p) * 128 + 64 * t
            A(f"    ds_read_b64_tr_b16 {vr(WD[t]+4*s+2*p,2)}, v60 offset:{off}")
    A("    s_waitcnt lgkmcnt(0)")
A("    v_lshrrev_b32 v40, 16, v36")
A("    v_lshrrev_b32 v41, 16, v37")
A("    v_lshrrev_b32 v42, 16, v38")
A("    v_lshrrev_b32 v43, 16, v39")
for k in range(4):
    A(f"    v_and_b32 v{36+k}, 0xffff, v{36+k}")
A("    v_add_u32 v44, v40, v41")
A("    v_add_u32 v45, v44, v42")
A("    v_add_u32 v46, v45, v43              ; total")
A("    v_mov_b32 v47, v46")
wave_scan(47, 48)
A(f"    v_readlane_b32 s{sT}, v47, 63")
A("    v_sub_u32 v47, v47, v46              ; exclusive")
A("    v_mov_b32 v48, v47")
A("    v_add_u32 v49, v47, v40")
A("    v_add_u32 v50, v47, v44")
A("    v_add_u32 v51, v47, v45")
A(f"    ds_write_b128 v33, v[48:51] offset:{L_PRE}")
A(f"    v_mul_u32_u24 v40, {4*C}, v{vLANE}      ; (4i)*C")
for k in range(4):
    A(f"    v_add_u32 v{52+k}, v40, v{36+k}")
    A(f"    v_sub_u32 v{52+k}, v{52+k}, v{48+k}")
    if k:
        A(f"    v_add_u32 v{52+k}, {k*C}, v{52+k}")
A(f"    ds_write_b128 v33, v[52:55] offset:{L_DELTA}")
for r in range(32):
    A(f"    v_mov_b32 v{ACC+r}, 0")
A("    s_waitcnt vmcnt(0)")
for t in range(2):
    for s in range(4):
        A(f"    v_mfma_f32_32x32x16_bf16 {vr(ACC+16*t,16)}, {vr(WD[t]+4*s,4)}, {vr(HB[0]+4*s,4)}, {vr(ACC+16*t,16)}")
A(f"    v_mul_u32_u24 v33, {AT_RS}, v{vE32}")
A(f"    v_add_u32 v33, v33, v{vATL}")
A("    s_nop 15")
A(f"    s_mov_b64 exec, s[{sM25}:{sM25+1}]")
for t in range(2):
    for q in range(4):
        A(f"    ds_write_b128 v33, {vr(ACC+16*t+4*q,4)} offset:{128*t+32*q}")
A("    s_mov_b64 exec, -1")
A(f"    s_mov_b32 s{sBASE}, 0")
NS = CAP // 512
A("LM_round:")
A(f"    v_add_u32 v32, s{sBASE}, v0")
for k in range(1, NS):
    A(f"    v_add_u32 v{32+k}, {512*k}, v32")
for k in range(NS):
    A(f"    v_mov_b32 v{40+k}, 0")
A("    s_waitcnt lgkmcnt(0)")
for step in (128, 64, 32, 16, 8, 4, 2, 1):
    for k in range(NS):
        A(f"    ds_read_b32 v{48+k}, v{40+k} offset:{L_PRE + 4*step}")
    for k in range(NS):
        A(f"    s_waitcnt lgkmcnt({NS-1-k})")
        A(f"    v_cmp_le_u32 vcc, v{48+k}, v{32+k}")
        A(f"    v_add_u32 v{48+k}, {4*step}, v{40+k}")
        A("    s_nop 0")
        A(f"    v_cndmask_b32 v{40+k}, v{40+k}, v{48+k}, vcc")
for k in range(NS):
    A(f"    ds_read_b32 v{48+k}, v{40+k} offset:{L_DELTA}")
RL = ACC
for k in range(NS):
    A(f"    s_waitcnt lgkmcnt({NS-1-k})")
    A(f"    v_add_u32 v{48+k}, v{48+k}, v{32+k}")
    A(f"    v_lshlrev_b32 v{48+k}, 4, v{48+k}")
    A(f"    v_cmp_gt_u32 vcc, s{sT}, v{32+k}")
    A(f"    v_mov_b32 v56, -16")
    A(f"    s_nop 0")
    A(f"    v_cndmask_b32 v{48+k}, v56, v{48+k}, vcc")
    A(f"    buffer_load_dwordx4 {vr(RL+4*k,4)}, v{48+k}, s[{S_WS}:{S_WS+3}], 0 offen")
A("    v_mov_b32 v56, 1")
for k in range(NS):
    A(f"    s_waitcnt vmcnt({NS-1-k})")
    A(f"    v_bfe_u32 v{40+k}, v{RL+4*k}, 26, 3")
    A(f"    v_lshlrev_b32 v{40+k}, 2, v{40+k}       ; fb*4")
    A(f"    v_cmp_gt_u32 vcc, s{sT}, v{32+k}")
    A("    s_and_saveexec_b64 s[48:49], vcc")
    A(f"    ds_add_rtn_u32 v{48+k}, v{40+k}, v56 offset:{L_FCNT}")
    A("    s_mov_b64 exec, s[48:49]")
A("    s_waitcnt lgkmcnt(0)")
A("    s_barrier")
A(f"    ds_read_b128 v[176:179], v{vZERO} offset:{L_FCNT}")
A(f"    ds_read_b128 v[180:183], v{vZERO} offset:{L_FCNT+16}")
A("    s_waitcnt lgkmcnt(0)")
A("    v_mov_b32 v184, 0")
for f in range(1, 8):
    A(f"    v_add_u32 v192, 31, v{176+f-1}")
    A(f"    v_and_b32 v192, -32, v192")
    A(f"    v_add_u32 v{184+f}, v{184+f-1}, v192")
A(f"    s_lshl_b32 s3, s{sW}, 5")
A(f"    s_add_u32 s3, s3, {L_WB}")
A("    v_mov_b32 v192, s3")
A("    ds_write_b128 v192, v[184:187]")
A("    ds_write_b128 v192, v[188:191] offset:16")
A(f"    s_lshl_b32 s4, s{sW}, 2")
A("    v_add_u32 v193, s4, v192")
A("    ds_read_b32 v194, v193                 ; base_w")
A("    v_mov_b32 v193, s4")
A(f"    ds_read_b32 v195, v193 offset:{L_FCNT}  ; cnt_w")
for k in range(NS):
    A(f"    v_add_u32 v{40+k}, v{40+k}, v192")
    A(f"    ds_read_b32 v{40+k}, v{40+k}")
A(f"    s_waitcnt lgkmcnt({NS})")
A(f"    v_readfirstlane_b32 s{sLB}, v194")
A(f"    v_readfirstlane_b32 s{sCNT}, v195")
for k in range(NS):
    A(f"    s_waitcnt lgkmcnt({NS-1-k})")
    A(f"    v_add_u32 v{40+k}, v{40+k}, v{48+k}")
    A(f"    v_lshlrev_b32 v{40+k}, 4, v{40+k}")
    A(f"    v_cmp_gt_u32 vcc, s{sT}, v{32+k}")
    A("    s_and_saveexec_b64 s[48:49], vcc")
    A(f"    ds_write_b128 v{40+k}, {vr(RL+4*k,4)} offset:{L_LIST}")
    A("    s_mov_b64 exec, s[48:49]")
A(f"    s_add_u32 s3, s{sCNT}, 31")
A(f"    s_lshr_b32 s{sNT}, s3, 5               ; ntiles")
A(f"    s_lshl_b32 s3, s{sNT}, 5")
A(f"    s_sub_u32 s3, s3, s{sCNT}")
A(f"    s_add_u32 s4, s{sLB}, s{sCNT}")
A(f"    v_add_u32 v40, s4, v{vLANE}")
A("    v_lshlrev_b32 v40, 4, v40")
A(f"    v_mov_b32 v44, {31 << 21}")
A("    v_mov_b32 v45, 0")
A("    v_mov_b32 v46, 0")
A("    v_mov_b32 v47, 0")
A(f"    v_cmp_gt_u32 vcc, s3, v{vLANE}")
A("    s_and_saveexec_b64 s[48:49], vcc")
A(f"    ds_write_b128 v40, v[44:47] offset:{L_LIST}")
A("    s_mov_b64 exec, s[48:49]")
A("    s_waitcnt lgkmcnt(0)")
A("    s_barrier")
A("    v_cmp_gt_u32 vcc, 8, v0")
A("    s_and_saveexec_b64 s[48:49], vcc")
A(f"    ds_write_b32 v14, v45 offset:{L_FCNT}")
A("    s_mov_b64 exec, s[48:49]")
A(f"    v_lshl_add_u32 v40, v{vHH}, 5, v{vSWL}")
for j in range(4):
    A(f"    ds_write_b64 v40, v[46:47] offset:{8*j}")
A(f"    s_cmp_eq_u32 s{sNT}, 0")
A("    s_cbranch_scc1 LM_tiles_done")
A(f"    v_add_u32 v{vLIST}, s{sLB}, v{vE32}")
A(f"    v_lshlrev_b32 v{vLIST}, 4, v{vLIST}")
A(f"    ds_read_b128 {vr(RA,4)}, v{vLIST} offset:{L_LIST}")
A(f"    ds_read_b128 {vr(RB,4)}, v{vLIST} offset:{L_LIST+512}")
A(f"    v_add_u32 v{vLIST}, 1024, v{vLIST}")

def issue_loads(R, hb):
    A(f"    v_and_b32 v{vHOFF}, 0xffff, v{R}")
    A(f"    v_lshl_add_u32 v{vHOFF}, v{vHOFF}, 7, v{vH16}")
    A(f"    v_lshl_add_u32 v{vEOFF}, v{R+1}, 5, v{vH16}")
    for s in range(4):
        A(f"    buffer_load_dwordx4 {vr(hb+4*s,4)}, v{vHOFF}, s[{S_H}:{S_H+3}], 0 offen offset:{32*s}")
    A(f"    buffer_load_dwordx4 {vr(hb+16,4)}, v{vEOFF}, s[{S_EA}:{S_EA+3}], 0 offen")

A("    s_waitcnt lgkmcnt(1)")
issue_loads(RA, HB[0])

LOG2E_NEG = 0xbfb8aa3b

def silu_block(base, n):
    for g0 in range(0, n, 8):
        for r in range(g0, g0 + 8):
            A(f"    v_mul_f32 v{T0+r%16}, 0x{LOG2E_NEG:08x}, v{base+r}")
        for r in range(g0, g0 + 8):
            A(f"    v_exp_f32 v{T0+r%16}, v{T0+r%16}")
        for r in range(g0, g0 + 8):
            A(f"    v_add_f32 v{T0+r%16}, 1.0, v{T0+r%16}")
        for r in range(g0, g0 + 8):
            A(f"    v_rcp_f32 v{T0+r%16}, v{T0+r%16}")
        for r in range(g0, g0 + 8):
            A(f"    v_mul_f32 v{base+r}, v{base+r}, v{T0+r%16}")

def tile(Rc, Rn, hbc, hbn):
    A("    s_waitcnt lgkmcnt(0)")
    A(f"    v_bfe_u32 v{vATA}, v{Rc}, 16, 5")
    A(f"    v_mad_u32_u24 v{vATA}, v{vATA}, v57, v{vATL}" if False else f"    v_mul_u32_u24 v{vATA}, {AT_RS}, v{vATA}")
    A(f"    v_add_u32 v{vATA}, v{vATA}, v{vATL}")
    for t in range(2):
        for q in range(4):
            A(f"    ds_read_b128 {vr(ACC+16*t+4*q,4)}, v{vATA} offset:{128*t+32*q}")
    A(f"    v_bfe_u32 v{vPA}, v{Rc}, 21, 5")
    A(f"    v_lshl_add_u32 v{vSA}, v{vPA}, 1, v{vSWL}")
    A(f"    v_lshl_add_u32 v{vPA}, v{vPA}, 4, v{vPACC}")
    A(f"    v_lshlrev_b32 v{vDX}, 16, v{Rc+2}")
    A(f"    v_and_b32 v{vDY}, 0xffff0000, v{Rc+2}")
    A(f"    v_lshlrev_b32 v{vDZ}, 16, v{Rc+3}")
    A(f"    v_bfe_u32 v{DB}, v{Rc+3}, 16, v{vDW}")
    issue_loads(Rn, hbn)
    A(f"    ds_read_b128 {vr(Rc,4)}, v{vLIST} offset:{L_LIST}")
    A(f"    v_add_u32 v{vLIST}, 512, v{vLIST}")
    A(f"    ds_write_b16 v{vSA}, v{vONE}")
    A("    s_waitcnt vmcnt(5) lgkmcnt(2)")
    for t in range(2):
        for ks in range(6):
            b = hbc + 4 * ks if ks < 5 else DB
            A(f"    v_mfma_f32_32x32x16_bf16 {vr(ACC+16*t,16)}, {vr(wa(ks,t),4)}, {vr(b,4)}, {vr(ACC+16*t,16)}")
    A("    s_nop 5")
    for t in range(2):
        silu_block(ACC + 16 * t, 16)
        for j in range(8):
            A(f"    v_cvt_pk_bf16_f32 v{PK+8*t+j}, v{ACC+16*t+2*j}, v{ACC+16*t+2*j+1}")
        for q in range(4):
            A(f"    ds_write_b64 v{vMWL}, {vr(PK+8*t+2*q,2)} offset:{16*q}")
        for s in range(2):
            for p in range(2):
                A(f"    ds_read_b64_tr_b16 {vr(ACC+16*t+4*s+2*p,2)}, v{vTRL} offset:{(4*s+p)*MS_RS}")
        if t == 0:
            for s in range(2):
                for p in range(2):
                    A(f"    ds_read_b64_tr_b16 {vr(ACC+8+4*s+2*p,2)}, v{vTRL} offset:{(4*s+p)*MS_RS+64}")
            A(f"    ds_write_b16 v{vSA}, v{vZERO}")
        cs = (vCS0, vCS1) if t == 0 else (vCS2, vCS3)
        for j in range(8):
            c = cs[j % 2]
            src2 = "0" if j < 2 else f"v{c}"
            A(f"    v_dot2_f32_bf16 v{c}, v{PK+8*t+j}, v{WX+8*t+j}, {src2}")
        A(f"    s_waitcnt lgkmcnt({1 if t == 0 else 0})")
        for s in range(2):
            A(f"    v_mfma_f32_32x32x16_bf16 {vr(SEG+16*t,16)}, {vr(ACC+16*t+4*s,4)}, {vr(ACC+8+4*s,4)}, {vr(SEG+16*t,16)}")
    A(f"    v_add_f32 v{vCS0}, v{vCS0}, v{vCS1}")
    A(f"    v_add_f32 v{vCS2}, v{vCS2}, v{vCS3}")
    A(f"    v_add_f32 v{vCS0}, v{vCS0}, v{vCS2}")
    A(f"    v_mov_b32 v{vCS1}, v{vCS0}")
    A("    s_nop 1")
    A(f"    v_permlane32_swap_b32 v{vCS0}, v{vCS1}")
    A("    s_nop 0")
    A(f"    v_add_f32 v{vCS0}, v{vCS0}, v{vCS1}")
    A(f"    v_cvt_pk_bf16_f32 v{vCS0}, v{vCS0}, v{vCS0}")
    A(f"    v_lshlrev_b32 v{vCS0}, 16, v{vCS0}")
    A(f"    v_mul_f32 v{vDX}, v{vDX}, v{vCS0}")
    A(f"    v_mul_f32 v{vDY}, v{vDY}, v{vCS0}")
    A(f"    v_mul_f32 v{vDZ}, v{vDZ}, v{vCS0}")
    A(f"    v_cvt_pk_bf16_f32 v{vCS1}, v{vDX}, v{vDY}")
    A(f"    v_cvt_pk_bf16_f32 v{vCS2}, v{vDZ}, v{vDZ}")
    A(f"    v_lshlrev_b32 v{vDX}, 16, v{vCS1}")
    A(f"    v_and_b32 v{vDY}, 0xffff0000, v{vCS1}")
    A(f"    v_lshlrev_b32 v{vDZ}, 16, v{vCS2}")
    A(f"    s_mov_b64 exec, s[{sLOW}:{sLOW+1}]")
    A(f"    ds_add_f32 v{vPA}, v{vDX}")
    A(f"    ds_add_f32 v{vPA}, v{vDY} offset:4")
    A(f"    ds_add_f32 v{vPA}, v{vDZ} offset:8")
    A("    s_mov_b64 exec, -1")

A("LM_loop:")
tile(RA, RB, HB[0], HB[1])
A(f"    s_sub_u32 s{sNT}, s{sNT}, 1")
A(f"    s_cmp_eq_u32 s{sNT}, 0")
A("    s_cbranch_scc1 LM_tiles_done")
tile(RB, RA, HB[1], HB[0])
A(f"    s_sub_u32 s{sNT}, s{sNT}, 1")
A(f"    s_cmp_lg_u32 s{sNT}, 0")
A("    s_cbranch_scc1 LM_loop")
A("LM_tiles_done:")
A("    s_waitcnt vmcnt(0) lgkmcnt(0)")
A(f"    s_add_u32 s{sBASE}, s{sBASE}, {CAP}")
A(f"    s_cmp_ge_u32 s{sBASE}, s{sT}")
A("    s_cbranch_scc1 LM_epi")
A("    s_barrier")
A("    s_branch LM_round")
A("LM_epi:")
A("    v_lshlrev_b32 v32, 5, v0")
A(f"    buffer_load_dwordx4 v[36:39], v32, s[{S_WH}:{S_WH+3}], 0 offen")
A(f"    buffer_load_dwordx4 v[40:43], v32, s[{S_WH}:{S_WH+3}], 0 offen offset:16")
A(f"    v_add_u32 v33, s46, v{vE32}              ; node")
A(f"    v_lshl_add_u32 v34, v33, 7, v{vH16}")
for s in range(4):
    A(f"    buffer_load_dwordx4 {vr(HB[0]+4*s,4)}, v34, s[{S_H}:{S_H+3}], 0 offen offset:{32*s}")
A(f"    v_lshlrev_b32 v24, 7, v33")
A(f"    v_lshl_add_u32 v24, v{vHH}, 3, v24        ; node*128 + 8h")
for t in range(2):
    for q in range(4):
        A(f"    buffer_load_dwordx2 {vr(HB[1]+8*t+2*q,2)}, v24, s[{S_H}:{S_H+3}], 0 offen offset:{64*t+16*q}")
A(f"    v_mul_u32_u24 v25, 6, v33")
A(f"    buffer_load_ushort v26, v25, s[{S_POS}:{S_POS+3}], 0 offen")
A(f"    buffer_load_ushort v27, v25, s[{S_POS}:{S_POS+3}], 0 offen offset:2")
A(f"    buffer_load_ushort v28, v25, s[{S_POS}:{S_POS+3}], 0 offen offset:4")
for t in range(2):
    for j in range(8):
        A(f"    v_cvt_pk_bf16_f32 v{PK+8*t+j}, v{SEG+16*t+2*j}, v{SEG+16*t+2*j+1}")
A("    s_barrier")
A("    s_waitcnt vmcnt(15)")
A(f"    ds_write_b128 v32, v[36:39] offset:{L_LIST}")
A(f"    ds_write_b128 v32, v[40:43] offset:{L_LIST+16}")
A("    s_waitcnt lgkmcnt(0)")
A("    s_barrier")
A(f"    v_subrev_u32 v60, {L_MS}, v60")
A(f"    v_lshlrev_b32 v61, 9, v{vHH}")
A(f"    v_sub_u32 v61, v60, v61                ; (4h'+r)*128 + ...")
for r in range(32):
    A(f"    v_mov_b32 v{ACC+r}, 0")
A("    s_waitcnt vmcnt(0)")
FR = WA
for tp in range(2):
    for s in range(4):
        for p in range(2):
            off = L_LIST + (16 * s + 4 * p) * 128 + 64 * tp
            A(f"    ds_read_b64_tr_b16 {vr(FR+4*s+2*p,2)}, v60 offset:{off}")
    for t in range(2):
        for u in range(2):
            for p in range(2):
                off = L_LIST + (64 + 32 * t + 16 * u + 8 * p) * 128 + 64 * tp
                A(f"    ds_read_b64_tr_b16 {vr(FR+16+4*(2*t+u)+2*p,2)}, v61 offset:{off}")
    A("    s_waitcnt lgkmcnt(0)")
    for s in range(4):
        A(f"    v_mfma_f32_32x32x16_bf16 {vr(ACC+16*tp,16)}, {vr(FR+4*s,4)}, {vr(HB[0]+4*s,4)}, {vr(ACC+16*tp,16)}")
    for t in range(2):
        for u in range(2):
            A(f"    v_mfma_f32_32x32x16_bf16 {vr(ACC+16*tp,16)}, {vr(FR+16+4*(2*t+u),4)}, {vr(PK+8*t+4*u,4)}, {vr(ACC+16*tp,16)}")
    A("    s_nop 7")
A("    s_nop 15")
A("    s_mov_b32 s15, 0xffff0000")
for j in range(16):
    a0, a1 = ACC + 2 * j, ACC + 2 * j + 1
    A(f"    v_cvt_pk_bf16_f32 v{T0}, v{a0}, v{a1}")
    A(f"    v_lshlrev_b32 v{a0}, 16, v{T0}")
    A(f"    v_and_b32 v{a1}, s15, v{T0}")
silu_block(ACC, 16)
silu_block(ACC + 16, 16)
for j in range(16):
    a0, a1 = ACC + 2 * j, ACC + 2 * j + 1
    hv = HB[1] + j
    A(f"    v_cvt_pk_bf16_f32 v{T0}, v{a0}, v{a1}")
    A(f"    v_lshlrev_b32 v{a0}, 16, v{T0}")
    A(f"    v_and_b32 v{a1}, s15, v{T0}")
    A(f"    v_lshlrev_b32 v{T0+1}, 16, v{hv}")
    A(f"    v_and_b32 v{T0+2}, s15, v{hv}")
    A(f"    v_add_f32 v{a0}, v{a0}, v{T0+1}")
    A(f"    v_add_f32 v{a1}, v{a1}, v{T0+2}")
    A(f"    v_cvt_pk_bf16_f32 v{PK+j}, v{a0}, v{a1}")
A(f"    s_mov_b64 exec, s[{sM25}:{sM25+1}]")
for t in range(2):
    for q in range(4):
        A(f"    buffer_store_dwordx2 {vr(PK+8*t+2*q,2)}, v24, s[{S_OUT}:{S_OUT+3}], 0 offen offset:{64*t+16*q}")
A("    s_mov_b64 exec, 0x01ffffff")
A(f"    v_lshl_add_u32 v48, v{vE32}, 4, v{vPACC}")
A("    ds_read_b128 v[52:55], v48")
A("    s_waitcnt lgkmcnt(0)")
A("    v_cvt_pk_bf16_f32 v48, v52, v53")
A("    v_cvt_pk_bf16_f32 v49, v54, v54")
A("    v_lshlrev_b32 v52, 16, v48")
A("    v_and_b32 v53, s15, v48")
A("    v_lshlrev_b32 v54, 16, v49")
A("    v_lshlrev_b32 v26, 16, v26")
A("    v_lshlrev_b32 v27, 16, v27")
A("    v_lshlrev_b32 v28, 16, v28")
A("    v_add_f32 v52, v52, v26")
A("    v_add_f32 v53, v53, v27")
A("    v_add_f32 v54, v54, v28")
A("    v_cvt_pk_bf16_f32 v48, v52, v52")
A("    v_cvt_pk_bf16_f32 v49, v53, v53")
A("    v_cvt_pk_bf16_f32 v50, v54, v54")
A(f"    v_add_u32 v25, {N*128}, v25")
A(f"    buffer_store_short v48, v25, s[{S_OUT}:{S_OUT+3}], 0 offen")
A(f"    buffer_store_short v49, v25, s[{S_OUT}:{S_OUT+3}], 0 offen offset:2")
A(f"    buffer_store_short v50, v25, s[{S_OUT}:{S_OUT+3}], 0 offen offset:4")
A("LM_end:")
A("    s_endpgm")

A('.section .rodata,"a"')
for name, nv in (("egnn_sort_kernel", 112), ("egnn_main_kernel", 256)):
    A(".p2align 6")
    A(f".amdhsa_kernel {name}")
    A(f"  .amdhsa_next_free_vgpr {nv}")
    A("  .amdhsa_next_free_sgpr 96")
    A(f"  .amdhsa_accum_offset {nv}")
    A("  .amdhsa_group_segment_fixed_size 0")
    A("  .amdhsa_kernarg_size 88")
    A("  .amdhsa_user_sgpr_count 2")
    A("  .amdhsa_user_sgpr_kernarg_segment_ptr 1")
    A("  .amdhsa_system_sgpr_workgroup_id_x 1")
    A(".end_amdhsa_kernel")

path = sys.argv[1] if len(sys.argv) > 1 else f"cdna_kernels/{NAME}.s"
open(path, "w").write("\n".join(out) + "\n")
print("wrote", path, len(out), "lines; main lds", MAIN_LDS)
```

```python
import re

def regs_of(op):
    op = op.strip()
    op = op.lstrip('-').replace('|', '')
    m = re.fullmatch(r'v\[(\d+):(\d+)\]', op)
    if m:
        return set(range(int(m.group(1)), int(m.group(2)) + 1))
    m = re.fullmatch(r'v(\d+)', op)
    if m:
        return {int(m.group(1))}
    return set()

TRANS = ('v_exp_f32', 'v_rcp_f32', 'v_log_f32', 'v_rsq_f32', 'v_sqrt_f32', 'v_exp_f16', 'v_rcp_f16', 'v_exp_f16_sdwa', 'v_rcp_f16_sdwa')

def parse(line):
    t = line.split(';')[0].strip()
    if not t or t.endswith(':') or t.startswith('.'):
        return None
    parts = t.split(None, 1)
    mn = parts[0]
    ops = []
    if len(parts) > 1:
        ops = [o.strip() for o in re.split(r',(?![^\[]*\])', parts[1])]
        ops = [o.split()[0] if o else o for o in ops]
    d = dict(mn=mn, text=t, wr=set(), rd=set(), kind='s', ab=set(), c=set())
    if mn.startswith('v_mfma'):
        d['kind'] = 'm'
        d['wr'] = regs_of(ops[0]); d['ab'] = regs_of(ops[1]) | regs_of(ops[2]); d['c'] = regs_of(ops[3])
        d['passes'] = 8 if '32x32' in mn else 4
    elif mn.startswith('v_'):
        d['kind'] = 'v'
        if mn.startswith('v_cmp') or mn.startswith('v_readlane') or mn.startswith('v_readfirstlane'):
            for o in ops[1:]:
                d['rd'] |= regs_of(o)
        else:
            d['wr'] = regs_of(ops[0])
            for o in ops[1:]:
                d['rd'] |= regs_of(o)
            if mn.startswith('v_permlane32_swap'):
                d['wr'] |= regs_of(ops[1]); d['rd'] |= regs_of(ops[0])
            if mn in ('v_fmac_f32', 'v_mac_f32') or 'UNUSED_PRESERVE' in t:
                d['rd'] |= regs_of(ops[0])
    elif mn.startswith('ds_'):
        d['kind'] = 'ds'
        if 'read' in mn or '_rtn' in mn or 'bpermute' in mn:
            d['wr'] = regs_of(ops[0])
            for o in ops[1:]:
                d['rd'] |= regs_of(o)
        else:
            for o in ops:
                d['rd'] |= regs_of(o)
    elif mn.startswith('buffer_'):
        d['kind'] = 'vm'
        if 'load' in mn:
            if re.search(r'\blds\b', t):
                d['rd'] |= regs_of(ops[0]); d['lds'] = True
            else:
                d['wr'] = regs_of(ops[0]); d['rd'] |= regs_of(ops[1])
        else:
            d['rd'] |= regs_of(ops[0]) | regs_of(ops[1])
    return d

def lint(lines, name=''):
    ins = [p for p in (parse(l) for l in lines) if p]
    errs = []
    def ws(i):
        if ins[i]['mn'] == 's_nop':
            return int(ins[i]['text'].split()[1]) + 1
        return 1
    for i, a in enumerate(ins):
        dist = 0
        for j in range(i + 1, min(len(ins), i + 24)):
            b = ins[j]
            need = 0
            why = ''
            if a['kind'] == 'v' and b['kind'] == 'm' and a['wr'] & (b['ab'] | b['c']):
                need, why = 2, 'valu->mfma'
            if a['kind'] == 'm':
                lat = a['passes'] + 4
                if b['kind'] == 'm':
                    if a['wr'] & b['ab']:
                        need, why = lat, 'mfma->mfma ab'
                    elif a['wr'] & b['c'] and not (a['wr'] == b['c'] and a['mn'] == b['mn']):
                        need, why = lat, 'mfma->mfma c partial'
                    elif a['wr'] & b['wr'] and not (a['wr'] == b['wr'] and a['mn'] == b['mn']):
                        need, why = lat, 'mfma waw'
                else:
                    if a['wr'] & (b['rd'] | b['wr']):
                        need, why = lat, 'mfma->other'
                    elif b['kind'] == 'v' and a['c'] & b['wr']:
                        need, why = a['passes'] - 1, 'mfma srcC war'
            if a['mn'] in TRANS and b['kind'] in ('v', 'm') and a['wr'] & (b['rd'] | b['ab'] | b['c']):
                need, why = max(need, 1), 'trans'
            if a['mn'].startswith('s_') and 'm0' in a['text'].split(',')[0] and b.get('lds'):
                need, why = 1, 'm0->lds'
            if need > dist:
                errs.append(f"{name}: [{why}] need {need} have {dist}: '{a['text']}' -> '{b['text']}'")
            dist += ws(j)
    return errs
```

```python
import sys, os
sys.path.insert(0, os.path.dirname(os.path.abspath(__file__)))
from lint import lint
PROF = int(os.environ.get("PROF", "0"))

NAME = "gather_scatter__cheap_equivariant_egnn__graph"
N = 50000
E = 800000
G = 250
GW = 4
C = 3200
NBK = 250
BN = 200
FBN = 25
REC_OFF = 0
TBL_OFF = E * 8
WF_OFF = TBL_OFF + 256 * 256 * 4
P4_OFF = WF_OFF + 40 * 1024
WS_USED = P4_OFF + N * 16
LOG2E = 0x3fb8aa3b
LN2 = 0x3f317218
PADNB = 30

out = []
def A(s=""):
    out.append(s)

_stamp = [0]
def STAMP():
    if not PROF:
        return
    i = _stamp[0]; _stamp[0] += 1
    assert i < 7
    A(f"    s_memtime s[{82+2*i}:{83+2*i}]")
_sst = [0]
def SSTAMP():
    if not PROF:
        return
    i = _sst[0]; _sst[0] += 1
    assert i < 7
    A(f"    s_memtime s[{46+2*i}:{47+2*i}]")

def srd(base, lo, hi, nbytes, stride=0):
    A(f"    s_mov_b32 s{base}, s{lo}")
    A(f"    s_and_b32 s{base+1}, s{hi}, 0xffff")
    if stride:
        A(f"    s_or_b32 s{base+1}, s{base+1}, {stride << 16}")
    A(f"    s_mov_b32 s{base+2}, {nbytes}")
    A(f"    s_mov_b32 s{base+3}, 0x00020000")

def vr(a, n):
    return f"v[{a}:{a+n-1}]"

def wave_scan(x):
    for sh in (1, 2, 4, 8):
        A("    s_nop 1")
        A(f"    v_add_u32_dpp v{x}, v{x}, v{x} row_shr:{sh} row_mask:0xf bank_mask:0xf bound_ctrl:0")
    A("    s_nop 1")
    A(f"    v_add_u32_dpp v{x}, v{x}, v{x} row_bcast:15 row_mask:0xa bank_mask:0xf")
    A("    s_nop 1")
    A(f"    v_add_u32_dpp v{x}, v{x}, v{x} row_bcast:31 row_mask:0xc bank_mask:0xf")
    A("    s_nop 1")

def prof_dump(lbl, endlbl, wreg, base, n):
    A("    s_waitcnt vmcnt(0)")
    A(f"    s_memtime s[{base+2*n}:{base+2*n+1}]")
    A("    s_load_dwordx2 s[64:65], s[0:1], 72")
    A("    s_waitcnt lgkmcnt(0)")
    srd(68, 64, 65, 256)
    A("    s_mov_b32 s72, 0")
    A("    s_cmp_eq_u32 s2, 0")
    A(f"    s_cbranch_scc1 {lbl}_a")
    A("    s_mov_b32 s72, 2")
    A("    s_cmp_eq_u32 s2, 137")
    A(f"    s_cbranch_scc0 {endlbl}")
    A(f"{lbl}_a:")
    A(f"    s_cmp_eq_u32 s{wreg}, 0")
    A(f"    s_cbranch_scc1 {lbl}_b")
    A("    s_add_u32 s72, s72, 1")
    A(f"    s_cmp_eq_u32 s{wreg}, 7")
    A(f"    s_cbranch_scc0 {endlbl}")
    A(f"{lbl}_b:")
    A("    s_lshl_b32 s72, s72, 5")
    A("    s_mov_b64 exec, 1")
    A("    v_mov_b32 v1, s72")
    for i in range(1, n + 1):
        A(f"    s_sub_u32 s73, s{base+2*i}, s{base}")
        A(f"    v_mov_b32 v2, s73")
        A(f"    buffer_store_dword v2, v1, s[68:71], 0 offen offset:{4*i}")

S_HIST = 0
S_OFF = 1024
S_STAGE = 2048
SORT_LDS = S_STAGE + C * 8
CAP = 3584
ST_SZ = 5120
L_PRE = 0
L_DELTA = L_PRE + 1024
L_FCNT = L_DELTA + 1024
L_WB = L_FCNT + 128
L_ID = L_WB + 256
ID_RS = 80
L_PA = L_ID + 32 * ID_RS
L_Z = L_PA + 8 * 512
L_W0 = L_Z + 1024
L_W1 = L_W0 + (CAP + 256) * 4
L_MS = L_W1 + (CAP + 256) * 4
MS_RS = 136
MS_W = 32 * MS_RS
L_ST = L_MS + 8 * MS_W
assert L_ST % 16 == 0 and L_PA % 16 == 0 and L_ID % 16 == 0
MAIN_LDS = L_ST + 16 * ST_SZ
assert MAIN_LDS <= 163840, MAIN_LDS

A(f"; @launch kernel=egnn_sort_kernel grid=({G+GW},1,1) block=(640,1,1) lds={SORT_LDS}")
A(f"; @launch kernel=egnn_main_kernel grid=({NBK},1,1) block=(512,1,1) lds={MAIN_LDS}")
A('.amdgcn_target "amdgcn-amd-amdhsa--gfx950"')
A(".text")

A(".globl egnn_sort_kernel")
A(".p2align 8")
A(".type egnn_sort_kernel,@function")
A("egnn_sort_kernel:")
A(f"    s_cmp_ge_u32 s2, {G+GW}")
A("    s_cbranch_scc1 LS_end")
A(f"    s_cmp_ge_u32 s2, {G}")
A("    s_cbranch_scc1 LS_weights")
SSTAMP()
A("    s_load_dwordx2 s[4:5], s[0:1], 8      ; pos")
A("    s_load_dwordx4 s[8:11], s[0:1], 24    ; src, dst")
A("    s_load_dwordx2 s[12:13], s[0:1], 80   ; ws")
A("    v_lshlrev_b32 v1, 2, v0")
A("    v_mov_b32 v2, 0")
A("    v_cmp_gt_u32 vcc, 256, v0")
A("    s_and_saveexec_b64 s[14:15], vcc")
A(f"    ds_write_b32 v1, v2 offset:{S_HIST}")
A("    s_mov_b64 exec, s[14:15]")
A(f"    s_mul_i32 s3, s2, {C * 4}")
A("    v_add_u32 v1, s3, v1")
SL = 5
for k in range(1, SL):
    A(f"    s_mov_b32 s{35+k}, {k*2560}")
A(f"    s_mul_i32 s3, s2, {BN}")
A("    v_add_u32 v44, s3, v0                ; node")
A("    v_mul_u32_u24 v45, 6, v44")
A("    s_waitcnt lgkmcnt(0)")
SSTAMP()
srd(24, 10, 11, E * 4)
srd(20, 8, 9, E * 4)
for k in range(SL):
    so = "0" if k == 0 else f"s{35+k}"
    A(f"    buffer_load_dword v{10+k}, v1, s[24:27], {so} offen")
    A(f"    buffer_load_dword v{15+k}, v1, s[20:23], {so} offen")
srd(16, 4, 5, N * 6)
srd(28, 12, 13, WS_USED)
for c in range(3):
    A(f"    buffer_load_ushort v{40+c}, v45, s[16:19], 0 offen offset:{2*c}")
A("    s_barrier")
A("    s_mov_b32 s14, 83887")
A("    v_mov_b32 v3, 1")
A(f"    s_mul_i32 s3, s2, {C}")
A("    v_add_u32 v46, s3, v0")
for k in range(SL):
    A(f"    s_waitcnt vmcnt({3 + 2*(SL-1-k)})")
    d, s = 10 + k, 15 + k
    A(f"    v_mul_u32_u24 v4, s14, v{d}")
    A(f"    v_lshrrev_b32 v4, 24, v4             ; bucket")
    A(f"    v_lshlrev_b32 v{20+k}, 2, v4")
    A(f"    ds_add_rtn_u32 v{30+k}, v{20+k}, v3 offset:{S_HIST}")
    A(f"    v_mul_u32_u24 v5, {BN}, v4")
    A(f"    v_sub_u32 v5, v{d}, v5               ; dl")
    A(f"    v_mul_u32_u24 v6, 41, v5")
    A(f"    v_lshrrev_b32 v6, 10, v6             ; fb")
    A(f"    v_mul_u32_u24 v7, {FBN}, v6")
    A(f"    v_sub_u32 v7, v5, v7                 ; nb")
    A(f"    v_lshl_or_b32 v{50+2*k}, v{s}, 7, v7   ; w0")
    A(f"    v_add_u32 v8, {k*640}, v46")
    A(f"    v_lshl_or_b32 v{51+2*k}, v8, 5, v6     ; w1")
A("    s_waitcnt lgkmcnt(0)")
A("    s_barrier")
SSTAMP()
A("    v_cmp_gt_u32 vcc, 64, v0")
A("    s_and_saveexec_b64 s[14:15], vcc")
A("    s_cbranch_execz LS_noscan")
A("    v_lshlrev_b32 v2, 4, v0")
A(f"    ds_read_b128 v[4:7], v2 offset:{S_HIST}")
A("    s_waitcnt lgkmcnt(0)")
A("    v_add_u32 v8, v4, v5")
A("    v_add_u32 v9, v8, v6")
A("    v_add_u32 v70, v9, v7                ; total")
A("    v_mov_b32 v71, v70")
wave_scan(71)
A("    v_sub_u32 v71, v71, v70            ; exclusive")
A("    v_mov_b32 v72, v71")
A("    v_add_u32 v73, v71, v4")
A("    v_add_u32 v74, v71, v8")
A("    v_add_u32 v75, v71, v9")
A(f"    ds_write_b128 v2, v[72:75] offset:{S_OFF}")
A("    v_lshl_or_b32 v76, v4, 16, v72")
A("    v_lshl_or_b32 v77, v5, 16, v73")
A("    v_lshl_or_b32 v78, v6, 16, v74")
A("    v_lshl_or_b32 v79, v7, 16, v75")
A("    s_lshl_b32 s3, s2, 2")
A(f"    s_add_u32 s3, s3, {TBL_OFF}")
A("    v_lshlrev_b32 v80, 12, v0")
A("    v_add_u32 v80, s3, v80")
A("    buffer_store_dword v76, v80, s[28:31], 0 offen")
A("    buffer_store_dword v77, v80, s[28:31], 0 offen offset:1024")
A("    buffer_store_dword v78, v80, s[28:31], 0 offen offset:2048")
A("    buffer_store_dword v79, v80, s[28:31], 0 offen offset:3072")
A("    s_waitcnt lgkmcnt(0)")
A("LS_noscan:")
A("    s_mov_b64 exec, s[14:15]")
A("    s_barrier")
for k in range(SL):
    A(f"    ds_read_b32 v{35+k}, v{20+k} offset:{S_OFF}")
SSTAMP()
A("    s_waitcnt lgkmcnt(0)")
for k in range(SL):
    A(f"    v_add_u32 v2, v{35+k}, v{30+k}")
    A(f"    v_lshlrev_b32 v2, 3, v2")
    A(f"    ds_write_b64 v2, v[{50+2*k}:{51+2*k}] offset:{S_STAGE}")
A("    s_waitcnt vmcnt(0)")
A("    v_lshlrev_b32 v40, 16, v40")
A("    v_lshlrev_b32 v41, 16, v41")
A("    v_lshlrev_b32 v42, 16, v42")
A("    v_mov_b32 v43, 0")
A("    v_lshlrev_b32 v44, 4, v44")
A(f"    v_add_u32 v44, {P4_OFF}, v44")
A(f"    v_cmp_gt_u32 vcc, {BN}, v0")
A("    s_and_saveexec_b64 s[14:15], vcc")
A("    s_cbranch_execz LS_nop4")
A("    buffer_store_dwordx4 v[40:43], v44, s[28:31], 0 offen")
A("LS_nop4:")
A("    s_mov_b64 exec, s[14:15]")
A("    s_waitcnt lgkmcnt(0)")
A("    s_barrier")
SSTAMP()
A("    v_lshlrev_b32 v1, 3, v0")
for k in range(SL):
    A(f"    ds_read_b64 v[{50+2*k}:{51+2*k}], v1 offset:{S_STAGE + k*5120}")
A(f"    s_mul_i32 s3, s2, {C*8}")
A("    v_add_u32 v2, s3, v1")
for k in range(1, SL):
    A(f"    s_mov_b32 s{35+k}, {k*5120}")
for k in range(SL):
    A(f"    s_waitcnt lgkmcnt({SL-1-k})")
    so = "0" if k == 0 else f"s{35+k}"
    A(f"    buffer_store_dwordx2 v[{50+2*k}:{51+2*k}], v2, s[28:31], {so} offen")
if PROF:
    A("    v_lshrrev_b32 v1, 6, v0")
    A("    s_nop 0")
    A("    v_readfirstlane_b32 s74, v1")
    prof_dump("LQ", "LS_end", 74, 46, _sst[0])
A("    s_branch LS_end")
A("LS_weights:")
A("    s_load_dwordx2 s[4:5], s[0:1], 40     ; w_e")
A("    s_load_dwordx2 s[6:7], s[0:1], 56     ; w_h")
A("    s_load_dwordx2 s[12:13], s[0:1], 80   ; ws")
A("    v_lshrrev_b32 v1, 6, v0")
A("    s_nop 0")
A("    v_readfirstlane_b32 s3, v1")
A(f"    s_sub_u32 s8, s2, {G}")
A("    s_mul_i32 s8, s8, 10")
A("    s_add_u32 s8, s8, s3")
A("    s_cmp_ge_u32 s8, 36")
A("    s_cbranch_scc1 LS_end")
A("    s_waitcnt lgkmcnt(0)")
srd(16, 4, 5, 145 * 128)
srd(20, 6, 7, 128 * 128)
srd(28, 12, 13, WS_USED)
A("    s_and_b32 s14, s8, 1")
A("    s_lshr_b32 s15, s8, 1                  ; ks / q")
A("    s_mov_b32 s10, 8")
A("    s_mov_b32 s11, 4")
A("    s_mov_b32 s24, 1.0")
A("    s_cmp_ge_u32 s8, 20")
A("    s_cbranch_scc1 LS_wh")
A("    s_lshl_b32 s9, s15, 4")
A("    s_cmp_ge_u32 s15, 8")
A("    s_cselect_b32 s9, 129, s9")
A("    s_cmp_ge_u32 s15, 4")
A(f"    s_cselect_b32 s24, 0x{LOG2E:08x}, s24")
A("    s_branch LS_wgo")
A("LS_wh:")
A("    s_sub_u32 s15, s15, 10")
A("    s_lshl_b32 s9, s15, 4")
A("    s_cmp_ge_u32 s15, 4")
A("    s_cselect_b32 s10, 4, 8")
A("    s_cselect_b32 s11, 8, 4")
A("    s_mov_b32 s16, s20")
A("    s_mov_b32 s17, s21")
A("    s_mov_b32 s18, s22")
A("LS_wgo:")
A("    v_and_b32 v1, 31, v0")
A("    v_bfe_u32 v2, v0, 5, 1")
A("    v_mul_u32_u24 v2, s10, v2")
A("    v_add_u32 v2, s9, v2")
A("    v_lshlrev_b32 v2, 7, v2")
A("    v_lshl_add_u32 v2, v1, 1, v2")
A("    s_lshl_b32 s3, s14, 6")
A("    v_add_u32 v2, s3, v2")
A("    s_lshl_b32 s3, s11, 7")
A("    v_add_u32 v3, s3, v2                   ; j=4")
for j in range(4):
    A(f"    buffer_load_ushort v{10+j}, v2, s[16:19], 0 offen offset:{128*j}")
for j in range(4):
    A(f"    buffer_load_ushort v{14+j}, v3, s[16:19], 0 offen offset:{128*j}")
A("    s_waitcnt vmcnt(0)")
for j in range(8):
    A(f"    v_lshlrev_b32 v{10+j}, 16, v{10+j}")
    A(f"    v_mul_f32 v{10+j}, s24, v{10+j}")
for j in range(4):
    A(f"    v_cvt_pk_bf16_f32 v{20+j}, v{10+2*j}, v{11+2*j}")
A("    v_and_b32 v1, 63, v0")
A("    v_lshlrev_b32 v1, 4, v1")
A("    s_lshl_b32 s3, s8, 10")
A(f"    s_add_u32 s3, s3, {WF_OFF}")
A("    v_add_u32 v1, s3, v1")
A("    buffer_store_dwordx4 v[20:23], v1, s[28:31], 0 offen")
A("LS_end:")
A("    s_endpgm")

S_H, S_EA, S_WS, S_P4, S_WE, S_WX, S_OUT = 8, 12, 16, 20, 24, 28, 32
sW, sT, sBASE, sCNT, sLB, sNT, sNODE, sSTG = 40, 41, 42, 43, 44, 45, 46, 47
sHIGH = 50
sM25 = 52
sHI = 54
sAM = 55
sLN2 = 56
sP4O = 57
sIDRS = 58
sPAB = 59

_next = [1]
def alloc(n, align=1):
    while _next[0] % align:
        _next[0] += 1
    r = _next[0]; _next[0] += n
    return r
WSF = alloc(32, 4)
WAE = alloc(8, 4)
ATF = alloc(16, 4)
WX = alloc(16, 4)
ACC = alloc(32, 4)
SEG = alloc(32, 4)
HB = alloc(16, 4)
EA = alloc(4, 4)
SO = alloc(8, 4)
PK = alloc(16, 4)
TRM = alloc(8, 4)
TRS = alloc(8, 4)
CS = alloc(4, 4)
TMP = alloc(8, 4)
W0D = alloc(4, 4)
PAC = alloc(4, 4)
PS0 = alloc(3, 2); vW0E = alloc(1)
PS1 = alloc(3, 2); vNB = alloc(1)
PD = alloc(3, 2); vSA = alloc(1)
PS = (PS0, PS1)
DX = (alloc(3), alloc(3))
vW1P = alloc(1); vW0E3 = alloc(1)
vSWZ = (alloc(1), alloc(1))
vEAO = alloc(1)
vHBA = [alloc(1) for _ in range(4)]
vEAR, vIDB, vSWL, vMWL, vTRL = [alloc(1) for _ in range(5)]
assert _next[0] <= 256, _next[0]
vTRP, vL0E, vL0D = 1, 2, 3
vL1P, vONE, vZERO, vMASK = [alloc(1) for _ in range(4)]
assert _next[0] <= 256, _next[0]
NVGPR = _next[0]
def wsf(s, t): return WSF + (2 * s + t) * 4
def atf(u, t): return ATF + (2 * u + t) * 4
X = PK
assert W0D + 4 - PK == 48

A(".globl egnn_main_kernel")
A(".p2align 8")
A(".type egnn_main_kernel,@function")
A("egnn_main_kernel:")
A(f"    s_cmp_ge_u32 s2, {NBK}")
A("    s_cbranch_scc1 LM_end")
STAMP()
A("    s_load_dwordx2 s[80:81], s[0:1], 80    ; ws")
A("    s_load_dwordx2 s[64:65], s[0:1], 0     ; h")
A("    s_load_dwordx2 s[66:67], s[0:1], 16    ; e_attr")
A("    s_load_dwordx4 s[72:75], s[0:1], 40    ; w_e, w_x")
A("    s_load_dwordx2 s[78:79], s[0:1], 64    ; out")
xLANE, xE32, xHH, xH16, xL16, xT4 = X + 40, X + 41, X + 42, X + 43, X + 44, X + 45
def lane_consts():
    A(f"    v_and_b32 v{xLANE}, 63, v0")
    A(f"    v_and_b32 v{xE32}, 31, v0")
    A(f"    v_bfe_u32 v{xHH}, v0, 5, 1")
    A(f"    v_lshlrev_b32 v{xH16}, 4, v{xHH}")
    A(f"    v_lshlrev_b32 v{xL16}, 4, v{xLANE}")
    A(f"    v_lshlrev_b32 v{xT4}, 2, v0")
lane_consts()
A(f"    v_lshrrev_b32 v{X}, 6, v0")
A(f"    s_mov_b32 s{sHIGH}, 0")
A(f"    v_readfirstlane_b32 s{sW}, v{X}")
A(f"    s_mov_b32 s{sHIGH+1}, -1")
A(f"    s_mov_b32 s{sM25}, 0x01ffffff")
A(f"    s_mov_b32 s{sM25+1}, 0x01ffffff")
A(f"    s_mov_b32 s{sHI}, 0xffff0000")
A(f"    s_mov_b32 s{sAM}, 0x007fff80")
A(f"    s_mov_b32 s{sLN2}, 0x{LN2:08x}")
A(f"    s_mov_b32 s{sP4O}, {P4_OFF}")
A(f"    s_mov_b32 s{sIDRS}, {ID_RS}")
A(f"    s_lshl_b32 s3, s2, 10")
A(f"    s_add_u32 s3, s3, {TBL_OFF}")
A(f"    s_mov_b32 s5, {WF_OFF}")
A(f"    s_mul_i32 s{sSTG}, s{sW}, {2*ST_SZ}")
A(f"    s_add_u32 s{sSTG}, s{sSTG}, {L_ST}")
A(f"    s_mul_i32 s6, s2, {BN}")
A(f"    s_mul_i32 s4, s{sW}, {FBN}")
A(f"    s_add_u32 s{sNODE}, s6, s4")
A("    s_waitcnt lgkmcnt(0)")
srd(S_WS, 80, 81, WS_USED)
A(f"    buffer_load_dwordx4 {vr(X+4,4)}, v{xL16}, s[{S_WS}:{S_WS+3}], s3 offen")
srd(S_H, 64, 65, N * 128)
srd(S_P4, 80, 81, N, stride=16)
srd(S_EA, 66, 67, E * 32)
srd(S_WE, 72, 73, 145 * 128)
srd(S_WX, 74, 75, 128)
srd(S_OUT, 78, 79, N * 128 + N * 6)
A(f"    v_add_u32 v{X}, s{sNODE}, v{xE32}")
A(f"    v_lshl_add_u32 v{X+1}, v{X}, 7, v{xH16}")
for s in range(4):
    A(f"    buffer_load_dwordx4 {vr(HB+4*s,4)}, v{X+1}, s[{S_H}:{S_H+3}], 0 offen offset:{32*s}")
A(f"    buffer_load_dwordx3 {vr(PD,3)}, v{X}, s[{S_P4}:{S_P4+3}], s{sP4O} idxen")
A(f"    v_add_u32 v{X+2}, 4096, v{xL16}")
for f in range(8):
    A(f"    buffer_load_dwordx4 {vr(ACC+4*f,4)}, v{xL16 if f < 4 else X+2}, s[{S_WS}:{S_WS+3}], s5 offen offset:{(f%4)*1024}")
A(f"    v_lshlrev_b32 v{X+3}, 1, v{xE32}")
A(f"    v_add_u32 v{X+3}, {128*128}, v{X+3}")
A(f"    buffer_load_ushort v{EA}, v{X+3}, s[{S_WE}:{S_WE+3}], 0 offen")
A(f"    buffer_load_ushort v{EA+1}, v{X+3}, s[{S_WE}:{S_WE+3}], 0 offen offset:64")
for f in range(10):
    if f % 4 == 0:
        A(f"    v_add_u32 v{X+2}, {8192 + f*1024}, v{xL16}")
    A(f"    buffer_load_dwordx4 {vr(WSF+4*f,4)}, v{X+2}, s[{S_WS}:{S_WS+3}], s5 offen offset:{(f%4)*1024}")
A(f"    v_lshlrev_b32 v{X+3}, 3, v{xHH}")
for t in range(2):
    for q in range(4):
        A(f"    buffer_load_dwordx2 {vr(WX+8*t+2*q,2)}, v{X+3}, s[{S_WX}:{S_WX+3}], 0 offen offset:{64*t+16*q}")
NPRO = 1 + 4 + 1 + 8 + 2 + 10 + 8
A(f"    s_mul_i32 s4, s{sW}, {MS_W}")
A(f"    s_add_u32 s4, s4, {L_MS}")
A(f"    v_mul_u32_u24 v{X}, {MS_RS}, v{xE32}")
A(f"    v_add_u32 v{X}, s4, v{X}")
A(f"    v_lshl_add_u32 v{vMWL}, v{xHH}, 3, v{X}")
A(f"    v_add_u32 v{vSWL}, 64, v{X}")
A(f"    v_bfe_u32 v{X}, v{xLANE}, 2, 2")
A(f"    v_lshlrev_b32 v{X}, 2, v{X}")
A(f"    v_add_u32 v{X}, v{X}, v{xHH}")
A(f"    v_mul_u32_u24 v{X}, {2*MS_RS}, v{X}")
A(f"    v_bfe_u32 v{X+1}, v{xLANE}, 4, 1")
A(f"    v_lshl_add_u32 v{X}, v{X+1}, 5, v{X}")
A(f"    v_and_b32 v{X+1}, 3, v{xLANE}")
A(f"    v_lshl_add_u32 v{X}, v{X+1}, 3, v{X}")
A(f"    v_add_u32 v{vTRL}, s4, v{X}")
A(f"    v_bfe_u32 v{X}, v{xLANE}, 2, 2")
A(f"    v_lshlrev_b32 v{X}, 2, v{X}")
A(f"    v_add_u32 v{X}, v{X}, v{xHH}")
A(f"    v_mul_u32_u24 v{X}, {2*MS_RS}, v{X}")
A(f"    v_add_u32 v{X}, s4, v{X}")
A(f"    v_add_u32 v{X}, 128, v{X}")
A(f"    v_bfe_u32 v{X+1}, v{xLANE}, 4, 1")
A(f"    v_and_b32 v{X+2}, 3, v{xLANE}")
A(f"    v_cmp_eq_u32 vcc, v{X+1}, v{X+2}")
A(f"    v_mov_b32 v{vTRP}, {L_Z}")
A(f"    s_lshl_b32 s{sPAB}, s{sW}, 9")
A(f"    v_cndmask_b32 v{vTRP}, v{vTRP}, v{X}, vcc")
A(f"    s_add_u32 s{sPAB}, s{sPAB}, {L_PA}")
A(f"    v_add_u32 v{vIDB}, {L_ID}, v{xH16}")
A(f"    v_mov_b32 v{vONE}, 0x3f80")
A(f"    v_mov_b32 v{vZERO}, 0")
A(f"    v_mul_u32_u24 v{vMASK}, 0xffff, v{xHH}")
A(f"    v_lshlrev_b32 v{vMASK}, 16, v{vMASK}")
A(f"    v_lshrrev_b32 v{X}, 3, v{xLANE}")
A(f"    v_and_b32 v{X+1}, 7, v{xLANE}")
A(f"    v_xor_b32 v{X+1}, v{X+1}, v{X}")
A(f"    v_lshlrev_b32 v{vSWZ[0]}, 4, v{X+1}")
A(f"    v_xor_b32 v{vSWZ[1]}, 16, v{vSWZ[0]}")
A(f"    v_and_b32 v{vEAO}, 1, v{xLANE}")
A(f"    v_lshlrev_b32 v{vEAO}, 4, v{vEAO}")
A(f"    v_lshrrev_b32 v{X}, 3, v{xE32}          ; i")
A(f"    v_and_b32 v{X+1}, 7, v{xE32}            ; r")
A(f"    v_and_b32 v{X+2}, 1, v{X}")
A(f"    v_xor_b32 v{X+2}, v{X+2}, v{X+1}        ; x")
A(f"    v_xor_b32 v{X+2}, v{X+2}, v{xHH}        ; x ^ hh")
A(f"    v_lshlrev_b32 v{X+3}, 10, v{X}")
A(f"    v_lshl_add_u32 v{X+3}, v{X+1}, 7, v{X+3}")
A(f"    v_add_u32 v{X+3}, s{sSTG}, v{X+3}")
for s in range(4):
    A(f"    v_xor_b32 v{vHBA[s]}, {2*s}, v{X+2}")
    A(f"    v_lshl_add_u32 v{vHBA[s]}, v{vHBA[s]}, 4, v{X+3}")
A(f"    v_lshl_add_u32 v{vEAR}, v{xE32}, 5, v{xH16}")
A(f"    v_add_u32 v{vEAR}, s{sSTG}, v{vEAR}")
A(f"    v_add_u32 v{vEAR}, 4096, v{vEAR}")
for j in range(4):
    A(f"    v_mov_b32 v{X+8+j}, 0")
A(f"    ds_write_b128 v{xL16}, {vr(X+8,4)} offset:{L_Z}")
A(f"    v_lshl_add_u32 v{X}, v{xHH}, 5, v{vSWL}")
for j in range(4):
    A(f"    ds_write_b64 v{X}, {vr(X+8,2)} offset:{8*j}")
A("    v_cmp_gt_u32 vcc, 32, v0")
A("    s_and_saveexec_b64 s[48:49], vcc")
A(f"    ds_write_b32 v{xT4}, v{X+8} offset:{L_FCNT}")
A(f"    v_mul_u32_u24 v{X}, {ID_RS}, v0")
for j in range(5):
    A(f"    ds_write_b128 v{X}, {vr(X+8,4)} offset:{L_ID + 16*j}")
A(f"    v_lshrrev_b32 v{X+1}, 4, v0")
A(f"    v_lshl_add_u32 v{X}, v{X+1}, 5, v{X}")
A(f"    v_bfe_u32 v{X+1}, v0, 2, 1")
A(f"    v_lshl_add_u32 v{X}, v{X+1}, 4, v{X}")
A(f"    v_bfe_u32 v{X+1}, v0, 3, 1")
A(f"    v_lshl_add_u32 v{X}, v{X+1}, 3, v{X}")
A(f"    v_and_b32 v{X+1}, 3, v0")
A(f"    v_lshl_add_u32 v{X}, v{X+1}, 1, v{X}")
A("    v_cmp_gt_u32 vcc, 31, v0")
A("    s_and_b64 exec, exec, vcc")
A(f"    ds_write_b16 v{X}, v{vONE} offset:{L_ID}")
A("    s_mov_b64 exec, s[48:49]")
A(f"    s_waitcnt vmcnt({NPRO-1})")
STAMP()
T_ = X + 4
A(f"    v_cmp_gt_u32 vcc, 62, v{xLANE}")
A(f"    v_cmp_gt_u32 s[48:49], 63, v{xLANE}")
A("    s_nop 0")
A(f"    v_cndmask_b32 v{T_+2}, 0, v{T_+2}, vcc")
A(f"    v_cndmask_b32 v{T_+3}, 0, v{T_+3}, vcc")
A(f"    v_cndmask_b32 v{T_}, 0, v{T_}, s[48:49]")
A(f"    v_cndmask_b32 v{T_+1}, 0, v{T_+1}, s[48:49]")
for k in range(4):
    A(f"    v_lshrrev_b32 v{X+8+k}, 16, v{T_+k}")
for k in range(4):
    A(f"    v_and_b32 v{T_+k}, 0xffff, v{T_+k}")
A(f"    v_add_u32 v{X+12}, v{X+8}, v{X+9}")
A(f"    v_add_u32 v{X+13}, v{X+12}, v{X+10}")
A(f"    v_add_u32 v{X+14}, v{X+13}, v{X+11}")
A(f"    v_mov_b32 v{X+15}, v{X+14}")
wave_scan(X + 15)
A(f"    v_readlane_b32 s{sT}, v{X+15}, 63")
A(f"    v_sub_u32 v{X+16}, v{X+15}, v{X+14}")
A(f"    v_add_u32 v{X+17}, v{X+16}, v{X+8}")
A(f"    v_add_u32 v{X+18}, v{X+16}, v{X+12}")
A(f"    v_add_u32 v{X+19}, v{X+16}, v{X+13}")
A(f"    ds_write_b128 v{xL16}, {vr(X+16,4)} offset:{L_PRE}")
A(f"    v_mul_u32_u24 v{X+8}, {4*C}, v{xLANE}")
for k in range(4):
    A(f"    v_add_u32 v{X+12+k}, v{X+8}, v{T_+k}")
    A(f"    v_sub_u32 v{X+12+k}, v{X+12+k}, v{X+16+k}")
    if k:
        A(f"    v_add_u32 v{X+12+k}, {k*C}, v{X+12+k}")
A(f"    ds_write_b128 v{xL16}, {vr(X+12,4)} offset:{L_DELTA}")
A(f"    s_mov_b32 s{sBASE}, 0")
NS = CAP // 512
RI, RG, RT, RR = X, X + 8, X + 16, X + 24
A("LM_round:")
A(f"    v_add_u32 v{RI}, s{sBASE}, v0")
for k in range(1, NS):
    A(f"    v_add_u32 v{RI+k}, {512*k}, v{RI}")
for k in range(NS):
    A(f"    v_mov_b32 v{RG+k}, 0")
A("    s_waitcnt lgkmcnt(0)")
for step in (128, 64, 32, 16, 8, 4, 2, 1):
    for k in range(NS):
        A(f"    ds_read_b32 v{RT+k}, v{RG+k} offset:{L_PRE + 4*step}")
    for k in range(NS):
        A(f"    s_waitcnt lgkmcnt({NS-1-k})")
        A(f"    v_cmp_le_u32 vcc, v{RT+k}, v{RI+k}")
        A(f"    v_add_u32 v{RT+k}, {4*step}, v{RG+k}")
        A("    s_nop 0")
        A(f"    v_cndmask_b32 v{RG+k}, v{RG+k}, v{RT+k}, vcc")
for k in range(NS):
    A(f"    ds_read_b32 v{RT+k}, v{RG+k} offset:{L_DELTA}")
A(f"    v_mov_b32 v{RI+7}, -16")
for k in range(NS):
    A(f"    s_waitcnt lgkmcnt({NS-1-k})")
    A(f"    v_add_u32 v{RT+k}, v{RT+k}, v{RI+k}")
    A(f"    v_cmp_gt_u32 vcc, s{sT}, v{RI+k}")
    A(f"    v_lshlrev_b32 v{RG+k}, 3, v{RT+k}")
    A(f"    s_nop 0")
    A(f"    v_cndmask_b32 v{RG+k}, v{RI+7}, v{RG+k}, vcc")
    A(f"    buffer_load_dwordx2 {vr(RR+2*k,2)}, v{RG+k}, s[{S_WS}:{S_WS+3}], 0 offen")
A("    s_barrier")
A(f"    s_cmp_lg_u32 s{sBASE}, 0")
A("    s_cbranch_scc1 LM_noat")
A(f"    s_waitcnt vmcnt({NS})")
for t in range(2):
    for s in range(4):
        c = "0" if s == 0 else vr(SEG+16*t,16)
        A(f"    v_mfma_f32_32x32x16_bf16 {vr(SEG+16*t,16)}, {vr(HB+4*s,4)}, {vr(ACC+4*(2*s+t),4)}, {c}")
A(f"    v_lshl_add_u32 v{RT}, v{xE32}, 4, s{sPAB}")
A(f"    ds_write_b96 v{RT}, {vr(PD,3)}")
for j in range(4):
    A(f"    v_mov_b32 v{PAC+j}, 0")
A(f"    s_mov_b32 s48, {(1<<8)|(1<<28)}")
A(f"    s_mov_b32 s49, {(1<<8)|(1<<28)}")
for j in range(16):
    A(f"    v_cndmask_b32 v{WX+j}, 0, v{WX+j}, s[48:49]")
A(f"    s_mov_b32 s3, 0x{LOG2E:08x}")
for t in range(2):
    A(f"    v_lshlrev_b32 v{EA+t}, 16, v{EA+t}")
    A(f"    v_mul_f32 v{EA+t}, s3, v{EA+t}")
    A(f"    v_cvt_pk_bf16_f32 v{EA+t}, v{EA+t}, v{EA+t}")
for r in range(32):
    A(f"    v_mul_f32 v{SEG+r}, s3, v{SEG+r}")
for t in range(2):
    for u in range(2):
        for j in range(4):
            A(f"    v_cvt_pk_bf16_f32 v{atf(u,t)+j}, v{SEG+16*t+8*u+2*j}, v{SEG+16*t+8*u+2*j+1}")
    A(f"    v_bfi_b32 v{atf(1,t)+3}, v{vMASK}, v{EA+t}, v{atf(1,t)+3}")
for r in range(32):
    A(f"    v_mov_b32 v{SEG+r}, 0")
A("LM_noat:")
A(f"    v_mov_b32 v{RI+7}, 1")
for k in range(NS):
    A(f"    s_waitcnt vmcnt({NS-1-k})")
    A(f"    v_and_b32 v{RG+k}, 7, v{RR+2*k+1}")
    A(f"    v_lshlrev_b32 v{RG+k}, 2, v{RG+k}       ; fb*4")
    A(f"    v_cmp_gt_u32 vcc, s{sT}, v{RI+k}")
    A("    s_and_saveexec_b64 s[48:49], vcc")
    A(f"    ds_add_rtn_u32 v{RT+k}, v{RG+k}, v{RI+7} offset:{L_FCNT}")
    A("    s_mov_b64 exec, s[48:49]")
    A(f"    v_and_b32 v{RR+2*k+1}, -32, v{RR+2*k+1}")
A("    s_waitcnt lgkmcnt(0)")
A("    s_barrier")
STAMP()
FB = HB
A(f"    ds_read_b128 {vr(FB,4)}, v{vZERO} offset:{L_FCNT}")
A(f"    ds_read_b128 {vr(FB+4,4)}, v{vZERO} offset:{L_FCNT+16}")
A("    s_waitcnt lgkmcnt(0)")
A(f"    v_mov_b32 v{FB+8}, 0")
for f in range(1, 8):
    A(f"    v_add_u32 v{EA}, 31, v{FB+f-1}")
    A(f"    v_and_b32 v{EA}, -32, v{EA}")
    A(f"    v_add_u32 v{FB+8+f}, v{FB+8+f-1}, v{EA}")
A(f"    s_lshl_b32 s3, s{sW}, 5")
A(f"    s_add_u32 s3, s3, {L_WB}")
A(f"    v_mov_b32 v{EA}, s3")
A(f"    ds_write_b128 v{EA}, {vr(FB+8,4)}")
A(f"    ds_write_b128 v{EA}, {vr(FB+12,4)} offset:16")
A(f"    s_lshl_b32 s4, s{sW}, 2")
A(f"    v_add_u32 v{EA+1}, s4, v{EA}")
A(f"    ds_read_b32 v{EA+2}, v{EA+1}                 ; base_w")
A(f"    v_mov_b32 v{EA+1}, s4")
A(f"    ds_read_b32 v{EA+3}, v{EA+1} offset:{L_FCNT}  ; cnt_w")
for k in range(NS):
    A(f"    v_add_u32 v{RG+k}, v{RG+k}, v{EA}")
    A(f"    ds_read_b32 v{RG+k}, v{RG+k}")
A(f"    s_waitcnt lgkmcnt({NS})")
A(f"    v_readfirstlane_b32 s{sLB}, v{EA+2}")
A(f"    v_readfirstlane_b32 s{sCNT}, v{EA+3}")
A("    s_waitcnt lgkmcnt(0)")
for k in range(NS):
    A(f"    v_add_u32 v{RG+k}, v{RG+k}, v{RT+k}")
    A(f"    v_lshlrev_b32 v{RG+k}, 2, v{RG+k}")
    A(f"    v_cmp_gt_u32 vcc, s{sT}, v{RI+k}")
    A("    s_and_saveexec_b64 s[48:49], vcc")
    A(f"    ds_write_b32 v{RG+k}, v{RR+2*k} offset:{L_W0}")
    A(f"    ds_write_b32 v{RG+k}, v{RR+2*k+1} offset:{L_W1}")
    A("    s_mov_b64 exec, s[48:49]")
A(f"    s_add_u32 s3, s{sCNT}, 31")
A(f"    s_lshr_b32 s{sNT}, s3, 5               ; ntiles")
A(f"    s_lshl_b32 s3, s{sNT}, 5")
A(f"    s_sub_u32 s3, s3, s{sCNT}")
A(f"    s_add_u32 s4, s{sLB}, s{sCNT}")
A(f"    v_add_u32 v{RG}, s4, v{xLANE}")
A(f"    v_lshlrev_b32 v{RG}, 2, v{RG}")
A(f"    v_mov_b32 v{RT}, {PADNB}")
A(f"    v_cmp_gt_u32 vcc, s3, v{xLANE}")
A("    s_and_saveexec_b64 s[48:49], vcc")
A(f"    ds_write_b32 v{RG}, v{RT} offset:{L_W0}")
A(f"    ds_write_b32 v{RG}, v{vZERO} offset:{L_W1}")
A("    s_mov_b64 exec, s[48:49]")
A(f"    v_and_b32 v{RG}, 7, v{xE32}")
A(f"    v_lshrrev_b32 v{RG+1}, 3, v{xE32}")
A(f"    v_lshl_add_u32 v{RG}, v{RG}, 2, v{RG+1}     ; p(e)")
A(f"    v_add_u32 v{RG}, s{sLB}, v{RG}")
A(f"    v_lshlrev_b32 v{vL0E}, 2, v{RG}")
A(f"    v_lshrrev_b32 v{RG}, 3, v{xLANE}")
A(f"    v_lshlrev_b32 v{RG}, 2, v{RG}")
A(f"    v_add_u32 v{RG}, s{sLB}, v{RG}")
A(f"    v_lshlrev_b32 v{vL0D}, 2, v{RG}")
A(f"    v_bfe_u32 v{RG}, v{xLANE}, 1, 3            ; (l/2)%8")
A(f"    v_lshrrev_b32 v{RG+1}, 4, v{xLANE}         ; (l/2)/8")
A(f"    v_lshl_add_u32 v{RG}, v{RG}, 2, v{RG+1}")
A(f"    v_add_u32 v{RG}, s{sLB}, v{RG}")
A(f"    v_lshlrev_b32 v{vL1P}, 2, v{RG}")
A("    s_waitcnt lgkmcnt(0)")
A("    s_barrier")
A("    v_cmp_gt_u32 vcc, 8, v0")
A("    s_and_saveexec_b64 s[48:49], vcc")
A(f"    ds_write_b32 v{xT4}, v{vZERO} offset:{L_FCNT}")
A("    s_mov_b64 exec, s[48:49]")
STAMP()
A(f"    s_cmp_eq_u32 s{sNT}, 0")
A("    s_cbranch_scc1 LM_tiles_done")

def V(t): return ('v', t, None)
def M(t): return ('m', t, None)
def DS(t, tag=None): return ('ds', t, tag)
def VM(t): return ('vm', t, None)
def S(t): return ('s', t, None)
def WL(tag): return ('wl', None, tag)
def WV(n): return ('s', f"s_waitcnt vmcnt({n})", None)

def mf(d, a, b, c0=False):
    return M(f"v_mfma_f32_32x32x16_bf16 {vr(d,16)}, {vr(a,4)}, {vr(b,4)}, {'0' if c0 else vr(d,16)}")
def chain(t):
    d = ACC + 16 * t
    l = [mf(d, wsf(s, t), HB + 4 * s, s == 0) for s in range(4)]
    l.append(mf(d, WAE + 4 * t, EA))
    l += [mf(d, atf(u, t), SO + 4 * u) for u in range(2)]
    return l
def seg(t, s):
    return mf(SEG + 16 * t, TRM + 4 * s, TRS + 4 * s)
def csm(t, u):
    c = '0' if (t == 0 and u == 0) else vr(CS, 4)
    return M(f"v_mfma_f32_16x16x32_bf16 {vr(CS,4)}, {vr(WX+8*t+4*u,4)}, {vr(PK+8*t+4*u,4)}, {c}")
def list_reads(k):
    return [DS(f"ds_read_b128 {vr(W0D,4)}, v{vL0D} offset:{L_W0 + 128*k}"),
            DS(f"ds_read_b32 v{vW1P}, v{vL1P} offset:{L_W1 + 128*k}"),
            DS(f"ds_read_b32 v{vW0E3}, v{vL0E} offset:{L_W0 + 128*k}", 'L3')]
def dma_addr():
    l = [V(f"v_and_or_b32 v{W0D+i}, v{W0D+i}, s{sAM}, v{vSWZ[i&1]}") for i in range(4)]
    l.append(V(f"v_add_u32 v{vW1P}, v{vW1P}, v{vEAO}"))
    l.append(V(f"v_bfe_u32 v{vW0E3}, v{vW0E3}, 7, 16"))
    return l
def dma_pairs(q):
    l = []
    for i in range(4):
        l.append((S(f"s_add_u32 m0, s{sSTG}, {q*ST_SZ + i*1024}"),
                  VM(f"buffer_load_dwordx4 v{W0D+i}, s[{S_H}:{S_H+3}], 0 offen lds")))
    l.append((S(f"s_add_u32 m0, s{sSTG}, {q*ST_SZ + 4096}"),
              VM(f"buffer_load_dwordx4 v{vW1P}, s[{S_EA}:{S_EA+3}], 0 offen lds")))
    pos = [S(f"s_mov_b64 exec, s[{sHIGH}:{sHIGH+1}]"),
           VM(f"buffer_load_dwordx3 {vr(PS[q],3)}, v{vW0E3}, s[{S_P4}:{S_P4+3}], s{sP4O} idxen"),
           S("s_mov_b64 exec, -1")]
    return l, pos
def stage_reads(q):
    l = [DS(f"ds_read_b128 {vr(HB+4*s,4)}, v{vHBA[s]} offset:{q*ST_SZ}") for s in range(4)]
    l.append(DS(f"ds_read_b128 {vr(EA,4)}, v{vEAR} offset:{q*ST_SZ}"))
    return l
def nb_ops(q):
    return [V(f"v_and_b32 v{vNB}, 31, v{vW0E}"),
            V(f"v_mad_u32_u24 v{vW0E}, v{vNB}, s{sIDRS}, v{vIDB}"),
            V(f"v_lshl_add_u32 v{PD}, v{vNB}, 4, s{sPAB}")]
def so_reads(q):
    return [DS(f"ds_read_b128 {vr(SO,4)}, v{vW0E}"),
            DS(f"ds_read_b128 {vr(SO+4,4)}, v{vW0E} offset:32"),
            DS(f"ds_read_b96 {vr(PD,3)}, v{PD}", 'PD')]
def pre_ops(q):
    d = DX[q]; p = PS[q]
    return [V(f"v_sub_f32 v{PD}, v{PD}, v{p}"),
            V(f"v_sub_f32 v{PD+1}, v{PD+1}, v{p+1}"),
            V(f"v_sub_f32 v{PD+2}, v{PD+2}, v{p+2}"),
            V(f"v_cvt_pk_bf16_f32 v{PD}, v{PD}, v{PD+1}"),
            V(f"v_cvt_pk_bf16_f32 v{PD+2}, v{PD+2}, v{PD+2}"),
            V(f"v_lshlrev_b32 v{d}, 16, v{PD}"),
            V(f"v_and_b32 v{d+1}, s{sHI}, v{PD}"),
            V(f"v_lshlrev_b32 v{d+2}, 16, v{PD+2}"),
            V(f"v_mul_f32 v{PD+1}, v{d}, v{d}"),
            V(f"v_fma_f32 v{PD+1}, v{d+1}, v{d+1}, v{PD+1}"),
            V(f"v_fma_f32 v{PD+1}, v{d+2}, v{d+2}, v{PD+1}"),
            V(f"v_cvt_pk_bf16_f32 v{PD+1}, v{PD+1}, v{PD+1}"),
            V(f"v_bfi_b32 v{SO+7}, v{vMASK}, v{PD+1}, v{SO+7}")]
def post_ops(q):
    d = DX[q]
    va = [V(f"v_mul_f32 v{CS}, s{sLN2}, v{CS}"),
          V(f"v_cvt_pk_bf16_f32 v{CS}, v{CS}, v{CS}"),
          V(f"v_and_b32 v{CS}, s{sHI}, v{CS}"),
          V(f"v_mul_f32 v{d}, v{d}, v{CS}"),
          V(f"v_mul_f32 v{d+1}, v{d+1}, v{CS}"),
          V(f"v_mul_f32 v{d+2}, v{d+2}, v{CS}"),
          V(f"v_cvt_pk_bf16_f32 v{CS+2}, v{d}, v{d+1}"),
          V(f"v_cvt_pk_bf16_f32 v{CS+3}, v{d+2}, v{d+2}")]
    da = [S(f"s_mov_b64 exec, s[{sHIGH}:{sHIGH+1}]"),
          DS(f"ds_write_b64 v{vSWL}, {vr(CS+2,2)} offset:64"),
          S("s_mov_b64 exec, -1")]
    da += [DS(f"ds_read_b64_tr_b16 {vr(TRM+4*s+2*p,2)}, v{vTRP} offset:{(4*s+p)*MS_RS}", 'TRP' if (s, p) == (1, 1) else None)
           for s in range(2) for p in range(2)]
    pm = [M(f"v_mfma_f32_16x16x32_bf16 {vr(PAC,4)}, {vr(TRM+4*s,4)}, {vr(TRS+4*s,4)}, {vr(PAC,4)}") for s in range(2)]
    return va, da, pm
def m_write(t, qs):
    return [DS(f"ds_write_b64 v{vMWL}, {vr(PK+8*t+2*q,2)} offset:{16*q}") for q in qs]
def trm_reads(tag):
    l = [DS(f"ds_read_b64_tr_b16 {vr(TRM+4*s+2*p,2)}, v{vTRL} offset:{(4*s+p)*MS_RS}") for s in range(2) for p in range(2)]
    l[-1] = (l[-1][0], l[-1][1], tag)
    return l
def trs_reads():
    l = [DS(f"ds_read_b64_tr_b16 {vr(TRS+4*s+2*p,2)}, v{vTRL} offset:{(4*s+p)*MS_RS+64}") for s in range(2) for p in range(2)]
    l[-1] = (l[-1][0], l[-1][1], 'TRS')
    return l
SA_OP = V(f"v_lshl_add_u32 v{vSA}, v{vNB}, 1, v{vSWL}")

def silu_stream(t):
    a = ACC + 16 * t
    l = []
    for g in range(2):
        rs = range(8 * g, 8 * g + 8)
        l += [V(f"v_exp_f32 v{TMP+r%8}, -v{a+r}") for r in rs]
        l += [V(f"v_add_f32 v{TMP+r%8}, 1.0, v{TMP+r%8}") for r in rs]
        l += [V(f"v_rcp_f32 v{TMP+r%8}, v{TMP+r%8}") for r in rs]
        l += [V(f"v_mul_f32 v{a+r}, v{a+r}, v{TMP+r%8}") for r in rs]
        l += [V(f"v_cvt_pk_bf16_f32 v{PK+8*t+4*g+j}, v{a+8*g+2*j}, v{a+8*g+2*j+1}") for j in range(4)]
    return l

def merge(main, side):
    res = []
    side = sorted(enumerate(side), key=lambda x: (x[1][0], x[0]))
    k = 0
    for i in range(len(main) + 1):
        while k < len(side) and side[k][1][0] <= i:
            ops = side[k][1][1]
            res += ops if isinstance(ops, list) else [ops]
            k += 1
        if i < len(main):
            res.append(main[i])
    assert k == len(side)
    return res

def phaseA(par):
    q = 1 - par
    ch = chain(1)
    pv, pd, pm = post_ops(q)
    nb = nb_ops(q)
    sd = [(0, DS(f"ds_read_b32 v{vW0E}, v{vL0E} offset:{L_W0 + 128*(par+1)}", 'W0E')),
          (0, ch[0]), (5, [WL('TRM1'), seg(1, 0)]), (8, ch[1]), (12, seg(1, 1)), (16, ch[2]),
          (20, csm(1, 0)), (24, ch[3]), (27, csm(1, 1)), (30, ch[4]),
          (36, m_write(0, (0, 1))), (36, ch[5]),
          (38, [WV(6)] + stage_reads(q)), (42, ch[6]),
          (39, pv[0]), (40, pv[1]), (41, pv[2]), (43, pv[3]), (44, pv[4]), (45, pv[5]), (46, pv[6]), (47, [pv[7]] + pd),
          (48, [WL('W0E'), nb[0]]), (49, nb[1]), (50, nb[2]), (51, so_reads(q)),
          (64, [WL('TRP'), pm[0]]), (67, pm[1]),
          (60, DS(f"ds_write_b16 v{vSA}, v{vONE}")),
          (72, m_write(0, (2, 3)) + trm_reads('TRM0') + trs_reads() + [DS(f"ds_write_b16 v{vSA}, v{vZERO}")])]
    return merge(silu_stream(0), sd)

def phaseB(par):
    q = 1 - par
    ch = chain(0)
    pr = pre_ops(q)
    da = dma_addr()
    dp, dpos = dma_pairs(q)
    sd = [(0, list_reads(par + 3)),
          (2, [WL('PD'), pr[0]]), (3, pr[1]), (4, pr[2]), (6, pr[3]), (7, pr[4]), (9, pr[5]), (10, pr[6]),
          (11, pr[7]), (13, pr[8]), (14, pr[9]), (15, pr[10]), (17, pr[11]), (18, pr[12]),
          (4, ch[0]), (8, [WL('TRS'), seg(0, 0)]), (12, ch[1]), (16, seg(0, 1)), (20, ch[2]),
          (23, csm(0, 0)), (27, ch[3]), (30, csm(0, 1)), (33, ch[4]),
          (36, m_write(1, (0, 1))), (19, SA_OP), (39, ch[5]), (46, ch[6]),
          (21, [WL('L3'), da[0]]), (22, da[1]), (24, da[2]), (25, da[3]), (26, da[4]), (28, da[5]),
          (40, dp[0][0]), (41, dp[0][1]), (43, dp[1][0]), (44, dp[1][1]), (47, dp[2][0]), (48, dp[2][1]),
          (50, dp[3][0]), (51, dp[3][1]), (53, dp[4][0]), (54, dp[4][1]), (56, dpos),
          (72, m_write(1, (2, 3)) + trm_reads('TRM1'))]
    if par == 1:
        sd += [(60, V(f"v_add_u32 v{vL0E}, 256, v{vL0E}")), (62, V(f"v_add_u32 v{vL0D}, 256, v{vL0D}")),
               (64, V(f"v_add_u32 v{vL1P}, 256, v{vL1P}"))]
    return merge(silu_stream(1), sd)

def resolve(body):
    n = len(body)
    res = []
    for i, op in enumerate(body):
        if op[0] != 'wl':
            res.append(op[1]); continue
        cnt = 0
        for d in range(1, n + 1):
            o = body[(i - d) % n]
            if o[0] == 'ds':
                if o[2] == op[2]:
                    break
                cnt += 1
        else:
            raise Exception("tag not found " + op[2])
        res.append(f"s_waitcnt lgkmcnt({min(cnt, 15)})")
    return res

def emit(ops):
    for o in ops:
        assert o[0] != 'wl'
        A("    " + o[1])
def emit_dma(q):
    dp, dpos = dma_pairs(q)
    for a, b in dp:
        emit([a, S("s_nop 0"), b])
    emit(dpos)

fill_start = len(out)
for k in range(2):
    emit(list_reads(k))
    A("    s_waitcnt lgkmcnt(0)")
    emit(dma_addr())
    emit_dma(k)
A(f"    ds_read_b32 v{vW0E}, v{vL0E} offset:{L_W0}")
emit(list_reads(2))
for r in list(range(TRM, TRM + 16)) + list(range(PK + 8, PK + 16)) + list(range(CS, CS + 4)) + list(range(DX[1], DX[1] + 3)):
    A(f"    v_mov_b32 v{r}, 0")
A("    s_waitcnt lgkmcnt(0)")
emit(nb_ops(0))
emit([SA_OP])
emit(dma_addr())
A("    s_waitcnt vmcnt(6)")
emit(stage_reads(0))
emit(so_reads(0))
A("    s_waitcnt lgkmcnt(0)")
emit(pre_ops(0))
emit_dma(0)
emit(chain(0))
A("    s_nop 15")
HALF = None
body = []
marks = []
for par in range(2):
    body += phaseA(par) + phaseB(par)
    body.append(('br', par, None))
XF = os.environ.get("XF", "").split(",")
def keep(o):
    if o[0] in ('br', 'wl'): return True
    t = o[1]
    if 'nodma' in XF and o[0] == 'vm': return False
    if 'noea' in XF and o[0] == 'vm' and f"s[{S_EA}:" in t: return False
    if 'noh' in XF and o[0] == 'vm' and f"s[{S_H}:" in t: return False
    if 'nopos' in XF and o[0] == 'vm' and f"s[{S_P4}:" in t: return False
    if 'noadd' in XF and t.startswith('ds_add'): return False
    if 'nomw' in XF and t.startswith('ds_write'): return False
    if 'notrans' in XF and (t.startswith('v_exp') or t.startswith('v_rcp')): return False
    if 'novalu' in XF and o[0] == 'v': return False
    if 'nomfma' in XF and o[0] == 'm': return False
    if 'nods' in XF and o[0] == 'ds' and o[2] is None: return False
    return True
body = [o for o in body if keep(o)]
flat = [o for o in body if o[0] != 'br']
txt = resolve(flat)
A("LM_loop:")
k = 0
loop_lines = []
for o in body:
    if o[0] == 'br':
        l = [f"s_sub_u32 s{sNT}, s{sNT}, 1"]
        if o[1] == 0:
            l += [f"s_cmp_eq_u32 s{sNT}, 0", "s_cbranch_scc1 LM_drain0"]
        else:
            l += [f"s_cmp_lg_u32 s{sNT}, 0", "s_cbranch_scc1 LM_loop"]
        for x in l:
            A("    " + x); loop_lines.append(x)
    else:
        A("    " + txt[k]); loop_lines.append(txt[k]); k += 1
def drain(par):
    l = [S("s_waitcnt lgkmcnt(0)"), seg(1, 0), seg(1, 1), csm(1, 0), csm(1, 1), S("s_nop 9")]
    pv, pd, pm = post_ops(par)
    return l + pv + pd + [S("s_waitcnt lgkmcnt(0)")] + pm
emit(drain(1))
A("    s_branch LM_tiles_done")
A("LM_drain0:")
emit(drain(0))
A("LM_tiles_done:")
errs = lint(out[fill_start:out.index("LM_loop:")] + loop_lines + loop_lines + [o[1] for o in drain(1)], "loop")
half = loop_lines.index("s_cbranch_scc1 LM_drain0") + 1
errs += lint(loop_lines[:half] + [o[1] for o in drain(0)], "drain0")
for e in errs:
    print("LINT", e)
nv = sum(1 for l in loop_lines if l.startswith("v_") and not l.startswith("v_mfma"))
print("loop: instrs", len(loop_lines), "valu", nv, "per tile", nv / 2)

A("    s_waitcnt vmcnt(0) lgkmcnt(0)")
A(f"    s_add_u32 s{sBASE}, s{sBASE}, {CAP}")
A(f"    s_cmp_ge_u32 s{sBASE}, s{sT}")
A("    s_cbranch_scc1 LM_epi")
A("    s_barrier")
lane_consts()
A("    s_branch LM_round")
A("LM_epi:")
STAMP()
epi_start = len(out)
eE32, eHH, eH16, eL16, eNODE, eSTO, ePOFF, eT = SO, SO + 1, SO + 2, SO + 3, SO + 4, SO + 5, SO + 6, SO + 7
HD = TRM
def whf(q, tp):
    return WSF + 4 * (2 * q + tp)
A(f"    v_and_b32 v{eE32}, 31, v0")
A(f"    v_bfe_u32 v{eHH}, v0, 5, 1")
A(f"    v_lshlrev_b32 v{eH16}, 4, v{eHH}")
A(f"    v_and_b32 v{eL16}, 63, v0")
A(f"    v_lshlrev_b32 v{eL16}, 4, v{eL16}")
A(f"    v_add_u32 v{eNODE}, s{sNODE}, v{eE32}")
A(f"    s_mov_b32 s5, {WF_OFF + 20*1024}")
for f in (8, 9, 10, 11, 12, 13, 14, 15, 0, 1, 2, 3, 4, 5, 6, 7):
    if f % 4 == 0:
        A(f"    v_add_u32 v{eT}, {(f//4)*4096}, v{eL16}")
    A(f"    buffer_load_dwordx4 {vr(WSF+4*f,4)}, v{eT}, s[{S_WS}:{S_WS+3}], s5 offen offset:{(f%4)*1024}")
A(f"    v_lshl_add_u32 v{eT}, v{eNODE}, 7, v{eH16}")
for s in range(4):
    A(f"    buffer_load_dwordx4 {vr(HB+4*s,4)}, v{eT}, s[{S_H}:{S_H+3}], 0 offen offset:{32*s}")
A(f"    v_lshlrev_b32 v{eSTO}, 7, v{eNODE}")
A(f"    v_lshl_add_u32 v{eSTO}, v{eHH}, 3, v{eSTO}")
for t in range(2):
    for q in range(4):
        A(f"    buffer_load_dwordx2 {vr(HD+8*t+2*q,2)}, v{eSTO}, s[{S_H}:{S_H+3}], 0 offen offset:{64*t+16*q}")
for r in range(32):
    A(f"    v_mul_f32 v{SEG+r}, s{sLN2}, v{SEG+r}")
for j in range(16):
    A(f"    v_cvt_pk_bf16_f32 v{PK+j}, v{SEG+2*j}, v{SEG+2*j+1}")
A("    s_mov_b64 exec, 0x01ffffff")
A(f"    v_lshl_add_u32 v{eT}, v{eE32}, 4, s{sPAB}")
A(f"    ds_read_b96 {vr(TMP+4,3)}, v{eT}")
A(f"    v_mul_u32_u24 v{ePOFF}, 6, v{eNODE}")
A(f"    v_add_u32 v{ePOFF}, {N*128}, v{ePOFF}")
A("    s_waitcnt lgkmcnt(0)")
A(f"    v_cvt_pk_bf16_f32 v{CS}, v{PAC}, v{PAC+1}")
A(f"    v_cvt_pk_bf16_f32 v{CS+1}, v{PAC+2}, v{PAC+2}")
A(f"    v_lshlrev_b32 v{TMP}, 16, v{CS}")
A(f"    v_and_b32 v{TMP+1}, s{sHI}, v{CS}")
A(f"    v_lshlrev_b32 v{TMP+2}, 16, v{CS+1}")
for c in range(3):
    A(f"    v_add_f32 v{TMP+c}, v{TMP+c}, v{TMP+4+c}")
for c in range(3):
    A(f"    v_cvt_pk_bf16_f32 v{CS+c}, v{TMP+c}, v{TMP+c}")
for c in range(3):
    A(f"    buffer_store_short v{CS+c}, v{ePOFF}, s[{S_OUT}:{S_OUT+3}], 0 offen offset:{2*c}")
A("    s_mov_b64 exec, -1")
A(f"    s_waitcnt vmcnt({8 + 4 + 8 + 3})")
for tp in range(2):
    for i, q in enumerate((4, 5, 6, 7)):
        c = "0" if i == 0 else vr(ACC+16*tp,16)
        A(f"    v_mfma_f32_32x32x16_bf16 {vr(ACC+16*tp,16)}, {vr(whf(q,tp),4)}, {vr(PK+4*(q-4),4)}, {c}")
A(f"    s_waitcnt vmcnt({8 + 3})")
for tp in range(2):
    for q in range(4):
        A(f"    v_mfma_f32_32x32x16_bf16 {vr(ACC+16*tp,16)}, {vr(whf(q,tp),4)}, {vr(HB+4*q,4)}, {vr(ACC+16*tp,16)}")
A("    s_nop 15")
for j in range(16):
    a0, a1 = ACC + 2 * j, ACC + 2 * j + 1
    A(f"    v_cvt_pk_bf16_f32 v{TMP}, v{a0}, v{a1}")
    A(f"    v_lshlrev_b32 v{a0}, 16, v{TMP}")
    A(f"    v_and_b32 v{a1}, s{sHI}, v{TMP}")
A(f"    s_mov_b32 s3, 0x{LOG2E | 0x80000000:08x}")
for g0 in range(0, 32, 8):
    rs = range(g0, g0 + 8)
    for r in rs: A(f"    v_mul_f32 v{TMP+r%8}, s3, v{ACC+r}")
    for r in rs: A(f"    v_exp_f32 v{TMP+r%8}, v{TMP+r%8}")
    for r in rs: A(f"    v_add_f32 v{TMP+r%8}, 1.0, v{TMP+r%8}")
    for r in rs: A(f"    v_rcp_f32 v{TMP+r%8}, v{TMP+r%8}")
    for r in rs: A(f"    v_mul_f32 v{ACC+r}, v{ACC+r}, v{TMP+r%8}")
A("    s_waitcnt vmcnt(3)")
for j in range(16):
    a0, a1 = ACC + 2 * j, ACC + 2 * j + 1
    hv = HD + j
    A(f"    v_cvt_pk_bf16_f32 v{TMP}, v{a0}, v{a1}")
    A(f"    v_lshlrev_b32 v{a0}, 16, v{TMP}")
    A(f"    v_and_b32 v{a1}, s{sHI}, v{TMP}")
    A(f"    v_lshlrev_b32 v{TMP+1}, 16, v{hv}")
    A(f"    v_and_b32 v{TMP+2}, s{sHI}, v{hv}")
    A(f"    v_add_f32 v{a0}, v{a0}, v{TMP+1}")
    A(f"    v_add_f32 v{a1}, v{a1}, v{TMP+2}")
    A(f"    v_cvt_pk_bf16_f32 v{PK+j}, v{a0}, v{a1}")
A(f"    s_mov_b64 exec, s[{sM25}:{sM25+1}]")
for t in range(2):
    for q in range(4):
        A(f"    buffer_store_dwordx2 {vr(PK+8*t+2*q,2)}, v{eSTO}, s[{S_OUT}:{S_OUT+3}], 0 offen offset:{64*t+16*q}")
for e in lint(out[epi_start:], "epi"):
    print("LINT", e)
if PROF:
    A("    s_mov_b64 exec, -1")
    prof_dump("LP", "LM_end", sW, 82, _stamp[0])
A("LM_end:")
A("    s_endpgm")

A('.section .rodata,"a"')
for name, nv in (("egnn_sort_kernel", 88), ("egnn_main_kernel", 256)):
    A(".p2align 6")
    A(f".amdhsa_kernel {name}")
    A(f"  .amdhsa_next_free_vgpr {nv}")
    A("  .amdhsa_next_free_sgpr 100")
    A(f"  .amdhsa_accum_offset {nv}")
    A("  .amdhsa_group_segment_fixed_size 0")
    A("  .amdhsa_kernarg_size 88")
    A("  .amdhsa_user_sgpr_count 2")
    A("  .amdhsa_user_sgpr_kernarg_segment_ptr 1")
    A("  .amdhsa_system_sgpr_workgroup_id_x 1")
    A(".end_amdhsa_kernel")

path = sys.argv[1] if len(sys.argv) > 1 else f"cdna_kernels/{NAME}.s"
open(path, "w").write("\n".join(out) + "\n")
print("wrote", path, len(out), "lines; sort lds", SORT_LDS, "main lds", MAIN_LDS, "vgprs", NVGPR)
```

```python
import sys, os
sys.path.insert(0, os.path.dirname(os.path.abspath(__file__)))
from lint import lint
PROF = int(os.environ.get("PROF", "0"))
MB = int(os.environ.get("MB", "0"))
EANT = os.environ.get("EANT", "")
BAL = int(os.environ.get("BAL", "1"))

NAME = "gather_scatter__cheap_equivariant_egnn__graph"
N = 50000
E = 800000
G = 250
GW = 4
C = 3200
NBK = 250
BN = 200
FBN = 25
REC_OFF = 0
TBL_OFF = E * 8
WF_OFF = TBL_OFF + 256 * 8192
P4_OFF = WF_OFF + 40 * 1024
WS_USED = P4_OFF + N * 16
LOG2E = 0xbfb8aa3b
LN2 = 0xbf317218
PADNB = 30

out = []
def A(s=""):
    out.append(s)

_stamp = [0]
def STAMP(lvl=1):
    if PROF != lvl and lvl != 0:
        return
    if not PROF:
        return
    i = _stamp[0]; _stamp[0] += 1
    assert i < 7
    A(f"    s_memtime s[{82+2*i}:{83+2*i}]")
_sst = [0]
def SSTAMP():
    if not PROF:
        return
    i = _sst[0]; _sst[0] += 1
    assert i < 7
    A(f"    s_memtime s[{46+2*i}:{47+2*i}]")

def srd(base, lo, hi, nbytes, stride=0):
    A(f"    s_mov_b32 s{base}, s{lo}")
    A(f"    s_and_b32 s{base+1}, s{hi}, 0xffff")
    if stride:
        A(f"    s_or_b32 s{base+1}, s{base+1}, {stride << 16}")
    A(f"    s_mov_b32 s{base+2}, {nbytes}")
    A(f"    s_mov_b32 s{base+3}, 0x00020000")

def vr(a, n):
    return f"v[{a}:{a+n-1}]"

def wave_scan(x):
    for sh in (1, 2, 4, 8):
        A("    s_nop 1")
        A(f"    v_add_u32_dpp v{x}, v{x}, v{x} row_shr:{sh} row_mask:0xf bank_mask:0xf bound_ctrl:0")
    A("    s_nop 1")
    A(f"    v_add_u32_dpp v{x}, v{x}, v{x} row_bcast:15 row_mask:0xa bank_mask:0xf")
    A("    s_nop 1")
    A(f"    v_add_u32_dpp v{x}, v{x}, v{x} row_bcast:31 row_mask:0xc bank_mask:0xf")
    A("    s_nop 1")

def prof_dump(lbl, endlbl, wreg, base, n):
    A("    s_waitcnt vmcnt(0)")
    A(f"    s_memtime s[{base+2*n}:{base+2*n+1}]")
    A("    s_load_dwordx2 s[64:65], s[0:1], 72")
    A("    s_waitcnt lgkmcnt(0)")
    srd(68, 64, 65, 256)
    A("    s_mov_b32 s72, 0")
    A("    s_cmp_eq_u32 s2, 0")
    A(f"    s_cbranch_scc1 {lbl}_a")
    A("    s_mov_b32 s72, 2")
    A("    s_cmp_eq_u32 s2, 137")
    A(f"    s_cbranch_scc0 {endlbl}")
    A(f"{lbl}_a:")
    A(f"    s_cmp_eq_u32 s{wreg}, 0")
    A(f"    s_cbranch_scc1 {lbl}_b")
    A("    s_add_u32 s72, s72, 1")
    A(f"    s_cmp_eq_u32 s{wreg}, 7")
    A(f"    s_cbranch_scc0 {endlbl}")
    A(f"{lbl}_b:")
    A("    s_lshl_b32 s72, s72, 5")
    A("    s_mov_b64 exec, 1")
    A("    v_mov_b32 v1, s72")
    for i in range(1, n + 1):
        A(f"    s_sub_u32 s73, s{base+2*i}, s{base}")
        A(f"    v_mov_b32 v2, s73")
        A(f"    buffer_store_dword v2, v1, s[68:71], 0 offen offset:{4*i}")

S_HIST = 0
S_OFF = 8192
S_WT = 16384
S_STAGE = 16384 + 64
SORT_LDS = S_STAGE + C * 8
CAP = 512
ST_SZ = 5120
L_ID = 0
ID_RS = 80
L_PA = L_ID + 32 * ID_RS
L_Z = L_PA + 8 * 512
L_PRG = L_Z + 1024
L_W0 = L_PRG + 64
L_W1 = L_W0 + 8 * CAP * 4
L_MS = L_W1 + 8 * CAP * 4
MS_RS = 136
MS_W = 32 * MS_RS
L_ST = L_MS + 8 * MS_W
assert L_PRG % 32 == 0
assert L_ST % 16 == 0 and L_PA % 16 == 0 and L_ID % 16 == 0
L_TB = L_ST
L_WF = L_ST + 8192
MAIN_LDS = L_ST + 16 * ST_SZ
assert MAIN_LDS <= 163840, MAIN_LDS

A(f"; @launch kernel=egnn_sort_kernel grid=({G+GW},1,1) block=(640,1,1) lds={SORT_LDS}")
A(f"; @launch kernel=egnn_main_kernel grid=({NBK},1,1) block=(512,1,1) lds={MAIN_LDS}")
A('.amdgcn_target "amdgcn-amd-amdhsa--gfx950"')
A(".text")

A(".globl egnn_sort_kernel")
A(".p2align 8")
A(".type egnn_sort_kernel,@function")
A("egnn_sort_kernel:")
A(f"    s_cmp_ge_u32 s2, {G+GW}")
A("    s_cbranch_scc1 LS_end")
A(f"    s_cmp_ge_u32 s2, {G}")
A("    s_cbranch_scc1 LS_weights")
SSTAMP()
A("    s_load_dwordx2 s[4:5], s[0:1], 8      ; pos")
A("    s_load_dwordx4 s[8:11], s[0:1], 24    ; src, dst")
A("    s_load_dwordx2 s[12:13], s[0:1], 80   ; ws")
A("    v_lshlrev_b32 v1, 4, v0")
for j in range(4):
    A(f"    v_mov_b32 v{4+j}, 0")
A("    v_cmp_gt_u32 vcc, 512, v0")
A("    s_and_saveexec_b64 s[14:15], vcc")
A(f"    ds_write_b128 v1, v[4:7] offset:{S_HIST}")
A("    s_mov_b64 exec, s[14:15]")
A("    v_lshlrev_b32 v1, 2, v0")
A(f"    s_mul_i32 s3, s2, {C * 4}")
A("    v_add_u32 v1, s3, v1")
SL = 5
for k in range(1, SL):
    A(f"    s_mov_b32 s{35+k}, {k*2560}")
A(f"    s_mul_i32 s3, s2, {BN}")
A("    v_add_u32 v44, s3, v0                ; node")
A("    v_mul_u32_u24 v45, 6, v44")
A("    s_waitcnt lgkmcnt(0)")
SSTAMP()
srd(24, 10, 11, E * 4)
srd(20, 8, 9, E * 4)
for k in range(SL):
    so = "0" if k == 0 else f"s{35+k}"
    A(f"    buffer_load_dword v{10+k}, v1, s[24:27], {so} offen")
    A(f"    buffer_load_dword v{15+k}, v1, s[20:23], {so} offen")
srd(16, 4, 5, N * 6)
srd(28, 12, 13, WS_USED)
for c in range(3):
    A(f"    buffer_load_ushort v{40+c}, v45, s[16:19], 0 offen offset:{2*c}")
A("    s_barrier")
A("    s_mov_b32 s14, 83887")
A("    v_mov_b32 v3, 1")
A(f"    s_mul_i32 s3, s2, {C}")
A("    v_add_u32 v46, s3, v0")
for k in range(SL):
    A(f"    s_waitcnt vmcnt({3 + 2*(SL-1-k)})")
    d, s = 10 + k, 15 + k
    A(f"    v_mul_u32_u24 v4, s14, v{d}")
    A(f"    v_lshrrev_b32 v4, 21, v4             ; key = dst/25")
    A(f"    v_lshlrev_b32 v{20+k}, 2, v4")
    A(f"    ds_add_rtn_u32 v{30+k}, v{20+k}, v3 offset:{S_HIST}")
    A(f"    v_mul_u32_u24 v5, {FBN}, v4")
    A(f"    v_sub_u32 v7, v{d}, v5               ; nb")
    A(f"    v_lshl_or_b32 v{50+2*k}, v{s}, 7, v7   ; w0")
    A(f"    v_add_u32 v8, {k*640}, v46")
    A(f"    v_lshlrev_b32 v{51+2*k}, 5, v8         ; w1")
A("    s_waitcnt lgkmcnt(0)")
A("    s_barrier")
SSTAMP()
A("    v_lshrrev_b32 v81, 6, v0")
A("    v_lshlrev_b32 v2, 4, v0")
A("    v_readfirstlane_b32 s6, v81          ; wave")
A("    s_cmp_ge_u32 s6, 8")
A("    s_cbranch_scc1 LS_noscan1")
A(f"    ds_read_b128 v[4:7], v2 offset:{S_HIST}")
A("    s_waitcnt lgkmcnt(0)")
A("    v_add_u32 v8, v4, v5")
A("    v_add_u32 v9, v8, v6")
A("    v_add_u32 v70, v9, v7                ; total")
A("    v_mov_b32 v71, v70")
wave_scan(71)
A("    v_readlane_b32 s7, v71, 63")
A("    v_lshlrev_b32 v81, 2, v81")
A("    v_mov_b32 v72, s7")
A(f"    ds_write_b32 v81, v72 offset:{S_WT}")
A("    s_waitcnt lgkmcnt(0)")
A("LS_noscan1:")
A("    s_barrier")
A("    s_cmp_ge_u32 s6, 8")
A("    s_cbranch_scc1 LS_noscan")
A("    v_mov_b32 v81, 0")
A(f"    ds_read_b128 v[72:75], v81 offset:{S_WT}")
A(f"    ds_read_b128 v[76:79], v81 offset:{S_WT+16}")
A("    v_sub_u32 v71, v71, v70            ; exclusive")
A("    s_waitcnt lgkmcnt(0)")
for j in range(7):
    A(f"    s_cmp_gt_u32 s6, {j}")
    A(f"    s_cselect_b32 s7, -1, 0")
    A(f"    v_and_b32 v{72+j}, s7, v{72+j}")
    A(f"    v_add_u32 v71, v71, v{72+j}")
A("    v_mov_b32 v72, v71")
A("    v_add_u32 v73, v71, v4")
A("    v_add_u32 v74, v71, v8")
A("    v_add_u32 v75, v71, v9")
A(f"    ds_write_b128 v2, v[72:75] offset:{S_OFF}")
A("    v_lshl_or_b32 v76, v4, 16, v72")
A("    v_lshl_or_b32 v77, v5, 16, v73")
A("    v_lshl_or_b32 v78, v6, 16, v74")
A("    v_lshl_or_b32 v79, v7, 16, v75")
A("    s_lshl_b32 s3, s2, 5")
A(f"    s_add_u32 s3, s3, {TBL_OFF}")
A("    v_lshrrev_b32 v80, 1, v0")
A("    v_lshlrev_b32 v80, 13, v80")
A("    v_and_b32 v81, 1, v0")
A("    v_lshl_add_u32 v80, v81, 4, v80")
A("    buffer_store_dwordx4 v[76:79], v80, s[28:31], s3 offen")
A("    s_waitcnt lgkmcnt(0)")
A("LS_noscan:")
A("    s_barrier")
for k in range(SL):
    A(f"    ds_read_b32 v{35+k}, v{20+k} offset:{S_OFF}")
SSTAMP()
A("    s_waitcnt lgkmcnt(0)")
for k in range(SL):
    A(f"    v_add_u32 v2, v{35+k}, v{30+k}")
    A(f"    v_lshlrev_b32 v2, 3, v2")
    A(f"    ds_write_b64 v2, v[{50+2*k}:{51+2*k}] offset:{S_STAGE}")
A("    s_waitcnt vmcnt(0)")
A("    v_lshlrev_b32 v40, 16, v40")
A("    v_lshlrev_b32 v41, 16, v41")
A("    v_lshlrev_b32 v42, 16, v42")
A("    v_mov_b32 v43, 0")
A("    v_lshlrev_b32 v44, 4, v44")
A(f"    v_add_u32 v44, {P4_OFF}, v44")
A(f"    v_cmp_gt_u32 vcc, {BN}, v0")
A("    s_and_saveexec_b64 s[14:15], vcc")
A("    s_cbranch_execz LS_nop4")
A("    buffer_store_dwordx4 v[40:43], v44, s[28:31], 0 offen")
A("LS_nop4:")
A("    s_mov_b64 exec, s[14:15]")
A("    s_waitcnt lgkmcnt(0)")
A("    s_barrier")
SSTAMP()
A("    v_lshlrev_b32 v1, 3, v0")
for k in range(SL):
    A(f"    ds_read_b64 v[{50+2*k}:{51+2*k}], v1 offset:{S_STAGE + k*5120}")
A(f"    s_mul_i32 s3, s2, {C*8}")
A("    v_add_u32 v2, s3, v1")
for k in range(1, SL):
    A(f"    s_mov_b32 s{35+k}, {k*5120}")
for k in range(SL):
    A(f"    s_waitcnt lgkmcnt({SL-1-k})")
    so = "0" if k == 0 else f"s{35+k}"
    A(f"    buffer_store_dwordx2 v[{50+2*k}:{51+2*k}], v2, s[28:31], {so} offen")
if PROF:
    A("    v_lshrrev_b32 v1, 6, v0")
    A("    s_nop 0")
    A("    v_readfirstlane_b32 s74, v1")
    prof_dump("LQ", "LS_end", 74, 46, _sst[0])
A("    s_branch LS_end")
A("LS_weights:")
A("    s_load_dwordx2 s[4:5], s[0:1], 40     ; w_e")
A("    s_load_dwordx2 s[6:7], s[0:1], 56     ; w_h")
A("    s_load_dwordx2 s[12:13], s[0:1], 80   ; ws")
A("    v_lshrrev_b32 v1, 6, v0")
A("    s_nop 0")
A("    v_readfirstlane_b32 s3, v1")
A(f"    s_sub_u32 s8, s2, {G}")
A("    s_mul_i32 s8, s8, 10")
A("    s_add_u32 s8, s8, s3")
A("    s_cmp_ge_u32 s8, 36")
A("    s_cbranch_scc1 LS_end")
A("    s_waitcnt lgkmcnt(0)")
srd(16, 4, 5, 145 * 128)
srd(20, 6, 7, 128 * 128)
srd(28, 12, 13, WS_USED)
A("    s_and_b32 s14, s8, 1")
A("    s_lshr_b32 s15, s8, 1                  ; ks / q")
A("    s_mov_b32 s10, 8")
A("    s_mov_b32 s11, 4")
A("    s_mov_b32 s24, 1.0")
A("    s_cmp_ge_u32 s8, 20")
A("    s_cbranch_scc1 LS_wh")
A("    s_lshl_b32 s9, s15, 4")
A("    s_cmp_ge_u32 s15, 8")
A("    s_cselect_b32 s9, 129, s9")
A("    s_cmp_ge_u32 s15, 4")
A(f"    s_cselect_b32 s24, 0x{LOG2E:08x}, s24")
A("    s_branch LS_wgo")
A("LS_wh:")
A("    s_sub_u32 s15, s15, 10")
A("    s_lshl_b32 s9, s15, 4")
A("    s_cmp_ge_u32 s15, 4")
A("    s_cselect_b32 s10, 4, 8")
A("    s_cselect_b32 s11, 8, 4")
A("    s_mov_b32 s16, s20")
A("    s_mov_b32 s17, s21")
A("    s_mov_b32 s18, s22")
A("LS_wgo:")
A("    v_and_b32 v1, 31, v0")
A("    v_bfe_u32 v2, v0, 5, 1")
A("    v_mul_u32_u24 v2, s10, v2")
A("    v_add_u32 v2, s9, v2")
A("    v_lshlrev_b32 v2, 7, v2")
A("    v_lshl_add_u32 v2, v1, 1, v2")
A("    s_lshl_b32 s3, s14, 6")
A("    v_add_u32 v2, s3, v2")
A("    s_lshl_b32 s3, s11, 7")
A("    v_add_u32 v3, s3, v2                   ; j=4")
for j in range(4):
    A(f"    buffer_load_ushort v{10+j}, v2, s[16:19], 0 offen offset:{128*j}")
for j in range(4):
    A(f"    buffer_load_ushort v{14+j}, v3, s[16:19], 0 offen offset:{128*j}")
A("    s_waitcnt vmcnt(0)")
for j in range(8):
    A(f"    v_lshlrev_b32 v{10+j}, 16, v{10+j}")
    A(f"    v_mul_f32 v{10+j}, s24, v{10+j}")
for j in range(4):
    A(f"    v_cvt_pk_bf16_f32 v{20+j}, v{10+2*j}, v{11+2*j}")
A("    v_and_b32 v1, 63, v0")
A("    v_lshlrev_b32 v1, 4, v1")
A("    s_lshl_b32 s3, s8, 10")
A(f"    s_add_u32 s3, s3, {WF_OFF}")
A("    v_add_u32 v1, s3, v1")
A("    buffer_store_dwordx4 v[20:23], v1, s[28:31], 0 offen")
A("LS_end:")
A("    s_endpgm")

S_H, S_EA, S_WS, S_P4, S_WE, S_WX, S_OUT = 8, 12, 16, 20, 24, 28, 32
sW, sT, sBASE, sCNT, sLB, sNT, sNODE, sSTG = 40, 41, 42, 43, 44, 45, 46, 47
sHIGH = 50
sM25 = 52
sHI = 54
sAM = 55
sLN2 = 56
sP4O = 57
sIDRS = 58
sPAB = 59
sONE2 = 60
sPGW, sPGR, sPGP = 62, 63, 76

_next = [1]
def alloc(n, align=1):
    while _next[0] % align:
        _next[0] += 1
    r = _next[0]; _next[0] += n
    return r
WSF = alloc(32, 4)
WAE = alloc(8, 4)
ATF = alloc(16, 4)
WX = alloc(16, 4)
ACC = alloc(32, 4)
SEG = alloc(32, 4)
HB = alloc(16, 4)
EA = alloc(4, 4)
SO = alloc(8, 4)
PK = alloc(16, 4)
TRM = alloc(8, 4)
TRS = alloc(8, 4)
CS = alloc(4, 4)
TMP = alloc(8, 4)
W0D = alloc(4, 4)
PAC = alloc(4, 4)
PS0 = alloc(3, 2); vW0E = alloc(1)
PS1 = alloc(3, 2); vNB = alloc(1)
PD = alloc(3, 2); vSA = alloc(1)
PS = (PS0, PS1)
DX = (alloc(3), alloc(3))
vW1P = alloc(1); vW0E3 = alloc(1)
vSWZ = (alloc(1), alloc(1))
vEAO = alloc(1)
vHBA = [alloc(1) for _ in range(4)]
vEAR, vIDB, vSWL, vMWL, vTRL = [alloc(1) for _ in range(5)]
assert _next[0] <= 256, _next[0]
vTRP, vL0E, vL0D = 1, 2, 3
vL1P, vONE, vZERO, vMASK = [alloc(1) for _ in range(4)]
assert _next[0] <= 256, _next[0]
NVGPR = _next[0]
def wsf(s, t): return WSF + (2 * s + t) * 4
def atf(u, t): return ATF + (2 * u + t) * 4
X = PK
assert W0D + 4 - PK == 48

A(".globl egnn_main_kernel")
A(".p2align 8")
A(".type egnn_main_kernel,@function")
A("egnn_main_kernel:")
A(f"    s_cmp_ge_u32 s2, {NBK}")
A("    s_cbranch_scc1 LM_end")
STAMP(0)
A("    s_load_dwordx2 s[80:81], s[0:1], 80    ; ws")
A("    s_load_dwordx2 s[64:65], s[0:1], 0     ; h")
A("    s_load_dwordx2 s[66:67], s[0:1], 16    ; e_attr")
A("    s_load_dwordx4 s[72:75], s[0:1], 40    ; w_e, w_x")
A("    s_load_dwordx2 s[78:79], s[0:1], 64    ; out")
xLANE, xE32, xHH, xH16, xL16, xT4 = X + 40, X + 41, X + 42, X + 43, X + 44, X + 45
def lane_consts():
    A(f"    v_and_b32 v{xLANE}, 63, v0")
    A(f"    v_and_b32 v{xE32}, 31, v0")
    A(f"    v_bfe_u32 v{xHH}, v0, 5, 1")
    A(f"    v_lshlrev_b32 v{xH16}, 4, v{xHH}")
    A(f"    v_lshlrev_b32 v{xL16}, 4, v{xLANE}")
    A(f"    v_lshlrev_b32 v{xT4}, 2, v0")
lane_consts()
A(f"    v_lshrrev_b32 v{X}, 6, v0")
A(f"    s_mov_b32 s{sHIGH}, 0")
A(f"    v_readfirstlane_b32 s{sW}, v{X}")
A(f"    s_mov_b32 s{sHIGH+1}, -1")
A(f"    s_mov_b32 s{sM25}, 0x01ffffff")
A(f"    s_mov_b32 s{sM25+1}, 0x01ffffff")
A(f"    s_mov_b32 s{sHI}, 0xffff0000")
A(f"    s_mov_b32 s{sAM}, 0x007fff80")
A(f"    s_mov_b32 s{sLN2}, 0x{LN2:08x}")
A(f"    s_mov_b32 s{sP4O}, {P4_OFF}")
A(f"    s_mov_b32 s{sIDRS}, {ID_RS}")
A(f"    s_mov_b32 s{sONE2}, 1.0")
A(f"    s_lshl_b32 s{sPGW}, s{sW}, 2")
A(f"    s_add_u32 s{sPGW}, s{sPGW}, {L_PRG}")
A(f"    s_xor_b32 s{sPGR}, s{sPGW}, 16")
A(f"    s_mov_b32 s{sONE2+1}, 1.0")
A(f"    s_lshl_b32 s3, s2, 13")
A(f"    s_add_u32 s3, s3, {TBL_OFF}")
A(f"    v_lshrrev_b32 v{X+1}, 1, v0             ; s")
A(f"    v_and_b32 v{X+2}, 63, v{X+1}")
A(f"    v_lshrrev_b32 v{X+1}, 6, v{X+1}")
A(f"    v_lshl_add_u32 v{X+1}, v{X+2}, 2, v{X+1}  ; g")
A(f"    v_lshlrev_b32 v{X+1}, 5, v{X+1}")
A(f"    v_and_b32 v{X+2}, 1, v0")
A(f"    v_lshl_add_u32 v{X+1}, v{X+2}, 4, v{X+1}")
A(f"    s_lshl_b32 s4, s{sW}, 10")
A(f"    s_add_u32 m0, s4, {L_TB}")
A(f"    s_mov_b32 s5, {WF_OFF}")
A(f"    s_mul_i32 s{sSTG}, s{sW}, {2*ST_SZ}")
A(f"    s_add_u32 s{sSTG}, s{sSTG}, {L_ST}")
A(f"    s_mul_i32 s6, s2, {BN}")
A(f"    s_mul_i32 s4, s{sW}, {FBN}")
A(f"    s_add_u32 s{sNODE}, s6, s4")
A("    s_waitcnt lgkmcnt(0)")
STAMP(2)
srd(S_WS, 80, 81, WS_USED)
A(f"    buffer_load_dwordx4 v{X+1}, s[{S_WS}:{S_WS+3}], s3 offen lds")
A(f"    s_lshl_b32 s4, s{sW}, 10")
A(f"    s_add_u32 s5, s5, s4")
for i in range(3):
    A(f"    s_add_u32 m0, s4, {L_WF + 8192*i}")
    A(f"    s_add_u32 s3, s5, {8192*i}")
    A(f"    buffer_load_dwordx4 v{xL16}, s[{S_WS}:{S_WS+3}], s3 offen lds")
srd(S_H, 64, 65, N * 128)
srd(S_P4, 80, 81, N, stride=16)
srd(S_EA, 66, 67, E * 32)
srd(S_WE, 72, 73, 145 * 128)
srd(S_WX, 74, 75, 128)
srd(S_OUT, 78, 79, N * 128 + N * 6)
STAMP(2)
A(f"    v_add_u32 v{X}, s{sNODE}, v{xE32}")
A(f"    v_lshl_add_u32 v{X+1}, v{X}, 7, v{xH16}")
for s in range(4):
    A(f"    buffer_load_dwordx4 {vr(HB+4*s,4)}, v{X+1}, s[{S_H}:{S_H+3}], 0 offen offset:{32*s}")
A(f"    buffer_load_dwordx3 {vr(PD,3)}, v{X}, s[{S_P4}:{S_P4+3}], s{sP4O} idxen")
A(f"    v_lshlrev_b32 v{X+3}, 1, v{xE32}")
A(f"    v_add_u32 v{X+3}, {128*128}, v{X+3}")
A(f"    buffer_load_ushort v{EA}, v{X+3}, s[{S_WE}:{S_WE+3}], 0 offen")
A(f"    buffer_load_ushort v{EA+1}, v{X+3}, s[{S_WE}:{S_WE+3}], 0 offen offset:64")
A(f"    v_lshlrev_b32 v{X+3}, 3, v{xHH}")
for t in range(2):
    for q in range(4):
        A(f"    buffer_load_dwordx2 {vr(WX+8*t+2*q,2)}, v{X+3}, s[{S_WX}:{S_WX+3}], 0 offen offset:{64*t+16*q}")
NPRO = 1 + 4 + 1 + 2 + 8
STAMP(2)
A(f"    s_mul_i32 s4, s{sW}, {MS_W}")
A(f"    s_add_u32 s4, s4, {L_MS}")
A(f"    v_mul_u32_u24 v{X}, {MS_RS}, v{xE32}")
A(f"    v_add_u32 v{X}, s4, v{X}")
A(f"    v_lshl_add_u32 v{vMWL}, v{xHH}, 3, v{X}")
A(f"    v_add_u32 v{vSWL}, 64, v{X}")
A(f"    v_bfe_u32 v{X}, v{xLANE}, 2, 2")
A(f"    v_lshlrev_b32 v{X}, 2, v{X}")
A(f"    v_add_u32 v{X}, v{X}, v{xHH}")
A(f"    v_mul_u32_u24 v{X}, {2*MS_RS}, v{X}")
A(f"    v_bfe_u32 v{X+1}, v{xLANE}, 4, 1")
A(f"    v_lshl_add_u32 v{X}, v{X+1}, 5, v{X}")
A(f"    v_and_b32 v{X+1}, 3, v{xLANE}")
A(f"    v_lshl_add_u32 v{X}, v{X+1}, 3, v{X}")
A(f"    v_add_u32 v{vTRL}, s4, v{X}")
A(f"    v_bfe_u32 v{X}, v{xLANE}, 2, 2")
A(f"    v_lshlrev_b32 v{X}, 2, v{X}")
A(f"    v_add_u32 v{X}, v{X}, v{xHH}")
A(f"    v_mul_u32_u24 v{X}, {2*MS_RS}, v{X}")
A(f"    v_add_u32 v{X}, s4, v{X}")
A(f"    v_add_u32 v{X}, 128, v{X}")
A(f"    v_bfe_u32 v{X+1}, v{xLANE}, 4, 1")
A(f"    v_and_b32 v{X+2}, 3, v{xLANE}")
A(f"    v_cmp_eq_u32 vcc, v{X+1}, v{X+2}")
A(f"    v_mov_b32 v{vTRP}, {L_Z}")
A(f"    s_lshl_b32 s{sPAB}, s{sW}, 9")
A(f"    v_cndmask_b32 v{vTRP}, v{vTRP}, v{X}, vcc")
A(f"    s_add_u32 s{sPAB}, s{sPAB}, {L_PA}")
A(f"    v_add_u32 v{vIDB}, {L_ID}, v{xH16}")
A(f"    v_mov_b32 v{vONE}, 0x3f80")
A(f"    v_mov_b32 v{vZERO}, 0")
A(f"    v_mul_u32_u24 v{vMASK}, 0xffff, v{xHH}")
A(f"    v_lshlrev_b32 v{vMASK}, 16, v{vMASK}")
A(f"    v_lshrrev_b32 v{X}, 3, v{xLANE}")
A(f"    v_and_b32 v{X+1}, 7, v{xLANE}")
A(f"    v_xor_b32 v{X+1}, v{X+1}, v{X}")
A(f"    v_lshlrev_b32 v{vSWZ[0]}, 4, v{X+1}")
A(f"    v_xor_b32 v{vSWZ[1]}, 16, v{vSWZ[0]}")
A(f"    v_and_b32 v{vEAO}, 1, v{xLANE}")
A(f"    v_lshlrev_b32 v{vEAO}, 4, v{vEAO}")
A(f"    v_lshrrev_b32 v{X}, 3, v{xE32}          ; i")
A(f"    v_and_b32 v{X+1}, 7, v{xE32}            ; r")
A(f"    v_and_b32 v{X+2}, 1, v{X}")
A(f"    v_xor_b32 v{X+2}, v{X+2}, v{X+1}        ; x")
A(f"    v_xor_b32 v{X+2}, v{X+2}, v{xHH}        ; x ^ hh")
A(f"    v_lshlrev_b32 v{X+3}, 10, v{X}")
A(f"    v_lshl_add_u32 v{X+3}, v{X+1}, 7, v{X+3}")
A(f"    v_add_u32 v{X+3}, s{sSTG}, v{X+3}")
for s in range(4):
    A(f"    v_xor_b32 v{vHBA[s]}, {2*s}, v{X+2}")
    A(f"    v_lshl_add_u32 v{vHBA[s]}, v{vHBA[s]}, 4, v{X+3}")
A(f"    v_lshl_add_u32 v{vEAR}, v{xE32}, 5, v{xH16}")
A(f"    v_add_u32 v{vEAR}, s{sSTG}, v{vEAR}")
A(f"    v_add_u32 v{vEAR}, 4096, v{vEAR}")
for j in range(4):
    A(f"    v_mov_b32 v{X+8+j}, 0")
A(f"    ds_write_b128 v{xL16}, {vr(X+8,4)} offset:{L_Z}")
A(f"    v_lshl_add_u32 v{X}, v{xHH}, 5, v{vSWL}")
for j in range(4):
    A(f"    ds_write_b64 v{X}, {vr(X+8,2)} offset:{8*j}")
A("    v_cmp_gt_u32 vcc, 32, v0")
A("    s_and_saveexec_b64 s[48:49], vcc")
A(f"    v_mul_u32_u24 v{X}, {ID_RS}, v0")
for j in range(5):
    A(f"    ds_write_b128 v{X}, {vr(X+8,4)} offset:{L_ID + 16*j}")
A(f"    v_lshrrev_b32 v{X+1}, 4, v0")
A(f"    v_lshl_add_u32 v{X}, v{X+1}, 5, v{X}")
A(f"    v_bfe_u32 v{X+1}, v0, 2, 1")
A(f"    v_lshl_add_u32 v{X}, v{X+1}, 4, v{X}")
A(f"    v_bfe_u32 v{X+1}, v0, 3, 1")
A(f"    v_lshl_add_u32 v{X}, v{X+1}, 3, v{X}")
A(f"    v_and_b32 v{X+1}, 3, v0")
A(f"    v_lshl_add_u32 v{X}, v{X+1}, 1, v{X}")
A("    v_cmp_gt_u32 vcc, 31, v0")
A("    s_and_b64 exec, exec, vcc")
A(f"    ds_write_b16 v{X}, v{vONE} offset:{L_ID}")
A("    s_mov_b64 exec, s[48:49]")
T_ = X + 4
A(f"    s_lshl_b32 s3, s{sW}, 2")
A(f"    s_add_u32 s3, s3, {L_TB}")
A(f"    v_lshl_add_u32 v{X}, v{xLANE}, 5, s3")
A(f"    s_lshl_b32 s{sLB}, s{sW}, 11")
A(f"    s_mov_b32 s{sBASE}, 0")
STAMP(2)
A(f"    s_waitcnt vmcnt({NPRO-1}) lgkmcnt(0)")
STAMP(2)
A("    s_barrier")
STAMP(0)
for j in range(4):
    A(f"    ds_read_b32 v{T_+j}, v{X} offset:{2048*j}")
A("    s_waitcnt lgkmcnt(0)")
A("LM_round:")
CN, SM, PP, DL, MK = X + 8, X + 12, X + 16, X + 20, X + 24
xMKA, xI = X + 32, X + 33
A(f"    v_lshl_add_u32 v{xMKA}, v{xLANE}, 5, s{sLB}")
for j in range(4):
    A(f"    v_mov_b32 v{MK+j}, 0")
A(f"    ds_write_b128 v{xMKA}, {vr(MK,4)} offset:{L_W1}")
A(f"    ds_write_b128 v{xMKA}, {vr(MK,4)} offset:{L_W1+16}")
A(f"    v_cmp_gt_u32 vcc, 62, v{xLANE}")
A(f"    v_cmp_gt_u32 s[48:49], 63, v{xLANE}")
A("    s_nop 0")
A(f"    v_cndmask_b32 v{T_+2}, 0, v{T_+2}, vcc")
A(f"    v_cndmask_b32 v{T_+3}, 0, v{T_+3}, vcc")
A(f"    v_cndmask_b32 v{T_}, 0, v{T_}, s[48:49]")
A(f"    v_cndmask_b32 v{T_+1}, 0, v{T_+1}, s[48:49]")
for k in range(4):
    A(f"    v_lshrrev_b32 v{CN+k}, 16, v{T_+k}")
for k in range(4):
    A(f"    v_and_b32 v{T_+k}, 0xffff, v{T_+k}")
A(f"    v_add_u32 v{SM}, v{CN}, v{CN+1}")
A(f"    v_add_u32 v{SM+1}, v{SM}, v{CN+2}")
A(f"    v_add_u32 v{SM+2}, v{SM+1}, v{CN+3}")
A(f"    v_mov_b32 v{SM+3}, v{SM+2}")
wave_scan(SM + 3)
A(f"    v_readlane_b32 s{sT}, v{SM+3}, 63")
A(f"    v_sub_u32 v{PP}, v{SM+3}, v{SM+2}")
A(f"    v_add_u32 v{PP+1}, v{PP}, v{CN}")
A(f"    v_add_u32 v{PP+2}, v{PP}, v{SM}")
A(f"    v_add_u32 v{PP+3}, v{PP}, v{SM+1}")
A(f"    v_mul_u32_u24 v{SM}, {4*C}, v{xLANE}")
for k in range(4):
    A(f"    v_add_u32 v{DL+k}, v{SM}, v{T_+k}")
    A(f"    v_sub_u32 v{DL+k}, v{DL+k}, v{PP+k}")
    if k:
        A(f"    v_add_u32 v{DL+k}, {k*C}, v{DL+k}")
A(f"    s_add_u32 s3, s{sLB}, {L_W1}")
A(f"    s_add_u32 s4, s{sLB}, {L_W0}")
A(f"    v_mov_b32 v{SM+1}, s4")
for k in range(4):
    A(f"    v_subrev_u32 v{PP+k}, s{sBASE}, v{PP+k}     ; q")
    A(f"    v_add_u32 v{CN+k}, v{CN+k}, v{PP+k}         ; e")
    A(f"    v_max_i32 v{PP+k}, 0, v{PP+k}")
    A(f"    v_min_i32 v{CN+k}, {CAP}, v{CN+k}")
    A(f"    v_cmp_lt_i32 vcc, v{PP+k}, v{CN+k}")
    A(f"    v_lshl_add_u32 v{PP+k}, v{PP+k}, 2, s3")
    A("    s_nop 0")
    A(f"    v_cndmask_b32 v{PP+k}, v{SM+1}, v{PP+k}, vcc")
    A(f"    ds_write_b32 v{PP+k}, v{DL+k}")
A(f"    ds_read_b128 {vr(MK,4)}, v{xMKA} offset:{L_W1}")
A(f"    ds_read_b128 {vr(MK+4,4)}, v{xMKA} offset:{L_W1+16}")
xEM, xNEG = X + 34, X + 35
A(f"    v_lshl_add_u32 v{xI}, v{xLANE}, 3, s{sBASE}")
A(f"    v_mov_b32 v{xNEG}, -128")
A(f"    v_mov_b32 v{xEM}, 0")
A("    s_waitcnt lgkmcnt(0)")
for k in range(1, 8):
    A(f"    v_max_u32 v{MK+k}, v{MK+k}, v{MK+k-1}")
A("    s_nop 1")
A(f"    v_mov_b32_dpp v{xEM}, v{MK+7} wave_shr:1 row_mask:0xf bank_mask:0xf")
for sh in (1, 2, 4, 8):
    A("    s_nop 1")
    A(f"    v_max_u32_dpp v{xEM}, v{xEM}, v{xEM} row_shr:{sh} row_mask:0xf bank_mask:0xf bound_ctrl:0")
A("    s_nop 1")
A(f"    v_max_u32_dpp v{xEM}, v{xEM}, v{xEM} row_bcast:15 row_mask:0xa bank_mask:0xf")
A("    s_nop 1")
A(f"    v_max_u32_dpp v{xEM}, v{xEM}, v{xEM} row_bcast:31 row_mask:0xc bank_mask:0xf")
RR, W0C, W1C = X, X + 16, X + 24
NS = 8
for k in range(NS):
    A(f"    s_sub_u32 s3, s{sT}, {k}")
    A(f"    v_max_u32 v{MK+k}, v{MK+k}, v{xEM}")
    A(f"    v_cmp_gt_i32 vcc, s3, v{xI}")
    A(f"    v_add_u32 v{MK+k}, v{MK+k}, v{xI}")
    A(f"    v_lshlrev_b32 v{MK+k}, 3, v{MK+k}")
    A(f"    v_cndmask_b32 v{MK+k}, v{xNEG}, v{MK+k}, vcc")
    A(f"    buffer_load_dwordx2 {vr(RR+2*k,2)}, v{MK+k}, s[{S_WS}:{S_WS+3}], 0 offen offset:{8*k}")
A(f"    s_sub_u32 s{sCNT}, s{sT}, s{sBASE}")
A(f"    s_min_u32 s{sCNT}, s{sCNT}, {CAP}")
A(f"    s_add_u32 s3, s{sCNT}, 31")
A(f"    s_lshr_b32 s{sNT}, s3, 5               ; ntiles")
RG = W0C
A(f"    v_and_b32 v{RG}, 7, v{xE32}")
A(f"    v_lshrrev_b32 v{RG+1}, 3, v{xE32}")
A(f"    v_lshl_add_u32 v{RG}, v{RG}, 2, v{RG+1}     ; p(e)")
A(f"    v_lshl_add_u32 v{vL0E}, v{RG}, 2, s{sLB}")
A(f"    v_lshrrev_b32 v{RG}, 3, v{xLANE}")
A(f"    v_lshl_add_u32 v{vL0D}, v{RG}, 4, s{sLB}")
A(f"    v_bfe_u32 v{RG}, v{xLANE}, 1, 3            ; (l/2)%8")
A(f"    v_lshrrev_b32 v{RG+1}, 4, v{xLANE}         ; (l/2)/8")
A(f"    v_lshl_add_u32 v{RG}, v{RG}, 2, v{RG+1}")
A(f"    v_lshl_add_u32 v{vL1P}, v{RG}, 2, s{sLB}")
A(f"    s_cmp_lg_u32 s{sBASE}, 0")
A("    s_cbranch_scc1 LM_noat")
A(f"    v_add_u32 v{RG}, {L_WF}, v{xL16}")
for f in range(8):
    A(f"    ds_read_b128 {vr(ACC+4*f,4)}, v{RG} offset:{1024*f}")
for f in range(10):
    A(f"    ds_read_b128 {vr(WSF+4*f,4)}, v{RG} offset:{8192+1024*f}")
A(f"    s_waitcnt vmcnt({NS}) lgkmcnt(0)")
A("    s_barrier")
STAMP()
for t in range(2):
    for s_ in range(4):
        c = "0" if s_ == 0 else vr(SEG+16*t,16)
        A(f"    v_mfma_f32_32x32x16_bf16 {vr(SEG+16*t,16)}, {vr(HB+4*s_,4)}, {vr(ACC+4*(2*s_+t),4)}, {c}")
A(f"    v_lshl_add_u32 v{RG}, v{xE32}, 4, s{sPAB}")
A(f"    ds_write_b96 v{RG}, {vr(PD,3)}")
for j in range(4):
    A(f"    v_mov_b32 v{PAC+j}, 0")
A(f"    s_mov_b32 s48, {(1<<8)|(1<<28)}")
A(f"    s_mov_b32 s49, {(1<<8)|(1<<28)}")
for j in range(16):
    A(f"    v_cndmask_b32 v{WX+j}, 0, v{WX+j}, s[48:49]")
A(f"    s_mov_b32 s3, 0x{LOG2E:08x}")
for t in range(2):
    A(f"    v_lshlrev_b32 v{EA+t}, 16, v{EA+t}")
    A(f"    v_mul_f32 v{EA+t}, s3, v{EA+t}")
    A(f"    v_cvt_pk_bf16_f32 v{EA+t}, v{EA+t}, v{EA+t}")
for r in range(32):
    A(f"    v_mul_f32 v{SEG+r}, s3, v{SEG+r}")
for t in range(2):
    for u in range(2):
        for j in range(4):
            A(f"    v_cvt_pk_bf16_f32 v{atf(u,t)+j}, v{SEG+16*t+8*u+2*j}, v{SEG+16*t+8*u+2*j+1}")
    A(f"    v_bfi_b32 v{atf(1,t)+3}, v{vMASK}, v{EA+t}, v{atf(1,t)+3}")
for r in range(32):
    A(f"    v_mov_b32 v{SEG+r}, 0")
A("LM_noat:")
A(f"    v_mov_b32 v{xNEG}, {PADNB}")
for k in range(NS):
    A(f"    s_sub_u32 s3, s{sT}, {k}")
    A(f"    v_cmp_gt_i32 vcc, s3, v{xI}")
    A(f"    s_waitcnt vmcnt({NS-1-k})")
    A(f"    v_mov_b32 v{W1C+k}, v{RR+2*k+1}")
    A(f"    v_cndmask_b32 v{W0C+k}, v{xNEG}, v{RR+2*k}, vcc")
A(f"    ds_write_b128 v{xMKA}, {vr(W0C,4)} offset:{L_W0}")
A(f"    ds_write_b128 v{xMKA}, {vr(W0C+4,4)} offset:{L_W0+16}")
A(f"    ds_write_b128 v{xMKA}, {vr(W1C,4)} offset:{L_W1}")
A(f"    ds_write_b128 v{xMKA}, {vr(W1C+4,4)} offset:{L_W1+16}")
STAMP()
A(f"    s_cmp_eq_u32 s{sNT}, 0")
A("    s_cbranch_scc1 LM_tiles_done")

def V(t): return ('v', t, None)
def M(t): return ('m', t, None)
def DS(t, tag=None): return ('ds', t, tag)
def VM(t): return ('vm', t, None)
def S(t): return ('s', t, None)
def WL(tag): return ('wl', None, tag)
def WV(n): return ('s', f"s_waitcnt vmcnt({n})", None)

def mf(d, a, b, c0=False):
    return M(f"v_mfma_f32_32x32x16_bf16 {vr(d,16)}, {vr(a,4)}, {vr(b,4)}, {'0' if c0 else vr(d,16)}")
def chain(t):
    d = ACC + 16 * t
    l = [mf(d, wsf(s, t), HB + 4 * s, s == 0) for s in range(4)]
    l.append(mf(d, WAE + 4 * t, EA))
    l += [mf(d, atf(u, t), SO + 4 * u) for u in range(2)]
    return l
def seg(t, s):
    return mf(SEG + 16 * t, TRM + 4 * s, TRS + 4 * s)
def csm(t, u):
    c = '0' if (t == 0 and u == 0) else vr(CS, 4)
    return M(f"v_mfma_f32_16x16x32_bf16 {vr(CS,4)}, {vr(WX+8*t+4*u,4)}, {vr(PK+8*t+4*u,4)}, {c}")
def list_reads(k):
    return [DS(f"ds_read_b128 {vr(W0D,4)}, v{vL0D} offset:{L_W0 + 128*k}"),
            DS(f"ds_read_b32 v{vW1P}, v{vL1P} offset:{L_W1 + 128*k}"),
            DS(f"ds_read_b32 v{vW0E3}, v{vL0E} offset:{L_W0 + 128*k}", 'L3')]
def dma_addr():
    l = [V(f"v_and_or_b32 v{W0D+i}, v{W0D+i}, s{sAM}, v{vSWZ[i&1]}") for i in range(4)]
    l.append(V(f"v_add_u32 v{vW1P}, v{vW1P}, v{vEAO}"))
    l.append(V(f"v_bfe_u32 v{vW0E3}, v{vW0E3}, 7, 16"))
    return l
def dma_pairs(q):
    l = []
    for i in range(4):
        l.append((S(f"s_add_u32 m0, s{sSTG}, {q*ST_SZ + i*1024}"),
                  VM(f"buffer_load_dwordx4 v{W0D+i}, s[{S_H}:{S_H+3}], 0 offen lds")))
    l.append((S(f"s_add_u32 m0, s{sSTG}, {q*ST_SZ + 4096}"),
              VM(f"buffer_load_dwordx4 v{vW1P}, s[{S_EA}:{S_EA+3}], 0 offen{EANT} lds")))
    pos = [S(f"s_mov_b64 exec, s[{sHIGH}:{sHIGH+1}]"),
           VM(f"buffer_load_dwordx3 {vr(PS[q],3)}, v{vW0E3}, s[{S_P4}:{S_P4+3}], s{sP4O} idxen"),
           S("s_mov_b64 exec, -1")]
    return l, pos
def stage_reads(q):
    l = [DS(f"ds_read_b128 {vr(HB+4*s,4)}, v{vHBA[s]} offset:{q*ST_SZ}") for s in range(4)]
    l.append(DS(f"ds_read_b128 {vr(EA,4)}, v{vEAR} offset:{q*ST_SZ}"))
    return l
def nb_ops(q):
    return [V(f"v_and_b32 v{vNB}, 31, v{vW0E}"),
            V(f"v_mad_u32_u24 v{vW0E}, v{vNB}, s{sIDRS}, v{vIDB}"),
            V(f"v_lshl_add_u32 v{PD}, v{vNB}, 4, s{sPAB}")]
def so_reads(q):
    return [DS(f"ds_read_b128 {vr(SO,4)}, v{vW0E}"),
            DS(f"ds_read_b128 {vr(SO+4,4)}, v{vW0E} offset:32"),
            DS(f"ds_read_b96 {vr(PD,3)}, v{PD}", 'PD')]
def pre_ops(q):
    d = DX[q]; p = PS[q]
    return [V(f"v_sub_f32 v{PD}, v{PD}, v{p}"),
            V(f"v_sub_f32 v{PD+1}, v{PD+1}, v{p+1}"),
            V(f"v_sub_f32 v{PD+2}, v{PD+2}, v{p+2}"),
            V(f"v_cvt_pk_bf16_f32 v{PD}, v{PD}, v{PD+1}"),
            V(f"v_cvt_pk_bf16_f32 v{PD+2}, v{PD+2}, v{PD+2}"),
            V(f"v_lshlrev_b32 v{d}, 16, v{PD}"),
            V(f"v_and_b32 v{d+1}, s{sHI}, v{PD}"),
            V(f"v_lshlrev_b32 v{d+2}, 16, v{PD+2}"),
            V(f"v_mul_f32 v{PD+1}, v{d}, v{d}"),
            V(f"v_fma_f32 v{PD+1}, v{d+1}, v{d+1}, v{PD+1}"),
            V(f"v_fma_f32 v{PD+1}, v{d+2}, v{d+2}, v{PD+1}"),
            V(f"v_cvt_pk_bf16_f32 v{PD+1}, v{PD+1}, v{PD+1}"),
            V(f"v_bfi_b32 v{SO+7}, v{vMASK}, v{PD+1}, v{SO+7}")]
def post_ops(q):
    d = DX[q]
    va = [V(f"v_mul_f32 v{CS}, s{sLN2}, v{CS}"),
          V(f"v_cvt_pk_bf16_f32 v{CS}, v{CS}, v{CS}"),
          V(f"v_and_b32 v{CS}, s{sHI}, v{CS}"),
          V(f"v_mul_f32 v{d}, v{d}, v{CS}"),
          V(f"v_mul_f32 v{d+1}, v{d+1}, v{CS}"),
          V(f"v_mul_f32 v{d+2}, v{d+2}, v{CS}"),
          V(f"v_cvt_pk_bf16_f32 v{CS+2}, v{d}, v{d+1}"),
          V(f"v_cvt_pk_bf16_f32 v{CS+3}, v{d+2}, v{d+2}")]
    da = [S(f"s_mov_b64 exec, s[{sHIGH}:{sHIGH+1}]"),
          DS(f"ds_write_b64 v{vSWL}, {vr(CS+2,2)} offset:64"),
          S("s_mov_b64 exec, -1")]
    da += [DS(f"ds_read_b64_tr_b16 {vr(TRM+4*s+2*p,2)}, v{vTRP} offset:{(4*s+p)*MS_RS}", 'TRP' if (s, p) == (1, 1) else None)
           for s in range(2) for p in range(2)]
    pm = [M(f"v_mfma_f32_16x16x32_bf16 {vr(PAC,4)}, {vr(TRM+4*s,4)}, {vr(TRS+4*s,4)}, {vr(PAC,4)}") for s in range(2)]
    return va, da, pm
def m_write(t, qs):
    return [DS(f"ds_write_b64 v{vMWL}, {vr(PK+8*t+2*q,2)} offset:{16*q}") for q in qs]
def trm_reads(tag):
    l = [DS(f"ds_read_b64_tr_b16 {vr(TRM+4*s+2*p,2)}, v{vTRL} offset:{(4*s+p)*MS_RS}") for s in range(2) for p in range(2)]
    l[-1] = (l[-1][0], l[-1][1], tag)
    return l
def trs_reads():
    l = [DS(f"ds_read_b64_tr_b16 {vr(TRS+4*s+2*p,2)}, v{vTRL} offset:{(4*s+p)*MS_RS+64}") for s in range(2) for p in range(2)]
    l[-1] = (l[-1][0], l[-1][1], 'TRS')
    return l
SA_OP = V(f"v_lshl_add_u32 v{vSA}, v{vNB}, 1, v{vSWL}")

def silu_stream(t):
    a = ACC + 16 * t
    l = []
    for g in range(2):
        rs = range(8 * g, 8 * g + 8)
        l += [V(f"v_exp_f32 v{TMP+r%8}, v{a+r}") for r in rs]
        l += [V(f"v_add_f32 v{TMP+r%8}, 1.0, v{TMP+r%8}") for r in rs]
        l += [V(f"v_rcp_f32 v{TMP+r%8}, v{TMP+r%8}") for r in rs]
        l += [V(f"v_mul_f32 v{a+r}, v{a+r}, v{TMP+r%8}") for r in rs]
        l += [V(f"v_cvt_pk_bf16_f32 v{PK+8*t+4*g+j}, v{a+8*g+2*j}, v{a+8*g+2*j+1}") for j in range(4)]
    return l

def remap(p):
    g, r = divmod(p, 36)
    if r < 8: n = r
    elif r < 16: n = 8 + (r - 8) // 2
    elif r < 24: n = 12 + (r - 16)
    elif r < 32: n = 20 + (r - 24) // 2
    else: n = 24 + (r - 32)
    return 28 * g + n
def merge(main, side):
    res = []
    side = sorted(enumerate(side), key=lambda x: (x[1][0], x[0]))
    k = 0
    for i in range(len(main) + 1):
        while k < len(side) and side[k][1][0] <= i:
            ops = side[k][1][1]
            res += ops if isinstance(ops, list) else [ops]
            k += 1
        if i < len(main):
            res.append(main[i])
    assert k == len(side)
    return res

def phaseA(par):
    q = 1 - par
    ch = chain(1)
    pv, pd, pm = post_ops(q)
    nb = nb_ops(q)
    sd = [(0, DS(f"ds_read_b32 v{vW0E}, v{vL0E} offset:{L_W0 + 128*(par+1)}", 'W0E')),
          (0, ch[0]), (5, [WL('TRM1'), seg(1, 0)]), (8, ch[1]), (12, seg(1, 1)), (16, ch[2]),
          (20, csm(1, 0)), (24, ch[3]), (27, csm(1, 1)), (30, ch[4]),
          (36, m_write(0, (0, 1))), (36, ch[5]),
          (38, [WV(6)] + stage_reads(q)), (42, ch[6]),
          (39, pv[0]), (40, pv[1]), (41, pv[2]), (43, pv[3]), (44, pv[4]), (45, pv[5]), (46, pv[6]), (47, [pv[7]] + pd),
          (48, [WL('W0E'), nb[0]]), (49, nb[1]), (50, nb[2]), (51, so_reads(q)),
          (64, [WL('TRP'), pm[0]]), (67, pm[1]),
          (60, DS(f"ds_write_b16 v{vSA}, v{vONE}")),
          (72, m_write(0, (2, 3)) + trm_reads('TRM0') + trs_reads() + [DS(f"ds_write_b16 v{vSA}, v{vZERO}")])]
    if BAL:
        sd += [(2, V(f"v_mov_b32 v{W0D}, s{sNT}")), (3, V(f"v_mov_b32 v{W0D+1}, s{sPGW}")),
               (4, V(f"v_mov_b32 v{W0D+2}, s{sPGR}")),
               (6, [DS(f"ds_write_b32 v{W0D+1}, v{W0D}"), DS(f"ds_read_b32 v{W0D+3}, v{W0D+2}", 'PG')]),
               (33, [WL('PG'), V(f"v_readfirstlane_b32 s{sPGP}, v{W0D+3}")]),
               (35, [S("s_setprio 0"), S(f"s_cmp_gt_u32 s{sNT}, s{sPGP}"), S(f"s_cbranch_scc0 LM_pg{par}"),
                     S("s_setprio 1"), S(f"LM_pg{par}:")])]
    return merge(silu_stream(0), sd)

def phaseB(par):
    q = 1 - par
    ch = chain(0)
    pr = pre_ops(q)
    da = dma_addr()
    dp, dpos = dma_pairs(q)
    sd = [(0, list_reads(par + 3)),
          (31, [S(f"s_cmp_lt_u32 s{sNT}, 4"), S(f"s_cselect_b32 s{S_H+2}, 0, s{S_H+2}")]),
          (32, [S(f"s_cselect_b32 s{S_EA+2}, 0, s{S_EA+2}"), S(f"s_cselect_b32 s{S_P4+2}, 0, s{S_P4+2}")]),
          (2, [WL('PD'), pr[0]]), (3, pr[1]), (4, pr[2]), (6, pr[3]), (7, pr[4]), (9, pr[5]), (10, pr[6]),
          (11, pr[7]), (13, pr[8]), (14, pr[9]), (15, pr[10]), (17, pr[11]), (18, pr[12]),
          (4, ch[0]), (8, [WL('TRS'), seg(0, 0)]), (12, ch[1]), (16, seg(0, 1)), (20, ch[2]),
          (23, csm(0, 0)), (27, ch[3]), (30, csm(0, 1)), (33, ch[4]),
          (36, m_write(1, (0, 1))), (19, SA_OP), (39, ch[5]), (46, ch[6]),
          (21, [WL('L3'), da[0]]), (22, da[1]), (24, da[2]), (25, da[3]), (26, da[4]), (28, da[5]),
          (40, dp[0][0]), (41, dp[0][1]), (43, dp[1][0]), (44, dp[1][1]), (47, dp[2][0]), (48, dp[2][1]),
          (49, dp[3][0]), (51, dp[3][1]), (53, dp[4][0]), (54, dp[4][1]), (56, dpos),
          (72, m_write(1, (2, 3)) + trm_reads('TRM1'))]
    if par == 1 and not MB:
        sd += [(60, V(f"v_add_u32 v{vL0E}, 256, v{vL0E}")), (62, V(f"v_add_u32 v{vL0D}, 256, v{vL0D}")),
               (64, V(f"v_add_u32 v{vL1P}, 256, v{vL1P}"))]
    return merge(silu_stream(1), sd)

def resolve(body):
    n = len(body)
    res = []
    for i, op in enumerate(body):
        if op[0] != 'wl':
            res.append(op[1]); continue
        cnt = 0
        for d in range(1, n + 1):
            o = body[(i - d) % n]
            if o[0] == 'ds':
                if o[2] == op[2]:
                    break
                cnt += 1
        else:
            raise Exception("tag not found " + op[2])
        res.append(f"s_waitcnt lgkmcnt({min(cnt, 15)})")
    return res

def emit(ops):
    for o in ops:
        assert o[0] != 'wl'
        A("    " + o[1])
def emit_dma(q):
    dp, dpos = dma_pairs(q)
    for a, b in dp:
        emit([a, S("s_nop 0"), b])
    emit(dpos)

fill_start = len(out)
for k in range(2):
    emit(list_reads(k))
    A("    s_waitcnt lgkmcnt(0)")
    emit(dma_addr())
    emit_dma(k)
A(f"    ds_read_b32 v{vW0E}, v{vL0E} offset:{L_W0}")
emit(list_reads(2))
for r in list(range(TRM, TRM + 16)) + list(range(PK + 8, PK + 16)) + list(range(CS, CS + 4)) + list(range(DX[1], DX[1] + 3)):
    A(f"    v_mov_b32 v{r}, 0")
A("    s_waitcnt lgkmcnt(0)")
emit(nb_ops(0))
emit([SA_OP])
emit(dma_addr())
A("    s_waitcnt vmcnt(6)")
emit(stage_reads(0))
emit(so_reads(0))
A("    s_waitcnt lgkmcnt(0)")
emit(pre_ops(0))
emit_dma(0)
emit(chain(0))
A("    s_nop 15")
if MB:
    A(f"    s_mov_b32 s{sNT}, 400")
    STAMP()
HALF = None
body = []
marks = []
for par in range(2):
    body += phaseA(par) + phaseB(par)
    body.append(('br', par, None))
XF = os.environ.get("XF", "").split(",")
def keep(o):
    if o[0] in ('br', 'wl'): return True
    t = o[1]
    if 'nodma' in XF and o[0] == 'vm': return False
    if 'noea' in XF and o[0] == 'vm' and f"s[{S_EA}:" in t: return False
    if 'noh' in XF and o[0] == 'vm' and f"s[{S_H}:" in t: return False
    if 'nopos' in XF and o[0] == 'vm' and f"s[{S_P4}:" in t: return False
    if 'noadd' in XF and t.startswith('ds_add'): return False
    if 'nomw' in XF and t.startswith('ds_write'): return False
    if 'notrans' in XF and (t.startswith('v_exp') or t.startswith('v_rcp')): return False
    if 'novalu' in XF and o[0] == 'v': return False
    if 'nomfma' in XF and o[0] == 'm': return False
    if 'nods' in XF and o[0] == 'ds' and o[2] is None: return False
    return True
body = [o for o in body if keep(o)]
flat = [o for o in body if o[0] != 'br']
txt = resolve(flat)
A("LM_loop:")
k = 0
loop_lines = []
for o in body:
    if o[0] == 'br':
        l = [f"s_sub_u32 s{sNT}, s{sNT}, 1"]
        if o[1] == 0:
            l += [f"s_cmp_eq_u32 s{sNT}, 0", "s_cbranch_scc1 LM_drain0"]
        else:
            l += [f"s_cmp_lg_u32 s{sNT}, 0", "s_cbranch_scc1 LM_loop"]
        for x in l:
            A("    " + x); loop_lines.append(x)
    else:
        A("    " + txt[k]); loop_lines.append(txt[k]); k += 1
def drain(par):
    l = [S("s_waitcnt lgkmcnt(0)"), seg(1, 0), seg(1, 1), csm(1, 0), csm(1, 1), S("s_nop 9")]
    pv, pd, pm = post_ops(par)
    return l + pv + pd + [S("s_waitcnt lgkmcnt(0)")] + pm
emit(drain(1))
A("    s_branch LM_tiles_done")
A("LM_drain0:")
emit(drain(0))
A("LM_tiles_done:")
A(f"    s_mov_b32 s{S_H+2}, {N*128}")
A(f"    s_mov_b32 s{S_EA+2}, {E*32}")
A(f"    s_mov_b32 s{S_P4+2}, {N}")
errs = lint(out[fill_start:out.index("LM_loop:")] + loop_lines + loop_lines + [o[1] for o in drain(1)], "loop")
half = loop_lines.index("s_cbranch_scc1 LM_drain0") + 1
errs += lint(loop_lines[:half] + [o[1] for o in drain(0)], "drain0")
for e in errs:
    print("LINT", e)
nv = sum(1 for l in loop_lines if l.startswith("v_") and not l.startswith("v_mfma"))
print("loop: instrs", len(loop_lines), "valu", nv, "per tile", nv / 2)

A("    s_waitcnt vmcnt(0) lgkmcnt(0)")
A(f"    s_add_u32 s{sBASE}, s{sBASE}, {CAP}")
A(f"    s_cmp_ge_u32 s{sBASE}, s{sT}")
A("    s_cbranch_scc1 LM_epi")
lane_consts()
A(f"    s_lshl_b32 s3, s2, 13")
A(f"    s_lshl_b32 s4, s{sW}, 2")
A(f"    s_add_u32 s3, s3, s4")
A(f"    s_add_u32 s3, s3, {TBL_OFF}")
A(f"    v_lshlrev_b32 v{X}, 7, v{xLANE}")
for j in range(4):
    A(f"    buffer_load_dword v{T_+j}, v{X}, s[{S_WS}:{S_WS+3}], s3 offen offset:{32*j}")
A("    s_waitcnt vmcnt(0)")
A("    s_branch LM_round")
A("LM_epi:")
STAMP()
epi_start = len(out)
eE32, eHH, eH16, eL16, eNODE, eSTO, ePOFF, eT = SO, SO + 1, SO + 2, SO + 3, SO + 4, SO + 5, SO + 6, SO + 7
HD = TRM
def whf(q, tp):
    return WSF + 4 * (2 * q + tp)
A(f"    v_and_b32 v{eE32}, 31, v0")
A(f"    v_bfe_u32 v{eHH}, v0, 5, 1")
A(f"    v_lshlrev_b32 v{eH16}, 4, v{eHH}")
A(f"    v_and_b32 v{eL16}, 63, v0")
A(f"    v_lshlrev_b32 v{eL16}, 4, v{eL16}")
A(f"    v_add_u32 v{eNODE}, s{sNODE}, v{eE32}")
A(f"    s_mov_b32 s5, {WF_OFF + 20*1024}")
for f in (8, 9, 10, 11, 12, 13, 14, 15, 0, 1, 2, 3, 4, 5, 6, 7):
    if f % 4 == 0:
        A(f"    v_add_u32 v{eT}, {(f//4)*4096}, v{eL16}")
    A(f"    buffer_load_dwordx4 {vr(WSF+4*f,4)}, v{eT}, s[{S_WS}:{S_WS+3}], s5 offen offset:{(f%4)*1024}")
A(f"    v_lshl_add_u32 v{eT}, v{eNODE}, 7, v{eH16}")
for s in range(4):
    A(f"    buffer_load_dwordx4 {vr(HB+4*s,4)}, v{eT}, s[{S_H}:{S_H+3}], 0 offen offset:{32*s}")
A(f"    v_lshlrev_b32 v{eSTO}, 7, v{eNODE}")
A(f"    v_lshl_add_u32 v{eSTO}, v{eHH}, 3, v{eSTO}")
for t in range(2):
    for q in range(4):
        A(f"    buffer_load_dwordx2 {vr(HD+8*t+2*q,2)}, v{eSTO}, s[{S_H}:{S_H+3}], 0 offen offset:{64*t+16*q}")
for r in range(32):
    A(f"    v_mul_f32 v{SEG+r}, s{sLN2}, v{SEG+r}")
for j in range(16):
    A(f"    v_cvt_pk_bf16_f32 v{PK+j}, v{SEG+2*j}, v{SEG+2*j+1}")
A("    s_mov_b64 exec, 0x01ffffff")
A(f"    v_lshl_add_u32 v{eT}, v{eE32}, 4, s{sPAB}")
A(f"    ds_read_b96 {vr(TMP+4,3)}, v{eT}")
A(f"    v_mul_u32_u24 v{ePOFF}, 6, v{eNODE}")
A(f"    v_add_u32 v{ePOFF}, {N*128}, v{ePOFF}")
A("    s_waitcnt lgkmcnt(0)")
A(f"    v_cvt_pk_bf16_f32 v{CS}, v{PAC}, v{PAC+1}")
A(f"    v_cvt_pk_bf16_f32 v{CS+1}, v{PAC+2}, v{PAC+2}")
A(f"    v_lshlrev_b32 v{TMP}, 16, v{CS}")
A(f"    v_and_b32 v{TMP+1}, s{sHI}, v{CS}")
A(f"    v_lshlrev_b32 v{TMP+2}, 16, v{CS+1}")
for c in range(3):
    A(f"    v_add_f32 v{TMP+c}, v{TMP+c}, v{TMP+4+c}")
for c in range(3):
    A(f"    v_cvt_pk_bf16_f32 v{CS+c}, v{TMP+c}, v{TMP+c}")
for c in range(3):
    A(f"    buffer_store_short v{CS+c}, v{ePOFF}, s[{S_OUT}:{S_OUT+3}], 0 offen offset:{2*c}")
A("    s_mov_b64 exec, -1")
A(f"    s_waitcnt vmcnt({8 + 4 + 8 + 3})")
for tp in range(2):
    for i, q in enumerate((4, 5, 6, 7)):
        c = "0" if i == 0 else vr(ACC+16*tp,16)
        A(f"    v_mfma_f32_32x32x16_bf16 {vr(ACC+16*tp,16)}, {vr(whf(q,tp),4)}, {vr(PK+4*(q-4),4)}, {c}")
A(f"    s_waitcnt vmcnt({8 + 3})")
for tp in range(2):
    for q in range(4):
        A(f"    v_mfma_f32_32x32x16_bf16 {vr(ACC+16*tp,16)}, {vr(whf(q,tp),4)}, {vr(HB+4*q,4)}, {vr(ACC+16*tp,16)}")
A("    s_nop 15")
for j in range(16):
    a0, a1 = ACC + 2 * j, ACC + 2 * j + 1
    A(f"    v_cvt_pk_bf16_f32 v{TMP}, v{a0}, v{a1}")
    A(f"    v_lshlrev_b32 v{a0}, 16, v{TMP}")
    A(f"    v_and_b32 v{a1}, s{sHI}, v{TMP}")
A(f"    s_mov_b32 s3, 0x{LOG2E:08x}")
for g0 in range(0, 32, 8):
    rs = range(g0, g0 + 8)
    for r in rs: A(f"    v_mul_f32 v{TMP+r%8}, s3, v{ACC+r}")
    for r in rs: A(f"    v_exp_f32 v{TMP+r%8}, v{TMP+r%8}")
    for r in rs: A(f"    v_add_f32 v{TMP+r%8}, 1.0, v{TMP+r%8}")
    for r in rs: A(f"    v_rcp_f32 v{TMP+r%8}, v{TMP+r%8}")
    for r in rs: A(f"    v_mul_f32 v{ACC+r}, v{ACC+r}, v{TMP+r%8}")
A("    s_waitcnt vmcnt(3)")
for j in range(16):
    a0, a1 = ACC + 2 * j, ACC + 2 * j + 1
    hv = HD + j
    A(f"    v_cvt_pk_bf16_f32 v{TMP}, v{a0}, v{a1}")
    A(f"    v_lshlrev_b32 v{a0}, 16, v{TMP}")
    A(f"    v_and_b32 v{a1}, s{sHI}, v{TMP}")
    A(f"    v_lshlrev_b32 v{TMP+1}, 16, v{hv}")
    A(f"    v_and_b32 v{TMP+2}, s{sHI}, v{hv}")
    A(f"    v_add_f32 v{a0}, v{a0}, v{TMP+1}")
    A(f"    v_add_f32 v{a1}, v{a1}, v{TMP+2}")
    A(f"    v_cvt_pk_bf16_f32 v{PK+j}, v{a0}, v{a1}")
A(f"    s_mov_b64 exec, s[{sM25}:{sM25+1}]")
for t in range(2):
    for q in range(4):
        A(f"    buffer_store_dwordx2 {vr(PK+8*t+2*q,2)}, v{eSTO}, s[{S_OUT}:{S_OUT+3}], 0 offen offset:{64*t+16*q}")
for e in lint(out[epi_start:], "epi"):
    print("LINT", e)
if PROF:
    A("    s_mov_b64 exec, -1")
    prof_dump("LP", "LM_end", sW, 82, _stamp[0])
A("LM_end:")
A("    s_endpgm")

A('.section .rodata,"a"')
for name, nv in (("egnn_sort_kernel", 88), ("egnn_main_kernel", 256)):
    A(".p2align 6")
    A(f".amdhsa_kernel {name}")
    A(f"  .amdhsa_next_free_vgpr {nv}")
    A("  .amdhsa_next_free_sgpr 100")
    A(f"  .amdhsa_accum_offset {nv}")
    A("  .amdhsa_group_segment_fixed_size 0")
    A("  .amdhsa_kernarg_size 88")
    A("  .amdhsa_user_sgpr_count 2")
    A("  .amdhsa_user_sgpr_kernarg_segment_ptr 1")
    A("  .amdhsa_system_sgpr_workgroup_id_x 1")
    A(".end_amdhsa_kernel")

path = sys.argv[1] if len(sys.argv) > 1 else f"cdna_kernels/{NAME}.s"
open(path, "w").write("\n".join(out) + "\n")
print("wrote", path, len(out), "lines; sort lds", SORT_LDS, "main lds", MAIN_LDS, "vgprs", NVGPR)
```

```python
import sys, os
sys.path.insert(0, os.path.dirname(os.path.abspath(__file__)))
from lint import lint
PROF = int(os.environ.get("PROF", "0"))
MB = int(os.environ.get("MB", "0"))
EANT = os.environ.get("EANT", "")
BAL = int(os.environ.get("BAL", "1"))
PH = int(os.environ.get("PH", "1"))
F16 = int(os.environ.get("F16", "1"))
MT = "f16" if F16 else "bf16"
CVT = "v_cvt_pk_f16_f32" if F16 else "v_cvt_pk_bf16_f32"
PF = int(os.environ.get("PF", "0"))
PFN = int(os.environ.get("PFN", "25000"))
TH = int(os.environ.get("TH", "25000"))

NAME = "gather_scatter__cheap_equivariant_egnn__graph"
N = 50000
E = 800000
G = 250
GW = 4
C = 3200
NBK = 250
BN = 200
FBN = 25
REC_OFF = 0
TBL_OFF = E * 8
WF_OFF = TBL_OFF + 256 * 8192
P4_OFF = WF_OFF + 40 * 1024
WS_USED = P4_OFF + N * 16
LOG2E = 0xbfb8aa3b
LN2 = 0xbf317218
PADNB = 30

out = []
def A(s=""):
    out.append(s)

_stamp = [0]
def STAMP(lvl=1):
    if PROF != lvl and lvl != 0:
        return
    if not PROF:
        return
    i = _stamp[0]; _stamp[0] += 1
    assert i < 7
    A(f"    s_memtime s[{82+2*i}:{83+2*i}]")
_sst = [0]
def SSTAMP():
    if not PROF:
        return
    i = _sst[0]; _sst[0] += 1
    assert i < 7
    A(f"    s_memtime s[{46+2*i}:{47+2*i}]")

def srd(base, lo, hi, nbytes, stride=0):
    A(f"    s_mov_b32 s{base}, s{lo}")
    A(f"    s_and_b32 s{base+1}, s{hi}, 0xffff")
    if stride:
        A(f"    s_or_b32 s{base+1}, s{base+1}, {stride << 16}")
    A(f"    s_mov_b32 s{base+2}, {nbytes}")
    A(f"    s_mov_b32 s{base+3}, 0x00020000")

def vr(a, n):
    return f"v[{a}:{a+n-1}]"

def wave_scan(x):
    for sh in (1, 2, 4, 8):
        A("    s_nop 1")
        A(f"    v_add_u32_dpp v{x}, v{x}, v{x} row_shr:{sh} row_mask:0xf bank_mask:0xf bound_ctrl:0")
    A("    s_nop 1")
    A(f"    v_add_u32_dpp v{x}, v{x}, v{x} row_bcast:15 row_mask:0xa bank_mask:0xf")
    A("    s_nop 1")
    A(f"    v_add_u32_dpp v{x}, v{x}, v{x} row_bcast:31 row_mask:0xc bank_mask:0xf")
    A("    s_nop 1")

PALL = int(os.environ.get("PALL", "0"))
def prof_all(wreg, base, n, off, rt0):
    A("    s_waitcnt vmcnt(0)")
    A(f"    s_memtime s[{base+2*n}:{base+2*n+1}]")
    A(f"    s_memrealtime s[66:67]")
    A("    s_load_dwordx2 s[64:65], s[0:1], 80")
    A("    s_getreg_b32 s75, hwreg(HW_REG_HW_ID)")
    A("    s_getreg_b32 s77, hwreg(HW_REG_XCC_ID)")
    A("    s_waitcnt lgkmcnt(0)")
    srd(68, 64, 65, 256 << 20)
    A("    s_lshl_b32 s72, s2, 4")
    A(f"    s_add_u32 s72, s72, s{wreg}")
    A("    s_lshl_b32 s72, s72, 6")
    A(f"    s_add_u32 s72, s72, {off}")
    A("    s_mov_b64 exec, 1")
    A("    v_mov_b32 v1, s72")
    for i in range(1, n + 1):
        A(f"    s_sub_u32 s73, s{base+2*i}, s{base}")
        A(f"    v_mov_b32 v2, s73")
        A(f"    buffer_store_dword v2, v1, s[68:71], 0 offen offset:{4*i}")
    for j, r in enumerate((rt0, 66, 75, 77, 96)):
        A(f"    v_mov_b32 v2, s{r}")
        A(f"    buffer_store_dword v2, v1, s[68:71], 0 offen offset:{32+4*j}")
def prof_dump(lbl, endlbl, wreg, base, n):
    if PALL:
        return prof_all(wreg, base, n, (200 << 20) + (0 if lbl == "LP" else 1 << 20), 98 if lbl == "LP" else 62)
    A("    s_waitcnt vmcnt(0)")
    A(f"    s_memtime s[{base+2*n}:{base+2*n+1}]")
    A("    s_load_dwordx2 s[64:65], s[0:1], 72")
    A("    s_waitcnt lgkmcnt(0)")
    srd(68, 64, 65, 256)
    A("    s_mov_b32 s72, 0")
    A("    s_cmp_eq_u32 s2, 0")
    A(f"    s_cbranch_scc1 {lbl}_a")
    A("    s_mov_b32 s72, 2")
    A("    s_cmp_eq_u32 s2, 137")
    A(f"    s_cbranch_scc0 {endlbl}")
    A(f"{lbl}_a:")
    A(f"    s_cmp_eq_u32 s{wreg}, 0")
    A(f"    s_cbranch_scc1 {lbl}_b")
    A("    s_add_u32 s72, s72, 1")
    A(f"    s_cmp_eq_u32 s{wreg}, 7")
    A(f"    s_cbranch_scc0 {endlbl}")
    A(f"{lbl}_b:")
    A("    s_lshl_b32 s72, s72, 5")
    A("    s_mov_b64 exec, 1")
    A("    v_mov_b32 v1, s72")
    for i in range(1, n + 1):
        A(f"    s_sub_u32 s73, s{base+2*i}, s{base}")
        A(f"    v_mov_b32 v2, s73")
        A(f"    buffer_store_dword v2, v1, s[68:71], 0 offen offset:{4*i}")

S_HIST = 0
S_OFF = 8192
S_WT = 16384
S_STAGE = 16384 + 64
SORT_LDS = S_STAGE + C * 8
CAP = 512
ST_SZ = 5120
L_ID = 0
ID_RS = 80
L_PA = L_ID + 32 * ID_RS
L_Z = L_PA + 8 * 512
L_PRG = L_Z + 1024
L_W0 = L_PRG + 64
L_W1 = L_W0 + 8 * CAP * 4
L_MS = L_W1 + 8 * CAP * 4
MS_RS = 136
MS_W = 32 * MS_RS
L_ST = L_MS + 8 * MS_W
assert L_PRG % 32 == 0
assert L_ST % 16 == 0 and L_PA % 16 == 0 and L_ID % 16 == 0
L_TB = L_MS
L_WF = L_MS + 8192
assert L_WF + 24576 <= L_ST
L_RAW = L_ST
MAIN_LDS = L_ST + 16 * ST_SZ
assert MAIN_LDS <= 163840, MAIN_LDS

A(f"; @launch kernel=egnn_sort_kernel grid=({G+GW},1,1) block=(640,1,1) lds={SORT_LDS}")
A(f"; @launch kernel=egnn_main_kernel grid=({NBK},1,1) block=(512,1,1) lds={MAIN_LDS}")
A('.amdgcn_target "amdgcn-amd-amdhsa--gfx950"')
A(".text")

A(".globl egnn_sort_kernel")
A(".p2align 8")
A(".type egnn_sort_kernel,@function")
A("egnn_sort_kernel:")
A(f"    s_cmp_ge_u32 s2, {G+GW}")
A("    s_cbranch_scc1 LS_end")
A(f"    s_cmp_ge_u32 s2, {G}")
A("    s_cbranch_scc1 LS_weights")
SSTAMP()
if PALL:
    A("    s_memrealtime s[62:63]")
A("    s_load_dwordx2 s[4:5], s[0:1], 8      ; pos")
A("    s_load_dwordx4 s[8:11], s[0:1], 24    ; src, dst")
A("    s_load_dwordx2 s[12:13], s[0:1], 80   ; ws")
A("    v_lshlrev_b32 v1, 4, v0")
for j in range(4):
    A(f"    v_mov_b32 v{4+j}, 0")
A("    v_cmp_gt_u32 vcc, 512, v0")
A("    s_and_saveexec_b64 s[14:15], vcc")
A(f"    ds_write_b128 v1, v[4:7] offset:{S_HIST}")
A("    s_mov_b64 exec, s[14:15]")
A("    v_lshlrev_b32 v1, 2, v0")
A(f"    s_mul_i32 s3, s2, {C * 4}")
A("    v_add_u32 v1, s3, v1")
SL = 5
for k in range(1, SL):
    A(f"    s_mov_b32 s{35+k}, {k*2560}")
A(f"    s_mul_i32 s3, s2, {BN}")
A("    v_add_u32 v44, s3, v0                ; node")
A("    v_mul_u32_u24 v45, 6, v44")
A("    s_waitcnt lgkmcnt(0)")
SSTAMP()
srd(24, 10, 11, E * 4)
srd(20, 8, 9, E * 4)
for k in range(SL):
    so = "0" if k == 0 else f"s{35+k}"
    A(f"    buffer_load_dword v{10+k}, v1, s[24:27], {so} offen")
    A(f"    buffer_load_dword v{15+k}, v1, s[20:23], {so} offen")
srd(16, 4, 5, N * 6)
srd(28, 12, 13, WS_USED)
for c in range(3):
    A(f"    buffer_load_ushort v{40+c}, v45, s[16:19], 0 offen offset:{2*c}")
A("    s_barrier")
A("    s_mov_b32 s14, 83887")
A("    v_mov_b32 v3, 1")
A(f"    s_mul_i32 s3, s2, {C}")
A("    v_add_u32 v46, s3, v0")
for k in range(SL):
    A(f"    s_waitcnt vmcnt({3 + 2*(SL-1-k)})")
    d, s = 10 + k, 15 + k
    A(f"    v_mul_u32_u24 v4, s14, v{d}")
    A(f"    v_lshrrev_b32 v4, 21, v4             ; key = dst/25")
    A(f"    v_lshlrev_b32 v{20+k}, 2, v4")
    A(f"    ds_add_rtn_u32 v{30+k}, v{20+k}, v3 offset:{S_HIST}")
    A(f"    v_mul_u32_u24 v5, {FBN}, v4")
    A(f"    v_sub_u32 v7, v{d}, v5               ; nb")
    A(f"    v_lshl_or_b32 v{50+2*k}, v{s}, 7, v7   ; w0")
    A(f"    v_add_u32 v8, {k*640}, v46")
    A(f"    v_lshlrev_b32 v{51+2*k}, 5, v8         ; w1")
A("    s_waitcnt lgkmcnt(0)")
A("    s_barrier")
SSTAMP()
A("    v_lshrrev_b32 v81, 6, v0")
A("    v_lshlrev_b32 v2, 4, v0")
A("    v_readfirstlane_b32 s6, v81          ; wave")
A("    s_cmp_ge_u32 s6, 8")
A("    s_cbranch_scc1 LS_noscan1")
A(f"    ds_read_b128 v[4:7], v2 offset:{S_HIST}")
A("    s_waitcnt lgkmcnt(0)")
A("    v_add_u32 v8, v4, v5")
A("    v_add_u32 v9, v8, v6")
A("    v_add_u32 v70, v9, v7                ; total")
A("    v_mov_b32 v71, v70")
wave_scan(71)
A("    v_readlane_b32 s7, v71, 63")
A("    v_lshlrev_b32 v81, 2, v81")
A("    v_mov_b32 v72, s7")
A(f"    ds_write_b32 v81, v72 offset:{S_WT}")
A("    s_waitcnt lgkmcnt(0)")
A("LS_noscan1:")
A("    s_barrier")
A("    s_cmp_ge_u32 s6, 8")
A("    s_cbranch_scc1 LS_noscan")
A("    v_mov_b32 v81, 0")
A(f"    ds_read_b128 v[72:75], v81 offset:{S_WT}")
A(f"    ds_read_b128 v[76:79], v81 offset:{S_WT+16}")
A("    v_sub_u32 v71, v71, v70            ; exclusive")
A("    s_waitcnt lgkmcnt(0)")
for j in range(7):
    A(f"    s_cmp_gt_u32 s6, {j}")
    A(f"    s_cselect_b32 s7, -1, 0")
    A(f"    v_and_b32 v{72+j}, s7, v{72+j}")
    A(f"    v_add_u32 v71, v71, v{72+j}")
A("    v_mov_b32 v72, v71")
A("    v_add_u32 v73, v71, v4")
A("    v_add_u32 v74, v71, v8")
A("    v_add_u32 v75, v71, v9")
A(f"    ds_write_b128 v2, v[72:75] offset:{S_OFF}")
A("    v_lshl_or_b32 v76, v4, 16, v72")
A("    v_lshl_or_b32 v77, v5, 16, v73")
A("    v_lshl_or_b32 v78, v6, 16, v74")
A("    v_lshl_or_b32 v79, v7, 16, v75")
A("    s_and_b32 s3, s2, 3")
A("    s_lshl_b32 s3, s3, 6")
A("    s_lshr_b32 s7, s2, 2")
A("    s_add_u32 s3, s3, s7                 ; slot")
A("    s_lshl_b32 s3, s3, 5")
A(f"    s_add_u32 s3, s3, {TBL_OFF}")
A("    v_lshrrev_b32 v80, 1, v0")
A("    v_lshlrev_b32 v80, 13, v80")
A("    v_and_b32 v81, 1, v0")
A("    v_lshl_add_u32 v80, v81, 4, v80")
A("    buffer_store_dwordx4 v[76:79], v80, s[28:31], s3 offen")
A("    s_waitcnt lgkmcnt(0)")
A("LS_noscan:")
A("    s_barrier")
for k in range(SL):
    A(f"    ds_read_b32 v{35+k}, v{20+k} offset:{S_OFF}")
SSTAMP()
A("    s_waitcnt lgkmcnt(0)")
for k in range(SL):
    A(f"    v_add_u32 v2, v{35+k}, v{30+k}")
    A(f"    v_lshlrev_b32 v2, 3, v2")
    A(f"    ds_write_b64 v2, v[{50+2*k}:{51+2*k}] offset:{S_STAGE}")
A("    s_waitcnt vmcnt(0)")
A("    v_lshlrev_b32 v40, 16, v40")
A("    v_lshlrev_b32 v41, 16, v41")
A("    v_lshlrev_b32 v42, 16, v42")
A("    v_mov_b32 v43, 0")
A("    v_lshlrev_b32 v44, 4, v44")
A(f"    v_add_u32 v44, {P4_OFF}, v44")
A(f"    v_cmp_gt_u32 vcc, {BN}, v0")
A("    s_and_saveexec_b64 s[14:15], vcc")
A("    s_cbranch_execz LS_nop4")
A("    buffer_store_dwordx4 v[40:43], v44, s[28:31], 0 offen")
A("LS_nop4:")
A("    s_mov_b64 exec, s[14:15]")
A("    s_waitcnt lgkmcnt(0)")
A("    s_barrier")
SSTAMP()
A("    v_lshlrev_b32 v1, 3, v0")
for k in range(SL):
    A(f"    ds_read_b64 v[{50+2*k}:{51+2*k}], v1 offset:{S_STAGE + k*5120}")
A(f"    s_mul_i32 s3, s2, {C*8}")
A("    v_add_u32 v2, s3, v1")
for k in range(1, SL):
    A(f"    s_mov_b32 s{35+k}, {k*5120}")
for k in range(SL):
    A(f"    s_waitcnt lgkmcnt({SL-1-k})")
    so = "0" if k == 0 else f"s{35+k}"
    A(f"    buffer_store_dwordx2 v[{50+2*k}:{51+2*k}], v2, s[28:31], {so} offen")
if PROF:
    A("    v_lshrrev_b32 v1, 6, v0")
    A("    s_nop 0")
    A("    v_readfirstlane_b32 s74, v1")
    prof_dump("LQ", "LS_end", 74, 46, _sst[0])
A("    s_branch LS_end")
A("LS_weights:")
A("    s_load_dwordx2 s[4:5], s[0:1], 40     ; w_e")
A("    s_load_dwordx2 s[6:7], s[0:1], 56     ; w_h")
A("    s_load_dwordx2 s[12:13], s[0:1], 80   ; ws")
A("    v_lshrrev_b32 v1, 6, v0")
A("    s_nop 0")
A("    v_readfirstlane_b32 s3, v1")
A(f"    s_sub_u32 s8, s2, {G}")
A("    s_mul_i32 s8, s8, 10")
A("    s_add_u32 s8, s8, s3")
A("    s_cmp_ge_u32 s8, 36")
A("    s_cbranch_scc1 LS_end")
A("    s_waitcnt lgkmcnt(0)")
srd(16, 4, 5, 145 * 128)
srd(20, 6, 7, 128 * 128)
srd(28, 12, 13, WS_USED)
A("    s_and_b32 s14, s8, 1")
A("    s_lshr_b32 s15, s8, 1                  ; ks / q")
A("    s_mov_b32 s10, 8")
A("    s_mov_b32 s11, 4")
A("    s_mov_b32 s24, 1.0")
A("    s_cmp_ge_u32 s8, 20")
A("    s_cbranch_scc1 LS_wh")
A("    s_lshl_b32 s9, s15, 4")
A("    s_cmp_ge_u32 s15, 8")
A("    s_cselect_b32 s9, 129, s9")
A("    s_cmp_ge_u32 s15, 4")
A(f"    s_cselect_b32 s24, 0x{LOG2E:08x}, s24")
A("    s_branch LS_wgo")
A("LS_wh:")
A("    s_sub_u32 s15, s15, 10")
A("    s_lshl_b32 s9, s15, 4")
A("    s_cmp_ge_u32 s15, 4")
A("    s_cselect_b32 s10, 4, 8")
A("    s_cselect_b32 s11, 8, 4")
A("    s_mov_b32 s16, s20")
A("    s_mov_b32 s17, s21")
A("    s_mov_b32 s18, s22")
A("LS_wgo:")
A("    v_and_b32 v1, 31, v0")
A("    v_bfe_u32 v2, v0, 5, 1")
A("    v_mul_u32_u24 v2, s10, v2")
A("    v_add_u32 v2, s9, v2")
A("    v_lshlrev_b32 v2, 7, v2")
A("    v_lshl_add_u32 v2, v1, 1, v2")
A("    s_lshl_b32 s3, s14, 6")
A("    v_add_u32 v2, s3, v2")
A("    s_lshl_b32 s3, s11, 7")
A("    v_add_u32 v3, s3, v2                   ; j=4")
for j in range(4):
    A(f"    buffer_load_ushort v{10+j}, v2, s[16:19], 0 offen offset:{128*j}")
for j in range(4):
    A(f"    buffer_load_ushort v{14+j}, v3, s[16:19], 0 offen offset:{128*j}")
A("    s_waitcnt vmcnt(0)")
for j in range(8):
    A(f"    v_lshlrev_b32 v{10+j}, 16, v{10+j}")
    A(f"    v_mul_f32 v{10+j}, s24, v{10+j}")
for j in range(4):
    A(f"    v_cvt_pk_bf16_f32 v{20+j}, v{10+2*j}, v{11+2*j}")
A("    v_and_b32 v1, 63, v0")
A("    v_lshlrev_b32 v1, 4, v1")
A("    s_lshl_b32 s3, s8, 10")
A(f"    s_add_u32 s3, s3, {WF_OFF}")
A("    v_add_u32 v1, s3, v1")
A("    buffer_store_dwordx4 v[20:23], v1, s[28:31], 0 offen")
A("LS_end:")
A("    s_endpgm")

S_H, S_EA, S_WS, S_P4, S_WE, S_WX, S_OUT = 8, 12, 16, 20, 24, 28, 32
sW, sT, sBASE, sCNT, sLB, sNT, sNODE, sSTG = 40, 41, 42, 43, 44, 45, 46, 47
sHIGH = 50
sM25 = 52
sHI = 54
sAM = 55
sLN2 = 56
sP4O = 57
sIDRS = 58
sPAB = 59
sONE2 = 60
sPGW, sPGR, sPGP = 62, 63, 76

_next = [1]
def alloc(n, align=1):
    while _next[0] % align:
        _next[0] += 1
    r = _next[0]; _next[0] += n
    return r
WSF = alloc(32, 4)
WAE = alloc(8, 4)
ATF = alloc(16, 4)
WX = alloc(16, 4)
ACC = alloc(32, 4)
SEG = alloc(32, 4)
HB = alloc(16, 4)
EA = alloc(4, 4)
SO = alloc(8, 4)
PK = alloc(16, 4)
TRM = alloc(8, 4)
TRS = alloc(8, 4)
CS = alloc(4, 4)
TMP = alloc(8, 4)
W0D = alloc(4, 4)
PAC = alloc(4, 4)
PS0 = alloc(3, 2); vW0E = alloc(1)
PS1 = alloc(3, 2); vNB = alloc(1)
PD = alloc(3, 2); vSA = alloc(1)
PS = (PS0, PS1)
DX = (alloc(3), alloc(3))
vW1P = alloc(1); vW0E3 = alloc(1)
vSWZ = (alloc(1), alloc(1))
vEAO = alloc(1)
vHBA = [alloc(1) for _ in range(4)]
vEAR, vIDB, vSWL, vMWL, vTRL = [alloc(1) for _ in range(5)]
assert _next[0] <= 256, _next[0]
vTRP, vL0E, vL0D = 1, 2, 3
vL1P, vONE, vZERO, vMASK = [alloc(1) for _ in range(4)]
assert _next[0] <= 256, _next[0]
NVGPR = _next[0]
def wsf(s, t): return WSF + (2 * s + t) * 4
def atf(u, t): return ATF + (2 * u + t) * 4
X = PK
assert W0D + 4 - PK == 48

A(".globl egnn_main_kernel")
A(".p2align 8")
A(".type egnn_main_kernel,@function")
A("egnn_main_kernel:")
A(f"    s_cmp_ge_u32 s2, {NBK}")
A("    s_cbranch_scc1 LM_end")
STAMP(0)
if PALL:
    A("    s_memrealtime s[98:99]")
A("    s_load_dwordx2 s[80:81], s[0:1], 80    ; ws")
A("    s_load_dwordx2 s[64:65], s[0:1], 0     ; h")
A("    s_load_dwordx2 s[66:67], s[0:1], 16    ; e_attr")
A("    s_load_dwordx4 s[72:75], s[0:1], 40    ; w_e, w_x")
A("    s_load_dwordx2 s[78:79], s[0:1], 64    ; out")
xLANE, xE32, xHH, xH16, xL16, xT4 = X + 40, X + 41, X + 42, X + 43, X + 44, X + 45
def lane_consts():
    A(f"    v_and_b32 v{xLANE}, 63, v0")
    A(f"    v_and_b32 v{xE32}, 31, v0")
    A(f"    v_bfe_u32 v{xHH}, v0, 5, 1")
    A(f"    v_lshlrev_b32 v{xH16}, 4, v{xHH}")
    A(f"    v_lshlrev_b32 v{xL16}, 4, v{xLANE}")
    A(f"    v_lshlrev_b32 v{xT4}, 2, v0")
lane_consts()
A(f"    v_lshrrev_b32 v{X}, 6, v0")
A(f"    s_mov_b32 s{sHIGH}, 0")
A(f"    v_readfirstlane_b32 s{sW}, v{X}")
A(f"    s_mov_b32 s{sHIGH+1}, -1")
A(f"    s_mov_b32 s{sM25}, 0x01ffffff")
A(f"    s_mov_b32 s{sM25+1}, 0x01ffffff")
A(f"    s_mov_b32 s{sHI}, 0xffff0000")
A(f"    s_mov_b32 s{sAM}, {os.environ.get('HOTH', '0x007fff80')}")
sHOT = 61
A(f"    s_mov_b32 s{sHOT}, {os.environ.get('HOTEA', '0')}")
A(f"    s_mov_b32 s{sLN2}, 0x{LN2:08x}")
A(f"    s_mov_b32 s{sP4O}, {P4_OFF}")
A(f"    s_mov_b32 s{sIDRS}, {ID_RS}")
A(f"    s_mov_b32 s{sONE2}, 0x3c003c00")
A(f"    s_lshl_b32 s{sPGW}, s{sW}, 2")
A(f"    s_add_u32 s{sPGW}, s{sPGW}, {L_PRG}")
A(f"    s_xor_b32 s{sPGR}, s{sPGW}, 16")
A(f"    s_lshl_b32 s3, s2, 13")
A(f"    s_add_u32 s3, s3, {TBL_OFF}")
A(f"    v_lshlrev_b32 v{X+1}, 4, v0")
A(f"    s_lshl_b32 s4, s{sW}, 10")
A(f"    s_add_u32 m0, s4, {L_TB}")
A(f"    s_mov_b32 s5, {WF_OFF}")
A(f"    s_mul_i32 s{sSTG}, s{sW}, {2*ST_SZ}")
A(f"    s_add_u32 s{sSTG}, s{sSTG}, {L_ST}")
A(f"    s_mul_i32 s6, s2, {BN}")
A(f"    s_mul_i32 s4, s{sW}, {FBN}")
A(f"    s_add_u32 s{sNODE}, s6, s4")
A("    s_waitcnt lgkmcnt(0)")
STAMP(2)
srd(S_WS, 80, 81, WS_USED)
A(f"    buffer_load_dwordx4 v{X+1}, s[{S_WS}:{S_WS+3}], s3 offen lds")
A(f"    s_lshl_b32 s4, s{sW}, 10")
A(f"    s_add_u32 s5, s5, s4")
for i in range(3):
    A(f"    s_add_u32 m0, s4, {L_WF + 8192*i}")
    A(f"    s_add_u32 s3, s5, {8192*i}")
    A(f"    buffer_load_dwordx4 v{xL16}, s[{S_WS}:{S_WS+3}], s3 offen lds")
srd(S_H, 64, 65, N * 128)
NPF = 0
if PF:
    per_wg = -(-PFN // PF)
    per_w = -(-per_wg // 8)
    NPF = -(-per_w // 64)
    A(f"    s_mul_i32 s3, s2, {(1 << 20) // PF + 1}")
    A(f"    s_lshr_b32 s3, s3, 20")
    A(f"    s_mul_i32 s3, s3, {PF}")
    A(f"    s_sub_u32 s3, s2, s3                  ; slice")
    A(f"    s_mul_i32 s3, s3, {per_wg}")
    A(f"    s_mul_i32 s4, s{sW}, {per_w}")
    A(f"    s_add_u32 s3, s3, s4")
    A(f"    v_add_u32 v{X+2}, s3, v{xLANE}")
    A(f"    v_lshlrev_b32 v{X+2}, 7, v{X+2}")
    A(f"    s_mov_b32 m0, {L_W0}")
    for i in range(NPF):
        A(f"    s_mov_b32 s3, {i * 64 * 128}")
        A(f"    buffer_load_dword v{X+2}, s[{S_H}:{S_H+3}], s3 offen lds")
srd(S_P4, 80, 81, N, stride=16)
srd(S_EA, 66, 67, E * 32)
srd(S_WE, 72, 73, 145 * 128)
srd(S_WX, 74, 75, 128)
srd(S_OUT, 78, 79, N * 128 + N * 6)
STAMP(2)
def own_loads():
    A(f"    v_add_u32 v{X}, s{sNODE}, v{xE32}")
    A(f"    v_lshl_add_u32 v{X+1}, v{X}, 7, v{xH16}")
    for s in range(4):
        A(f"    buffer_load_dwordx4 {vr(HB+4*s,4)}, v{X+1}, s[{S_H}:{S_H+3}], 0 offen offset:{32*s}")
    A(f"    buffer_load_dwordx3 {vr(PD,3)}, v{X}, s[{S_P4}:{S_P4+3}], s{sP4O} idxen")
    A(f"    v_lshlrev_b32 v{X+3}, 1, v{xE32}")
    A(f"    v_add_u32 v{X+3}, {128*128}, v{X+3}")
    A(f"    buffer_load_ushort v{EA}, v{X+3}, s[{S_WE}:{S_WE+3}], 0 offen")
    A(f"    buffer_load_ushort v{EA+1}, v{X+3}, s[{S_WE}:{S_WE+3}], 0 offen offset:64")
    A(f"    v_lshlrev_b32 v{X+3}, 3, v{xHH}")
    for t in range(2):
        for q in range(4):
            A(f"    buffer_load_dwordx2 {vr(WX+8*t+2*q,2)}, v{X+3}, s[{S_WX}:{S_WX+3}], 0 offen offset:{64*t+16*q}")
NOWN = 4 + 1 + 2 + 8
STAMP(2)
A(f"    s_mul_i32 s4, s{sW}, {MS_W}")
A(f"    s_add_u32 s4, s4, {L_MS}")
A(f"    v_mul_u32_u24 v{X}, {MS_RS}, v{xE32}")
A(f"    v_add_u32 v{X}, s4, v{X}")
A(f"    v_lshl_add_u32 v{vMWL}, v{xHH}, 3, v{X}")
A(f"    v_add_u32 v{vSWL}, 64, v{X}")
A(f"    v_bfe_u32 v{X}, v{xLANE}, 2, 2")
A(f"    v_lshlrev_b32 v{X}, 2, v{X}")
A(f"    v_add_u32 v{X}, v{X}, v{xHH}")
A(f"    v_mul_u32_u24 v{X}, {2*MS_RS}, v{X}")
A(f"    v_bfe_u32 v{X+1}, v{xLANE}, 4, 1")
A(f"    v_lshl_add_u32 v{X}, v{X+1}, 5, v{X}")
A(f"    v_and_b32 v{X+1}, 3, v{xLANE}")
A(f"    v_lshl_add_u32 v{X}, v{X+1}, 3, v{X}")
A(f"    v_add_u32 v{vTRL}, s4, v{X}")
A(f"    v_bfe_u32 v{X}, v{xLANE}, 2, 2")
A(f"    v_lshlrev_b32 v{X}, 2, v{X}")
A(f"    v_add_u32 v{X}, v{X}, v{xHH}")
A(f"    v_mul_u32_u24 v{X}, {2*MS_RS}, v{X}")
A(f"    v_add_u32 v{X}, s4, v{X}")
A(f"    v_add_u32 v{X}, 128, v{X}")
A(f"    v_bfe_u32 v{X+1}, v{xLANE}, 4, 1")
A(f"    v_and_b32 v{X+2}, 3, v{xLANE}")
A(f"    v_cmp_eq_u32 vcc, v{X+1}, v{X+2}")
A(f"    v_mov_b32 v{vTRP}, {L_Z}")
A(f"    s_lshl_b32 s{sPAB}, s{sW}, 9")
A(f"    v_cndmask_b32 v{vTRP}, v{vTRP}, v{X}, vcc")
A(f"    s_add_u32 s{sPAB}, s{sPAB}, {L_PA}")
A(f"    v_add_u32 v{vIDB}, {L_ID}, v{xH16}")
A(f"    v_mov_b32 v{vONE}, 0x3f80")
A(f"    v_mov_b32 v{vZERO}, 0")
A(f"    v_mul_u32_u24 v{vMASK}, 0xffff, v{xHH}")
A(f"    v_lshlrev_b32 v{vMASK}, 16, v{vMASK}")
A(f"    v_lshrrev_b32 v{X}, 3, v{xLANE}")
A(f"    v_and_b32 v{X+1}, 7, v{xLANE}")
A(f"    v_xor_b32 v{X+1}, v{X+1}, v{X}")
A(f"    v_lshlrev_b32 v{vSWZ[0]}, 4, v{X+1}")
A(f"    v_xor_b32 v{vSWZ[1]}, 16, v{vSWZ[0]}")
A(f"    v_and_b32 v{vEAO}, 1, v{xLANE}")
A(f"    v_lshlrev_b32 v{vEAO}, 4, v{vEAO}")
A(f"    v_lshrrev_b32 v{X}, 3, v{xE32}          ; i")
A(f"    v_and_b32 v{X+1}, 7, v{xE32}            ; r")
A(f"    v_and_b32 v{X+2}, 1, v{X}")
A(f"    v_xor_b32 v{X+2}, v{X+2}, v{X+1}        ; x")
A(f"    v_xor_b32 v{X+2}, v{X+2}, v{xHH}        ; x ^ hh")
A(f"    v_lshlrev_b32 v{X+3}, 10, v{X}")
A(f"    v_lshl_add_u32 v{X+3}, v{X+1}, 7, v{X+3}")
A(f"    v_add_u32 v{X+3}, s{sSTG}, v{X+3}")
for s in range(4):
    A(f"    v_xor_b32 v{vHBA[s]}, {2*s}, v{X+2}")
    A(f"    v_lshl_add_u32 v{vHBA[s]}, v{vHBA[s]}, 4, v{X+3}")
A(f"    v_lshl_add_u32 v{vEAR}, v{xE32}, 5, v{xH16}")
A(f"    v_add_u32 v{vEAR}, s{sSTG}, v{vEAR}")
A(f"    v_add_u32 v{vEAR}, 4096, v{vEAR}")
for j in range(4):
    A(f"    v_mov_b32 v{X+8+j}, 0")
A(f"    ds_write_b128 v{xL16}, {vr(X+8,4)} offset:{L_Z}")
A("    v_cmp_gt_u32 vcc, 32, v0")
A("    s_and_saveexec_b64 s[48:49], vcc")
A(f"    v_mul_u32_u24 v{X}, {ID_RS}, v0")
for j in range(5):
    A(f"    ds_write_b128 v{X}, {vr(X+8,4)} offset:{L_ID + 16*j}")
A(f"    v_lshrrev_b32 v{X+1}, 4, v0")
A(f"    v_lshl_add_u32 v{X}, v{X+1}, 5, v{X}")
A(f"    v_bfe_u32 v{X+1}, v0, 2, 1")
A(f"    v_lshl_add_u32 v{X}, v{X+1}, 4, v{X}")
A(f"    v_bfe_u32 v{X+1}, v0, 3, 1")
A(f"    v_lshl_add_u32 v{X}, v{X+1}, 3, v{X}")
A(f"    v_and_b32 v{X+1}, 3, v0")
A(f"    v_lshl_add_u32 v{X}, v{X+1}, 1, v{X}")
A("    v_cmp_gt_u32 vcc, 31, v0")
A("    s_and_b64 exec, exec, vcc")
A(f"    ds_write_b16 v{X}, v{vONE} offset:{L_ID}")
A("    s_mov_b64 exec, s[48:49]")
OWNE = int(os.environ.get("OWNE", "0"))
if F16:
    A(f"    v_mov_b32 v{vONE}, 0x3c00")
if OWNE:
    own_loads()
T_ = X + 4
A(f"    s_lshl_b32 s3, s{sW}, 2")
A(f"    s_add_u32 s3, s3, {L_TB}")
A(f"    v_lshl_add_u32 v{X}, v{xLANE}, 5, s3")
A(f"    s_lshl_b32 s{sLB}, s{sW}, 11")
A(f"    s_mov_b32 s{sBASE}, 0")
A("    s_mov_b32 s96, 0")
sFAST = 77
F_, L_, DF, BS = SEG, SEG + 4, SEG + 8, X + 36
A(f"    v_lshrrev_b32 v{X+3}, 4, v{xLANE}")
A(f"    s_lshl_b32 s3, s{sW}, 8")
A(f"    s_add_u32 s3, s3, {L_TB}")
A(f"    v_lshl_add_u32 v{X+1}, v{X+3}, 11, s3")
A(f"    v_mul_u32_u24 v{X+2}, {C*8}, v{X+3}")
A(f"    v_and_b32 v{X+3}, 15, v{xLANE}")
A(f"    v_lshl_add_u32 v{X+2}, v{X+3}, 4, v{X+2}")
A(f"    s_mul_i32 s3, s{sW}, {32*C*8}")
A(f"    v_add_u32 v{X+2}, s3, v{X+2}")
A(f"    v_lshlrev_b32 v{X+3}, 5, v{xLANE}")
A(f"    v_add_u32 v{X+3}, {L_TB}, v{X+3}")
A(f"    s_lshl_b32 s4, s{sW}, 13")
A(f"    s_add_u32 s4, s4, {L_RAW}")
STAMP(2)
A(f"    s_waitcnt vmcnt({NOWN if OWNE else 0}) lgkmcnt(0)")
STAMP(2)
A("    s_barrier")
STAMP(0)
RMASK = int(os.environ.get("RMASK", "1"))
if not RMASK:
    for i in range(8):
        A(f"    ds_read_b32 v{DF+i}, v{X+1} offset:{32*i}")
    for j in range(4):
        A(f"    ds_read_b32 v{T_+j}, v{X} offset:{2048*j}")
    for i in range(8):
        A(f"    s_add_u32 m0, s4, {1024*i}")
        A(f"    s_mov_b32 s3, {4*C*8*i}")
        A(f"    s_waitcnt lgkmcnt({11-i})")
        A(f"    v_and_b32 v{DF+i}, 0xfffe, v{DF+i}")
        A(f"    v_lshl_add_u32 v{DF+i}, v{DF+i}, 3, v{X+2}")
        A(f"    buffer_load_dwordx4 v{DF+i}, s[{S_WS}:{S_WS+3}], s3 offen lds")
else:
    for i in range(8):
        A(f"    ds_read2_b32 v[{DF+2*i}:{DF+2*i+1}], v{X+1} offset0:{8*i} offset1:{8*i+7}")
    for j in range(4):
        A(f"    ds_read_b32 v{T_+j}, v{X} offset:{2048*j}")
    A(f"    v_and_b32 v{BS}, 15, v{xLANE}")
    A(f"    v_lshlrev_b32 v{BS}, 1, v{BS}              ; 2p")
    A(f"    v_mov_b32 v{BS+1}, -16")
    for i in range(8):
        f, l = DF + 2 * i, DF + 2 * i + 1
        A(f"    s_add_u32 m0, s4, {1024*i}")
        A(f"    s_mov_b32 s3, {4*C*8*i}")
        A(f"    s_waitcnt lgkmcnt({11-i})")
        A(f"    v_and_b32 v{f}, 0xfffe, v{f}")
        A(f"    v_add_u32_sdwa v{l}, v{l}, v{l} dst_sel:DWORD dst_unused:UNUSED_PAD src0_sel:WORD_0 src1_sel:WORD_1")
        A(f"    v_sub_u32 v{l}, v{l}, v{f}")
        A(f"    v_cmp_lt_i32 vcc, v{BS}, v{l}")
        A(f"    v_lshl_add_u32 v{f}, v{f}, 3, v{X+2}")
        A(f"    s_nop 0")
        A(f"    v_cndmask_b32 v{f}, v{BS+1}, v{f}, vcc")
        A(f"    buffer_load_dwordx4 v{f}, s[{S_WS}:{S_WS+3}], s3 offen lds")
for j in range(4):
    A(f"    ds_read2_b32 v[{F_+2*j}:{F_+2*j+1}], v{X+3} offset0:0 offset1:7")
    if j < 3:
        A(f"    v_add_u32 v{X+3}, 2048, v{X+3}")
if not OWNE:
    own_loads()
STAMP(2)
A(f"    v_cmp_gt_u32 vcc, 62, v{xLANE}")
A(f"    v_cmp_gt_u32 s[48:49], 63, v{xLANE}")
A(f"    v_lshlrev_b32 v{X}, 7, v{xLANE}")
A("    s_waitcnt lgkmcnt(0)")
for j in range(4):
    f, l = F_ + 2 * j, F_ + 2 * j + 1
    A(f"    v_and_b32 v{f}, 0xfffe, v{f}")
    A(f"    v_lshrrev_b32 v{X+1}, 16, v{l}")
    A(f"    v_and_b32 v{l}, 0xffff, v{l}")
    A(f"    v_add_u32 v{l}, v{l}, v{X+1}")
    A(f"    v_sub_u32 v{l}, v{l}, v{f}")
    A(f"    v_cndmask_b32 v{l}, 0, v{l}, {'s[48:49]' if j < 2 else 'vcc'}")
    A(f"    v_sub_u32 v{BS+j}, v{X}, v{f}")
    A(f"    v_add_u32 v{BS+j}, {32*j + L_RAW//8}, v{BS+j}")
A(f"    v_max_u32 v{F_+1}, v{F_+1}, v{F_+3}")
A(f"    v_max3_u32 v{F_+1}, v{F_+1}, v{F_+5}, v{F_+7}")
A(f"    v_cmp_lt_u32 vcc, {int(os.environ.get('WIN', '32'))}, v{F_+1}")
A(f"    s_mov_b32 s{sFAST}, {L_Z}")
A("    s_cmp_eq_u64 vcc, 0")
A("    s_cbranch_scc1 LM_round")
A("LM_slowbase:")
A(f"    s_mov_b32 s{sFAST}, -128")
A(f"    v_mul_u32_u24 v{BS}, {4*C}, v{xLANE}")
for j in range(1, 4):
    A(f"    v_add_u32 v{BS+j}, {j*C}, v{BS}")
A("LM_round:")
CN, SM, PP, DL, MK = X + 8, X + 12, X + 16, X + 20, X + 24
xMKA, xI = X + 32, X + 33
A(f"    v_lshl_add_u32 v{xMKA}, v{xLANE}, 5, s{sLB}")
for j in range(4):
    A(f"    v_mov_b32 v{MK+j}, 0")
A(f"    ds_write_b128 v{xMKA}, {vr(MK,4)} offset:{L_W1}")
A(f"    ds_write_b128 v{xMKA}, {vr(MK,4)} offset:{L_W1+16}")
A(f"    v_cmp_gt_u32 vcc, 62, v{xLANE}")
A(f"    v_cmp_gt_u32 s[48:49], 63, v{xLANE}")
A("    s_nop 0")
A(f"    v_cndmask_b32 v{T_+2}, 0, v{T_+2}, vcc")
A(f"    v_cndmask_b32 v{T_+3}, 0, v{T_+3}, vcc")
A(f"    v_cndmask_b32 v{T_}, 0, v{T_}, s[48:49]")
A(f"    v_cndmask_b32 v{T_+1}, 0, v{T_+1}, s[48:49]")
for k in range(4):
    A(f"    v_lshrrev_b32 v{CN+k}, 16, v{T_+k}")
for k in range(4):
    A(f"    v_and_b32 v{T_+k}, 0xffff, v{T_+k}")
A(f"    v_add_u32 v{SM}, v{CN}, v{CN+1}")
A(f"    v_add_u32 v{SM+1}, v{SM}, v{CN+2}")
A(f"    v_add_u32 v{SM+2}, v{SM+1}, v{CN+3}")
A(f"    v_mov_b32 v{SM+3}, v{SM+2}")
wave_scan(SM + 3)
A(f"    v_readlane_b32 s{sT}, v{SM+3}, 63")
A(f"    v_sub_u32 v{PP}, v{SM+3}, v{SM+2}")
A(f"    v_add_u32 v{PP+1}, v{PP}, v{CN}")
A(f"    v_add_u32 v{PP+2}, v{PP}, v{SM}")
A(f"    v_add_u32 v{PP+3}, v{PP}, v{SM+1}")
for k in range(4):
    A(f"    v_add_u32 v{DL+k}, v{BS+k}, v{T_+k}")
    A(f"    v_sub_u32 v{DL+k}, v{DL+k}, v{PP+k}")
A(f"    s_add_u32 s3, s{sLB}, {L_W1}")
A(f"    s_add_u32 s4, s{sLB}, {L_W0}")
A(f"    v_mov_b32 v{SM+1}, s4")
for k in range(4):
    A(f"    v_subrev_u32 v{PP+k}, s{sBASE}, v{PP+k}     ; q")
    A(f"    v_add_u32 v{CN+k}, v{CN+k}, v{PP+k}         ; e")
    A(f"    v_max_i32 v{PP+k}, 0, v{PP+k}")
    A(f"    v_min_i32 v{CN+k}, {CAP}, v{CN+k}")
    A(f"    v_cmp_lt_i32 vcc, v{PP+k}, v{CN+k}")
    A(f"    v_lshl_add_u32 v{PP+k}, v{PP+k}, 2, s3")
    A("    s_nop 0")
    A(f"    v_cndmask_b32 v{PP+k}, v{SM+1}, v{PP+k}, vcc")
    A(f"    ds_write_b32 v{PP+k}, v{DL+k}")
A(f"    ds_read_b128 {vr(MK,4)}, v{xMKA} offset:{L_W1}")
A(f"    ds_read_b128 {vr(MK+4,4)}, v{xMKA} offset:{L_W1+16}")
xEM, xNEG = X + 34, X + 35
A(f"    v_lshl_add_u32 v{xI}, v{xLANE}, 3, s{sBASE}")
A(f"    v_mov_b32 v{xNEG}, s{sFAST}")
A(f"    v_mov_b32 v{xEM}, 0")
A("    s_waitcnt lgkmcnt(0)")
for k in range(1, 8):
    A(f"    v_max_u32 v{MK+k}, v{MK+k}, v{MK+k-1}")
A("    s_nop 1")
A(f"    v_mov_b32_dpp v{xEM}, v{MK+7} wave_shr:1 row_mask:0xf bank_mask:0xf")
for sh in (1, 2, 4, 8):
    A("    s_nop 1")
    A(f"    v_max_u32_dpp v{xEM}, v{xEM}, v{xEM} row_shr:{sh} row_mask:0xf bank_mask:0xf bound_ctrl:0")
A("    s_nop 1")
A(f"    v_max_u32_dpp v{xEM}, v{xEM}, v{xEM} row_bcast:15 row_mask:0xa bank_mask:0xf")
A("    s_nop 1")
A(f"    v_max_u32_dpp v{xEM}, v{xEM}, v{xEM} row_bcast:31 row_mask:0xc bank_mask:0xf")
RR, W0C, W1C = X, X + 16, X + 24
NS = 8
for k in range(NS):
    A(f"    s_sub_u32 s3, s{sT}, {k}")
    A(f"    v_max_u32 v{MK+k}, v{MK+k}, v{xEM}")
    A(f"    v_cmp_gt_i32 vcc, s3, v{xI}")
    A(f"    v_add_u32 v{MK+k}, v{MK+k}, v{xI}")
    A(f"    v_lshlrev_b32 v{MK+k}, 3, v{MK+k}")
    A(f"    v_cndmask_b32 v{MK+k}, v{xNEG}, v{MK+k}, vcc")
A(f"    s_cmp_ge_i32 s{sFAST}, 0")
A("    s_cbranch_scc1 LM_fast1")
for k in range(NS):
    A(f"    buffer_load_dwordx2 {vr(RR+2*k,2)}, v{MK+k}, s[{S_WS}:{S_WS+3}], 0 offen offset:{8*k}")
A("LM_fast1:")
A(f"    s_sub_u32 s{sCNT}, s{sT}, s{sBASE}")
A(f"    s_min_u32 s{sCNT}, s{sCNT}, {CAP}")
A(f"    s_add_u32 s3, s{sCNT}, 31")
A(f"    s_lshr_b32 s{sNT}, s3, 5               ; ntiles")
RG = W0C
A(f"    v_and_b32 v{RG}, 7, v{xE32}")
A(f"    v_lshrrev_b32 v{RG+1}, 3, v{xE32}")
A(f"    v_lshl_add_u32 v{RG}, v{RG}, 2, v{RG+1}     ; p(e)")
A(f"    v_lshl_add_u32 v{vL0E}, v{RG}, 2, s{sLB}")
A(f"    v_lshrrev_b32 v{RG}, 3, v{xLANE}")
A(f"    v_lshl_add_u32 v{vL0D}, v{RG}, 4, s{sLB}")
A(f"    v_bfe_u32 v{RG}, v{xLANE}, 1, 3            ; (l/2)%8")
A(f"    v_lshrrev_b32 v{RG+1}, 4, v{xLANE}         ; (l/2)/8")
A(f"    v_lshl_add_u32 v{RG}, v{RG}, 2, v{RG+1}")
A(f"    v_lshl_add_u32 v{vL1P}, v{RG}, 2, s{sLB}")
A(f"    s_cmp_lg_u32 s{sBASE}, 0")
A("    s_cbranch_scc1 LM_noat")
A(f"    v_add_u32 v{RG}, {L_WF}, v{xL16}")
for f in range(8):
    A(f"    ds_read_b128 {vr(ACC+4*f,4)}, v{RG} offset:{1024*f}")
for f in range(10):
    A(f"    ds_read_b128 {vr(WSF+4*f,4)}, v{RG} offset:{8192+1024*f}")
A(f"    s_waitcnt vmcnt({0 if OWNE else NOWN}) lgkmcnt(0)")
A("    s_barrier")
STAMP()
A("LM_noat:")
A(f"    s_cmp_ge_i32 s{sFAST}, 0")
A("    s_cbranch_scc1 LM_fast2")
A("    s_waitcnt vmcnt(0)")
A("    s_branch LM_recs")
A("LM_fast2:")
for k in range(NS):
    A(f"    ds_read_b64 {vr(RR+2*k,2)}, v{MK+k} offset:{8*k}")
A("LM_recs:")
if not PH:
    A(f"    v_mov_b32 v{xNEG}, {PADNB}")
    for k in range(NS):
        A(f"    s_sub_u32 s3, s{sT}, {k}")
        A(f"    v_cmp_gt_i32 vcc, s3, v{xI}")
        A(f"    s_waitcnt lgkmcnt({NS-1-k})")
        A(f"    v_mov_b32 v{W1C+k}, v{RR+2*k+1}")
        A(f"    v_cndmask_b32 v{W0C+k}, v{xNEG}, v{RR+2*k}, vcc")
    A(f"    ds_write_b128 v{xMKA}, {vr(W0C,4)} offset:{L_W0}")
    A(f"    ds_write_b128 v{xMKA}, {vr(W0C+4,4)} offset:{L_W0+16}")
    A(f"    ds_write_b128 v{xMKA}, {vr(W1C,4)} offset:{L_W1}")
    A(f"    ds_write_b128 v{xMKA}, {vr(W1C+4,4)} offset:{L_W1+16}")
else:
    FS = (64, 66, 68, 70, 72, 74, 78, 80)
    RK = SO
    SC, BA, BB, TB = BS, BS + 1, BS + 2, BS + 3
    TA = W1C
    A(f"    v_mov_b32 v{xNEG}, 0x{0x007fff80 | PADNB:x}")
    A(f"    s_mov_b32 s4, {TH << 7}")
    A(f"    v_mov_b32 v{RK}, 0")
    for k in range(NS):
        A(f"    s_sub_u32 s3, s{sT}, {k}")
        A(f"    v_cmp_gt_i32 vcc, s3, v{xI}")
        A(f"    s_waitcnt lgkmcnt({NS-1-k})")
        A(f"    s_nop 0")
        A(f"    v_cndmask_b32 v{W0C+k}, v{xNEG}, v{RR+2*k}, vcc")
        A(f"    v_cmp_le_u32 s[{FS[k]}:{FS[k]+1}], s4, v{W0C+k}")
        A(f"    s_nop 1")
        A(f"    v_addc_co_u32 v{RK+k+1 if k < 7 else BA}, vcc, v{RK+k}, 0, s[{FS[k]}:{FS[k]+1}]")
    A(f"    v_mov_b32 v{SC}, v{BA}")
    wave_scan(SC)
    A(f"    v_readlane_b32 s3, v{SC}, 63")
    A(f"    v_sub_u32 v{SC}, v{SC}, v{BA}        ; P")
    A(f"    s_sub_u32 s3, {CAP}, s3               ; N0")
    A(f"    s_lshl_b32 s3, s3, 2")
    A(f"    s_add_u32 s5, s{sLB}, {L_W0}")
    A(f"    s_add_u32 s3, s3, s5")
    A(f"    v_lshl_add_u32 v{BA}, v{SC}, 2, s3")
    A(f"    v_lshlrev_b32 v{BB}, 3, v{xLANE}")
    A(f"    v_sub_u32 v{BB}, v{BB}, v{SC}")
    A(f"    v_lshl_add_u32 v{BB}, v{BB}, 2, s5")
    assert L_W1 - L_W0 == 64 * 256
    for k in range(NS):
        A(f"    v_lshl_add_u32 v{TA+k}, v{RK+k}, 2, v{BA}")
        A(f"    v_sub_u32 v{TB}, {k}, v{RK+k}")
        A(f"    v_lshl_add_u32 v{TB}, v{TB}, 2, v{BB}")
        A(f"    v_cndmask_b32 v{TA+k}, v{TB}, v{TA+k}, s[{FS[k]}:{FS[k]+1}]")
        A(f"    ds_write2st64_b32 v{TA+k}, v{W0C+k}, v{RR+2*k+1} offset0:0 offset1:64")
A(f"    s_cmp_lg_u32 s{sBASE}, 0")
A("    s_cbranch_scc1 LM_nob3")
A("    s_barrier")
A("LM_nob3:")
STAMP()
def at_block():
    A(f"    v_mov_b32 v{RG+2}, 0")
    A(f"    v_mov_b32 v{RG+3}, 0")
    A(f"    v_lshl_add_u32 v{RG}, v{xHH}, 5, v{vSWL}")
    for j in range(4):
        A(f"    ds_write_b64 v{RG}, {vr(RG+2,2)} offset:{8*j}")
    for t in range(2):
        for s_ in range(4):
            c = "0" if s_ == 0 else vr(SEG+16*t,16)
            A(f"    v_mfma_f32_32x32x16_bf16 {vr(SEG+16*t,16)}, {vr(HB+4*s_,4)}, {vr(ACC+4*(2*s_+t),4)}, {c}")
    A(f"    v_lshl_add_u32 v{RG}, v{xE32}, 4, s{sPAB}")
    A(f"    ds_write_b96 v{RG}, {vr(PD,3)}")
    for j in range(4):
        A(f"    v_mov_b32 v{PAC+j}, 0")
    A(f"    s_mov_b32 s48, {(1<<8)|(1<<28)}")
    A(f"    s_mov_b32 s49, {(1<<8)|(1<<28)}")
    for j in range(16):
        A(f"    v_cndmask_b32 v{WX+j}, 0, v{WX+j}, s[48:49]")
    if F16:
        for j in range(16):
            A(f"    v_lshlrev_b32 v{RG}, 16, v{WX+j}")
            A(f"    v_and_b32 v{WX+j}, s{sHI}, v{WX+j}")
            A(f"    v_cvt_pk_f16_f32 v{WX+j}, v{RG}, v{WX+j}")
    A(f"    s_mov_b32 s3, 0x{LOG2E:08x}")
    for t in range(2):
        A(f"    v_lshlrev_b32 v{EA+t}, 16, v{EA+t}")
        A(f"    v_mul_f32 v{EA+t}, s3, v{EA+t}")
        A(f"    v_cvt_pk_bf16_f32 v{EA+t}, v{EA+t}, v{EA+t}")
    for r in range(32):
        A(f"    v_mul_f32 v{SEG+r}, s3, v{SEG+r}")
    for t in range(2):
        for u in range(2):
            for j in range(4):
                A(f"    v_cvt_pk_bf16_f32 v{atf(u,t)+j}, v{SEG+16*t+8*u+2*j}, v{SEG+16*t+8*u+2*j+1}")
        A(f"    v_bfi_b32 v{atf(1,t)+3}, v{vMASK}, v{EA+t}, v{atf(1,t)+3}")
    for r in range(32):
        A(f"    v_mov_b32 v{SEG+r}, 0")


def V(t): return ('v', t, None)
def M(t): return ('m', t, None)
def DS(t, tag=None): return ('ds', t, tag)
def VM(t): return ('vm', t, None)
def S(t): return ('s', t, None)
def WL(tag): return ('wl', None, tag)
def WV(n): return ('s', f"s_waitcnt vmcnt({n})", None)

def mf(d, a, b, c0=False, ty="bf16"):
    return M(f"v_mfma_f32_32x32x16_{ty} {vr(d,16)}, {vr(a,4)}, {vr(b,4)}, {'0' if c0 else vr(d,16)}")
def chain(t):
    d = ACC + 16 * t
    l = [mf(d, wsf(s, t), HB + 4 * s, s == 0) for s in range(4)]
    l.append(mf(d, WAE + 4 * t, EA))
    l += [mf(d, atf(u, t), SO + 4 * u) for u in range(2)]
    return l
def seg(t, s):
    return mf(SEG + 16 * t, TRM + 4 * s, TRS + 4 * s, ty=MT)
def csm(t, u):
    c = '0' if (t == 0 and u == 0) else vr(CS, 4)
    return M(f"v_mfma_f32_16x16x32_{MT} {vr(CS,4)}, {vr(WX+8*t+4*u,4)}, {vr(PK+8*t+4*u,4)}, {c}")
def list_reads(k):
    return [DS(f"ds_read_b128 {vr(W0D,4)}, v{vL0D} offset:{L_W0 + 128*k}"),
            DS(f"ds_read_b32 v{vW1P}, v{vL1P} offset:{L_W1 + 128*k}"),
            DS(f"ds_read_b32 v{vW0E3}, v{vL0E} offset:{L_W0 + 128*k}", 'L3')]
def dma_addr():
    l = [V(f"v_and_or_b32 v{W0D+i}, v{W0D+i}, s{sAM}, v{vSWZ[i&1]}") for i in range(4)]
    if os.environ.get("HOTEA"):
        l.append(V(f"v_and_or_b32 v{vW1P}, v{vW1P}, s{sHOT}, v{vEAO}"))
    else:
        l.append(V(f"v_add_u32 v{vW1P}, v{vW1P}, v{vEAO}"))
    l.append(V(f"v_bfe_u32 v{vW0E3}, v{vW0E3}, 7, 16"))
    return l
def dma_pairs(q):
    l = []
    for i in range(4):
        l.append((S(f"s_add_u32 m0, s{sSTG}, {q*ST_SZ + i*1024}"),
                  VM(f"buffer_load_dwordx4 v{W0D+i}, s[{S_H}:{S_H+3}], 0 offen lds")))
    l.append((S(f"s_add_u32 m0, s{sSTG}, {q*ST_SZ + 4096}"),
              VM(f"buffer_load_dwordx4 v{vW1P}, s[{S_EA}:{S_EA+3}], 0 offen{EANT} lds")))
    pos = [S(f"s_mov_b64 exec, s[{sHIGH}:{sHIGH+1}]"),
           VM(f"buffer_load_dwordx3 {vr(PS[q],3)}, v{vW0E3}, s[{S_P4}:{S_P4+3}], s{sP4O} idxen"),
           S("s_mov_b64 exec, -1")]
    return l, pos
def stage_reads(q):
    l = [DS(f"ds_read_b128 {vr(HB+4*s,4)}, v{vHBA[s]} offset:{q*ST_SZ}") for s in range(4)]
    l.append(DS(f"ds_read_b128 {vr(EA,4)}, v{vEAR} offset:{q*ST_SZ}"))
    return l
def nb_ops(q):
    return [V(f"v_and_b32 v{vNB}, 31, v{vW0E}"),
            V(f"v_mad_u32_u24 v{vW0E}, v{vNB}, s{sIDRS}, v{vIDB}"),
            V(f"v_lshl_add_u32 v{PD}, v{vNB}, 4, s{sPAB}")]
def so_reads(q):
    return [DS(f"ds_read_b128 {vr(SO,4)}, v{vW0E}"),
            DS(f"ds_read_b128 {vr(SO+4,4)}, v{vW0E} offset:32"),
            DS(f"ds_read_b96 {vr(PD,3)}, v{PD}", 'PD')]
def pre_ops(q):
    d = DX[q]; p = PS[q]
    return [V(f"v_sub_f32 v{PD}, v{PD}, v{p}"),
            V(f"v_sub_f32 v{PD+1}, v{PD+1}, v{p+1}"),
            V(f"v_sub_f32 v{PD+2}, v{PD+2}, v{p+2}"),
            V(f"v_cvt_pk_bf16_f32 v{PD}, v{PD}, v{PD+1}"),
            V(f"v_cvt_pk_bf16_f32 v{PD+2}, v{PD+2}, v{PD+2}"),
            V(f"v_lshlrev_b32 v{d}, 16, v{PD}"),
            V(f"v_and_b32 v{d+1}, s{sHI}, v{PD}"),
            V(f"v_lshlrev_b32 v{d+2}, 16, v{PD+2}"),
            V(f"v_mul_f32 v{PD+1}, v{d}, v{d}"),
            V(f"v_fma_f32 v{PD+1}, v{d+1}, v{d+1}, v{PD+1}"),
            V(f"v_fma_f32 v{PD+1}, v{d+2}, v{d+2}, v{PD+1}"),
            V(f"v_cvt_pk_bf16_f32 v{PD+1}, v{PD+1}, v{PD+1}"),
            V(f"v_bfi_b32 v{SO+7}, v{vMASK}, v{PD+1}, v{SO+7}")]
def post_ops(q):
    d = DX[q]
    va = [V(f"v_mul_f32 v{CS}, s{sLN2}, v{CS}"),
          V(f"v_cvt_pk_bf16_f32 v{CS}, v{CS}, v{CS}"),
          V(f"v_and_b32 v{CS}, s{sHI}, v{CS}"),
          V(f"v_mul_f32 v{d}, v{d}, v{CS}"),
          V(f"v_mul_f32 v{d+1}, v{d+1}, v{CS}"),
          V(f"v_mul_f32 v{d+2}, v{d+2}, v{CS}"),
          V(f"{CVT} v{CS+2}, v{d}, v{d+1}"),
          V(f"{CVT} v{CS+3}, v{d+2}, v{d+2}")]
    da = [S(f"s_mov_b64 exec, s[{sHIGH}:{sHIGH+1}]"),
          DS(f"ds_write_b64 v{vSWL}, {vr(CS+2,2)} offset:64"),
          S("s_mov_b64 exec, -1")]
    da += [DS(f"ds_read_b64_tr_b16 {vr(TRM+4*s+2*p,2)}, v{vTRP} offset:{(4*s+p)*MS_RS}", 'TRP' if (s, p) == (1, 1) else None)
           for s in range(2) for p in range(2)]
    pm = [M(f"v_mfma_f32_16x16x32_{MT} {vr(PAC,4)}, {vr(TRM+4*s,4)}, {vr(TRS+4*s,4)}, {vr(PAC,4)}") for s in range(2)]
    return va, da, pm
def m_write(t, qs):
    return [DS(f"ds_write_b64 v{vMWL}, {vr(PK+8*t+2*q,2)} offset:{16*q}") for q in qs]
def trm_reads(tag):
    l = [DS(f"ds_read_b64_tr_b16 {vr(TRM+4*s+2*p,2)}, v{vTRL} offset:{(4*s+p)*MS_RS}") for s in range(2) for p in range(2)]
    l[-1] = (l[-1][0], l[-1][1], tag)
    return l
def trs_reads():
    l = [DS(f"ds_read_b64_tr_b16 {vr(TRS+4*s+2*p,2)}, v{vTRL} offset:{(4*s+p)*MS_RS+64}") for s in range(2) for p in range(2)]
    l[-1] = (l[-1][0], l[-1][1], 'TRS')
    return l
SA_OP = V(f"v_lshl_add_u32 v{vSA}, v{vNB}, 1, v{vSWL}")

def silu_stream(t):
    a = ACC + 16 * t
    l = []
    if F16:
        LO = "dst_sel:WORD_0 dst_unused:UNUSED_PRESERVE src0_sel:WORD_0"
        HI = "dst_sel:WORD_1 dst_unused:UNUSED_PRESERVE src0_sel:WORD_1"
        for g in range(2):
            js = range(4)
            pk = lambda j: PK + 8 * t + 4 * g + j
            tm = lambda j: TMP + 4 * g + j
            l += [V(f"v_cvt_pk_f16_f32 v{pk(j)}, v{a+8*g+2*j}, v{a+8*g+2*j+1}") for j in js]
            l += [V(f"v_exp_f16 v{tm(j)}, v{pk(j)}") for j in js]
            l += [V(f"v_exp_f16_sdwa v{tm(j)}, v{pk(j)} {HI}") for j in js]
            l += [V(f"v_pk_add_f16 v{tm(j)}, v{tm(j)}, s{sONE2}") for j in js]
            l += [V(f"v_rcp_f16_sdwa v{tm(j)}, v{tm(j)} {LO}") for j in js]
            l += [V(f"v_rcp_f16_sdwa v{tm(j)}, v{tm(j)} {HI}") for j in js]
            l += [V(f"v_pk_mul_f16 v{pk(j)}, v{pk(j)}, v{tm(j)}") for j in js]
        return l
    for g in range(2):
        rs = range(8 * g, 8 * g + 8)
        l += [V(f"v_exp_f32 v{TMP+r%8}, v{a+r}") for r in rs]
        l += [V(f"v_add_f32 v{TMP+r%8}, 1.0, v{TMP+r%8}") for r in rs]
        l += [V(f"v_rcp_f32 v{TMP+r%8}, v{TMP+r%8}") for r in rs]
        l += [V(f"v_mul_f32 v{a+r}, v{a+r}, v{TMP+r%8}") for r in rs]
        l += [V(f"v_cvt_pk_bf16_f32 v{PK+8*t+4*g+j}, v{a+8*g+2*j}, v{a+8*g+2*j+1}") for j in range(4)]
    return l

def remap(p):
    g, r = divmod(p, 36)
    if r < 8: n = r
    elif r < 16: n = 8 + (r - 8) // 2
    elif r < 24: n = 12 + (r - 16)
    elif r < 32: n = 20 + (r - 24) // 2
    else: n = 24 + (r - 32)
    return 28 * g + n
def merge(main, side):
    res = []
    if F16:
        side = [((p * 28 + 35) // 36, o) for p, o in side]
    side = sorted(enumerate(side), key=lambda x: (x[1][0], x[0]))
    k = 0
    for i in range(len(main) + 1):
        while k < len(side) and side[k][1][0] <= i:
            ops = side[k][1][1]
            res += ops if isinstance(ops, list) else [ops]
            k += 1
        if i < len(main):
            res.append(main[i])
    assert k == len(side)
    return res

VMW = int(os.environ.get("VMW", "0"))
def wv6():
    if not VMW:
        return [WV(6)]
    l = [WV(6)] if VMW == 2 else []
    l += [S("s_memtime s[64:65]"), S("s_waitcnt lgkmcnt(0)"), WV(6), S("s_memtime s[66:67]"), S("s_waitcnt lgkmcnt(0)"),
          S("s_sub_u32 s64, s66, s64"), S("s_add_u32 s96, s96, s64")]
    return l
def phaseA(par):
    q = 1 - par
    ch = chain(1)
    pv, pd, pm = post_ops(q)
    nb = nb_ops(q)
    sd = [(0, DS(f"ds_read_b32 v{vW0E}, v{vL0E} offset:{L_W0 + 128*(par+1)}", 'W0E')),
          (0, ch[0]), (5, [WL('TRM1'), seg(1, 0)]), (8, ch[1]), (12, seg(1, 1)), (16, ch[2]),
          (20, csm(1, 0)), (24, ch[3]), (27, csm(1, 1)), (30, ch[4]),
          (36, m_write(0, (0, 1))), (36, ch[5]),
          (38, wv6() + stage_reads(q)), (42, ch[6]),
          (39, pv[0]), (40, pv[1]), (41, pv[2]), (43, pv[3]), (44, pv[4]), (45, pv[5]), (46, pv[6]), (47, [pv[7]] + pd),
          (48, [WL('W0E'), nb[0]]), (49, nb[1]), (50, nb[2]), (51, so_reads(q)),
          (64, [WL('TRP'), pm[0]]), (67, pm[1]),
          (60, DS(f"ds_write_b16 v{vSA}, v{vONE}")),
          (72, m_write(0, (2, 3)) + trm_reads('TRM0') + trs_reads() + [DS(f"ds_write_b16 v{vSA}, v{vZERO}")])]
    if BAL:
        sd += [(2, V(f"v_mov_b32 v{W0D}, s{sNT}")), (3, V(f"v_mov_b32 v{W0D+1}, s{sPGW}")),
               (4, V(f"v_mov_b32 v{W0D+2}, s{sPGR}")),
               (6, [DS(f"ds_write_b32 v{W0D+1}, v{W0D}"), DS(f"ds_read_b32 v{W0D+3}, v{W0D+2}", 'PG')]),
               (33, [WL('PG'), V(f"v_readfirstlane_b32 s{sPGP}, v{W0D+3}")]),
               (35, [S("s_setprio 0"), S(f"s_cmp_gt_u32 s{sNT}, s{sPGP}"), S(f"s_cbranch_scc0 LM_pg{par}"),
                     S("s_setprio 1"), S(f"LM_pg{par}:")])]
    return merge(silu_stream(0), sd)

def phaseB(par):
    q = 1 - par
    ch = chain(0)
    pr = pre_ops(q)
    da = dma_addr()
    dp, dpos = dma_pairs(q)
    sd = [(0, list_reads(par + 3)),
          (31, [S(f"s_cmp_lt_u32 s{sNT}, 4"), S(f"s_cselect_b32 s{S_H+2}, 0, s{S_H+2}")]),
          (32, [S(f"s_cselect_b32 s{S_EA+2}, 0, s{S_EA+2}"), S(f"s_cselect_b32 s{S_P4+2}, 0, s{S_P4+2}")]),
          (2, [WL('PD'), pr[0]]), (3, pr[1]), (4, pr[2]), (6, pr[3]), (7, pr[4]), (9, pr[5]), (10, pr[6]),
          (11, pr[7]), (13, pr[8]), (14, pr[9]), (15, pr[10]), (17, pr[11]), (18, pr[12]),
          (4, ch[0]), (8, [WL('TRS'), seg(0, 0)]), (12, ch[1]), (16, seg(0, 1)), (20, ch[2]),
          (23, csm(0, 0)), (27, ch[3]), (30, csm(0, 1)), (33, ch[4]),
          (36, m_write(1, (0, 1))), (19, SA_OP), (39, ch[5]), (46, ch[6]),
          (21, [WL('L3'), da[0]]), (22, da[1]), (24, da[2]), (25, da[3]), (26, da[4]), (28, da[5]),
          (39, dp[0][0]), (41, dp[0][1]), (43, dp[1][0]), (44, dp[1][1]), (47, dp[2][0]), (48, dp[2][1]),
          (49, dp[3][0]), (51, dp[3][1]), (52, dp[4][0]), (54, dp[4][1]), (56, dpos),
          (72, m_write(1, (2, 3)) + trm_reads('TRM1'))]
    if par == 1 and not MB:
        sd += [(60, V(f"v_add_u32 v{vL0E}, 256, v{vL0E}")), (62, V(f"v_add_u32 v{vL0D}, 256, v{vL0D}")),
               (64, V(f"v_add_u32 v{vL1P}, 256, v{vL1P}"))]
    return merge(silu_stream(1), sd)

def resolve(body):
    n = len(body)
    res = []
    for i, op in enumerate(body):
        if op[0] != 'wl':
            res.append(op[1]); continue
        cnt = 0
        for d in range(1, n + 1):
            o = body[(i - d) % n]
            if o[0] == 'ds':
                if o[2] == op[2]:
                    break
                cnt += 1
        else:
            raise Exception("tag not found " + op[2])
        res.append(f"s_waitcnt lgkmcnt({min(cnt, 15)})")
    return res

def emit(ops):
    for o in ops:
        assert o[0] != 'wl'
        A("    " + o[1])
def emit_dma(q):
    dp, dpos = dma_pairs(q)
    for a, b in dp:
        emit([a, S("s_nop 0"), b])
    emit(dpos)

fill_start = len(out)
A(f"    s_cmp_lg_u32 s{sNT}, 0")
A("    s_cbranch_scc1 LM_g01")
A("    s_waitcnt vmcnt(0)")
A("    s_branch LM_nog")
A("LM_g01:")
for k in range(2):
    emit(list_reads(k))
    A("    s_waitcnt lgkmcnt(0)")
    emit(dma_addr())
    emit_dma(k)
A("LM_nog:")
A(f"    s_cmp_lg_u32 s{sBASE}, 0")
A("    s_cbranch_scc1 LM_noat2")
A("    s_waitcnt vmcnt(12)")
at_block()
A("LM_noat2:")
A(f"    s_cmp_eq_u32 s{sNT}, 0")
A("    s_cbranch_scc1 LM_tiles_done")
A(f"    ds_read_b32 v{vW0E}, v{vL0E} offset:{L_W0}")
emit(list_reads(2))
for r in list(range(TRM, TRM + 16)) + list(range(PK + 8, PK + 16)) + list(range(CS, CS + 4)) + list(range(DX[1], DX[1] + 3)):
    A(f"    v_mov_b32 v{r}, 0")
A("    s_waitcnt lgkmcnt(0)")
emit(nb_ops(0))
emit([SA_OP])
emit(dma_addr())
A("    s_waitcnt vmcnt(6)")
emit(stage_reads(0))
emit(so_reads(0))
A("    s_waitcnt lgkmcnt(0)")
emit(pre_ops(0))
emit_dma(0)
emit(chain(0))
A("    s_nop 15")
if MB:
    A(f"    s_mov_b32 s{sNT}, 400")
    STAMP()
HALF = None
body = []
marks = []
for par in range(2):
    body += phaseA(par) + phaseB(par)
    body.append(('br', par, None))
XF = os.environ.get("XF", "").split(",")
def keep(o):
    if o[0] in ('br', 'wl'): return True
    t = o[1]
    if 'nodma' in XF and o[0] == 'vm': return False
    if 'noea' in XF and o[0] == 'vm' and f"s[{S_EA}:" in t: return False
    if 'noh' in XF and o[0] == 'vm' and f"s[{S_H}:" in t: return False
    if 'nopos' in XF and o[0] == 'vm' and f"s[{S_P4}:" in t: return False
    if 'noadd' in XF and t.startswith('ds_add'): return False
    if 'nomw' in XF and t.startswith('ds_write'): return False
    if 'notrans' in XF and (t.startswith('v_exp') or t.startswith('v_rcp')): return False
    if 'novalu' in XF and o[0] == 'v': return False
    if 'nomfma' in XF and o[0] == 'm': return False
    if 'nods' in XF and o[0] == 'ds' and o[2] is None: return False
    return True
body = [o for o in body if keep(o)]
flat = [o for o in body if o[0] != 'br']
txt = resolve(flat)
A("LM_loop:")
k = 0
loop_lines = []
for o in body:
    if o[0] == 'br':
        l = [f"s_sub_u32 s{sNT}, s{sNT}, 1"]
        if o[1] == 0:
            l += [f"s_cmp_eq_u32 s{sNT}, 0", "s_cbranch_scc1 LM_drain0"]
        else:
            l += [f"s_cmp_lg_u32 s{sNT}, 0", "s_cbranch_scc1 LM_loop"]
        for x in l:
            A("    " + x); loop_lines.append(x)
    else:
        A("    " + txt[k]); loop_lines.append(txt[k]); k += 1
def drain(par):
    l = [S("s_waitcnt lgkmcnt(0)"), seg(1, 0), seg(1, 1), csm(1, 0), csm(1, 1), S("s_nop 9")]
    pv, pd, pm = post_ops(par)
    return l + pv + pd + [S("s_waitcnt lgkmcnt(0)")] + pm
emit(drain(1))
A("    s_branch LM_tiles_done")
A("LM_drain0:")
emit(drain(0))
A("LM_tiles_done:")
A(f"    s_mov_b32 s{S_H+2}, {N*128}")
A(f"    s_mov_b32 s{S_EA+2}, {E*32}")
A(f"    s_mov_b32 s{S_P4+2}, {N}")
errs = lint(out[fill_start:out.index("LM_loop:")] + loop_lines + loop_lines + [o[1] for o in drain(1)], "loop")
half = loop_lines.index("s_cbranch_scc1 LM_drain0") + 1
errs += lint(loop_lines[:half] + [o[1] for o in drain(0)], "drain0")
for e in errs:
    print("LINT", e)
nv = sum(1 for l in loop_lines if l.startswith("v_") and not l.startswith("v_mfma"))
print("loop: instrs", len(loop_lines), "valu", nv, "per tile", nv / 2)

A("    s_waitcnt vmcnt(0) lgkmcnt(0)")
A(f"    s_add_u32 s{sBASE}, s{sBASE}, {CAP}")
A(f"    s_cmp_ge_u32 s{sBASE}, s{sT}")
A("    s_cbranch_scc1 LM_epi")
lane_consts()
A(f"    s_lshl_b32 s3, s2, 13")
A(f"    s_lshl_b32 s4, s{sW}, 2")
A(f"    s_add_u32 s3, s3, s4")
A(f"    s_add_u32 s3, s3, {TBL_OFF}")
A(f"    v_lshlrev_b32 v{X}, 5, v{xLANE}")
A(f"    v_add_u32 v{X+1}, 4096, v{X}")
for j in range(4):
    A(f"    buffer_load_dword v{T_+j}, v{X+j//2}, s[{S_WS}:{S_WS+3}], s3 offen offset:{2048*(j%2)}")
A("    s_waitcnt vmcnt(0)")
A("    s_branch LM_slowbase")
A("LM_epi:")
STAMP()
epi_start = len(out)
eE32, eHH, eH16, eL16, eNODE, eSTO, ePOFF, eT = SO, SO + 1, SO + 2, SO + 3, SO + 4, SO + 5, SO + 6, SO + 7
HD = TRM
def whf(q, tp):
    return WSF + 4 * (2 * q + tp)
A(f"    v_and_b32 v{eE32}, 31, v0")
A(f"    v_bfe_u32 v{eHH}, v0, 5, 1")
A(f"    v_lshlrev_b32 v{eH16}, 4, v{eHH}")
A(f"    v_and_b32 v{eL16}, 63, v0")
A(f"    v_lshlrev_b32 v{eL16}, 4, v{eL16}")
A(f"    v_add_u32 v{eNODE}, s{sNODE}, v{eE32}")
A(f"    s_mov_b32 s5, {WF_OFF + 20*1024}")
for f in (8, 9, 10, 11, 12, 13, 14, 15, 0, 1, 2, 3, 4, 5, 6, 7):
    if f % 4 == 0:
        A(f"    v_add_u32 v{eT}, {(f//4)*4096}, v{eL16}")
    A(f"    buffer_load_dwordx4 {vr(WSF+4*f,4)}, v{eT}, s[{S_WS}:{S_WS+3}], s5 offen offset:{(f%4)*1024}")
A(f"    v_lshl_add_u32 v{eT}, v{eNODE}, 7, v{eH16}")
for s in range(4):
    A(f"    buffer_load_dwordx4 {vr(HB+4*s,4)}, v{eT}, s[{S_H}:{S_H+3}], 0 offen offset:{32*s}")
A(f"    v_lshlrev_b32 v{eSTO}, 7, v{eNODE}")
A(f"    v_lshl_add_u32 v{eSTO}, v{eHH}, 3, v{eSTO}")
for t in range(2):
    for q in range(4):
        A(f"    buffer_load_dwordx2 {vr(HD+8*t+2*q,2)}, v{eSTO}, s[{S_H}:{S_H+3}], 0 offen offset:{64*t+16*q}")
for r in range(32):
    A(f"    v_mul_f32 v{SEG+r}, s{sLN2}, v{SEG+r}")
for j in range(16):
    A(f"    v_cvt_pk_bf16_f32 v{PK+j}, v{SEG+2*j}, v{SEG+2*j+1}")
A("    s_mov_b64 exec, 0x01ffffff")
A(f"    v_lshl_add_u32 v{eT}, v{eE32}, 4, s{sPAB}")
A(f"    ds_read_b96 {vr(TMP+4,3)}, v{eT}")
A(f"    v_mul_u32_u24 v{ePOFF}, 6, v{eNODE}")
A(f"    v_add_u32 v{ePOFF}, {N*128}, v{ePOFF}")
A("    s_waitcnt lgkmcnt(0)")
A(f"    v_cvt_pk_bf16_f32 v{CS}, v{PAC}, v{PAC+1}")
A(f"    v_cvt_pk_bf16_f32 v{CS+1}, v{PAC+2}, v{PAC+2}")
A(f"    v_lshlrev_b32 v{TMP}, 16, v{CS}")
A(f"    v_and_b32 v{TMP+1}, s{sHI}, v{CS}")
A(f"    v_lshlrev_b32 v{TMP+2}, 16, v{CS+1}")
for c in range(3):
    A(f"    v_add_f32 v{TMP+c}, v{TMP+c}, v{TMP+4+c}")
for c in range(3):
    A(f"    v_cvt_pk_bf16_f32 v{CS+c}, v{TMP+c}, v{TMP+c}")
for c in range(3):
    A(f"    buffer_store_short v{CS+c}, v{ePOFF}, s[{S_OUT}:{S_OUT+3}], 0 offen offset:{2*c}")
A("    s_mov_b64 exec, -1")
A(f"    s_waitcnt vmcnt({8 + 4 + 8 + 3})")
for tp in range(2):
    for i, q in enumerate((4, 5, 6, 7)):
        c = "0" if i == 0 else vr(ACC+16*tp,16)
        A(f"    v_mfma_f32_32x32x16_bf16 {vr(ACC+16*tp,16)}, {vr(whf(q,tp),4)}, {vr(PK+4*(q-4),4)}, {c}")
A(f"    s_waitcnt vmcnt({8 + 3})")
for tp in range(2):
    for q in range(4):
        A(f"    v_mfma_f32_32x32x16_bf16 {vr(ACC+16*tp,16)}, {vr(whf(q,tp),4)}, {vr(HB+4*q,4)}, {vr(ACC+16*tp,16)}")
A("    s_nop 15")
for j in range(16):
    a0, a1 = ACC + 2 * j, ACC + 2 * j + 1
    A(f"    v_cvt_pk_bf16_f32 v{TMP}, v{a0}, v{a1}")
    A(f"    v_lshlrev_b32 v{a0}, 16, v{TMP}")
    A(f"    v_and_b32 v{a1}, s{sHI}, v{TMP}")
A(f"    s_mov_b32 s3, 0x{LOG2E:08x}")
for g0 in range(0, 32, 8):
    rs = range(g0, g0 + 8)
    for r in rs: A(f"    v_mul_f32 v{TMP+r%8}, s3, v{ACC+r}")
    for r in rs: A(f"    v_exp_f32 v{TMP+r%8}, v{TMP+r%8}")
    for r in rs: A(f"    v_add_f32 v{TMP+r%8}, 1.0, v{TMP+r%8}")
    for r in rs: A(f"    v_rcp_f32 v{TMP+r%8}, v{TMP+r%8}")
    for r in rs: A(f"    v_mul_f32 v{ACC+r}, v{ACC+r}, v{TMP+r%8}")
A("    s_waitcnt vmcnt(3)")
for j in range(16):
    a0, a1 = ACC + 2 * j, ACC + 2 * j + 1
    hv = HD + j
    A(f"    v_cvt_pk_bf16_f32 v{TMP}, v{a0}, v{a1}")
    A(f"    v_lshlrev_b32 v{a0}, 16, v{TMP}")
    A(f"    v_and_b32 v{a1}, s{sHI}, v{TMP}")
    A(f"    v_lshlrev_b32 v{TMP+1}, 16, v{hv}")
    A(f"    v_and_b32 v{TMP+2}, s{sHI}, v{hv}")
    A(f"    v_add_f32 v{a0}, v{a0}, v{TMP+1}")
    A(f"    v_add_f32 v{a1}, v{a1}, v{TMP+2}")
    A(f"    v_cvt_pk_bf16_f32 v{PK+j}, v{a0}, v{a1}")
A(f"    s_mov_b64 exec, s[{sM25}:{sM25+1}]")
for t in range(2):
    for q in range(4):
        A(f"    buffer_store_dwordx2 {vr(PK+8*t+2*q,2)}, v{eSTO}, s[{S_OUT}:{S_OUT+3}], 0 offen offset:{64*t+16*q}")
for e in lint(out[epi_start:], "epi"):
    print("LINT", e)
if PROF:
    A("    s_mov_b64 exec, -1")
    prof_dump("LP", "LM_end", sW, 82, _stamp[0])
A("LM_end:")
A("    s_endpgm")

A('.section .rodata,"a"')
for name, nv in (("egnn_sort_kernel", 88), ("egnn_main_kernel", 256)):
    A(".p2align 6")
    A(f".amdhsa_kernel {name}")
    A(f"  .amdhsa_next_free_vgpr {nv}")
    A("  .amdhsa_next_free_sgpr 100")
    A(f"  .amdhsa_accum_offset {nv}")
    A("  .amdhsa_group_segment_fixed_size 0")
    A("  .amdhsa_kernarg_size 88")
    A("  .amdhsa_user_sgpr_count 2")
    A("  .amdhsa_user_sgpr_kernarg_segment_ptr 1")
    A("  .amdhsa_system_sgpr_workgroup_id_x 1")
    A(".end_amdhsa_kernel")

path = sys.argv[1] if len(sys.argv) > 1 else f"cdna_kernels/{NAME}.s"
open(path, "w").write("\n".join(out) + "\n")
print("wrote", path, len(out), "lines; sort lds", SORT_LDS, "main lds", MAIN_LDS, "vgprs", NVGPR)
```

```python
import sys, os
sys.path.insert(0, os.path.dirname(os.path.abspath(__file__)))
from lint import lint
PROF = int(os.environ.get("PROF", "0"))
MB = int(os.environ.get("MB", "0"))
EANT = os.environ.get("EANT", "")
BAL = int(os.environ.get("BAL", "1"))
PH = int(os.environ.get("PH", "1"))
F16 = int(os.environ.get("F16", "1"))
MT = "f16" if F16 else "bf16"
CVT = "v_cvt_pk_f16_f32" if F16 else "v_cvt_pk_bf16_f32"
PF = int(os.environ.get("PF", "0"))
PFN = int(os.environ.get("PFN", "25000"))
TH = int(os.environ.get("TH", "25000"))

PFW = int(os.environ.get("PFW", "0"))
PFS = int(os.environ.get("PFS", "0"))
PFSH = int(os.environ.get("PFSH", "0"))
NPS = PFS + PFSH
PFI = int(os.environ.get("PFI", "2"))
PFH = int(os.environ.get("PFH", "1"))
NAME = "gather_scatter__cheap_equivariant_egnn__graph"
N = 50000
E = 800000
G = 250
GW = 4
C = 3200
NBK = 250
BN = 200
FBN = 25
REC_OFF = 0
TBL_OFF = E * 8
WF_OFF = TBL_OFF + 256 * 8192
P4_OFF = WF_OFF + 40 * 1024
WS_USED = P4_OFF + N * 8
LOG2E = 0xbfb8aa3b
LN2 = 0xbf317218
PADNB = 30

out = []
def A(s=""):
    out.append(s)

_stamp = [0]
def STAMP(lvl=1):
    if PROF != lvl and lvl != 0:
        return
    if not PROF:
        return
    i = _stamp[0]; _stamp[0] += 1
    assert i < 7
    A(f"    s_memtime s[{82+2*i}:{83+2*i}]")
_sst = [0]
def SSTAMP():
    if not PROF:
        return
    i = _sst[0]; _sst[0] += 1
    assert i < 7
    A(f"    s_memtime s[{46+2*i}:{47+2*i}]")

def srd(base, lo, hi, nbytes, stride=0):
    A(f"    s_mov_b32 s{base}, s{lo}")
    A(f"    s_and_b32 s{base+1}, s{hi}, 0xffff")
    if stride:
        A(f"    s_or_b32 s{base+1}, s{base+1}, {stride << 16}")
    A(f"    s_mov_b32 s{base+2}, {nbytes}")
    A(f"    s_mov_b32 s{base+3}, 0x00020000")

def vr(a, n):
    return f"v[{a}:{a+n-1}]"

def wave_scan(x):
    for sh in (1, 2, 4, 8):
        A("    s_nop 1")
        A(f"    v_add_u32_dpp v{x}, v{x}, v{x} row_shr:{sh} row_mask:0xf bank_mask:0xf bound_ctrl:0")
    A("    s_nop 1")
    A(f"    v_add_u32_dpp v{x}, v{x}, v{x} row_bcast:15 row_mask:0xa bank_mask:0xf")
    A("    s_nop 1")
    A(f"    v_add_u32_dpp v{x}, v{x}, v{x} row_bcast:31 row_mask:0xc bank_mask:0xf")
    A("    s_nop 1")

PALL = int(os.environ.get("PALL", "0"))
def prof_all(wreg, base, n, off, rt0):
    A("    s_waitcnt vmcnt(0)")
    A(f"    s_memtime s[{base+2*n}:{base+2*n+1}]")
    A(f"    s_memrealtime s[66:67]")
    A("    s_load_dwordx2 s[64:65], s[0:1], 80")
    A("    s_getreg_b32 s75, hwreg(HW_REG_HW_ID)")
    A("    s_getreg_b32 s77, hwreg(HW_REG_XCC_ID)")
    A("    s_waitcnt lgkmcnt(0)")
    srd(68, 64, 65, 256 << 20)
    A("    s_lshl_b32 s72, s2, 4")
    A(f"    s_add_u32 s72, s72, s{wreg}")
    A("    s_lshl_b32 s72, s72, 6")
    A(f"    s_add_u32 s72, s72, {off}")
    A("    s_mov_b64 exec, 1")
    A("    v_mov_b32 v1, s72")
    for i in range(1, n + 1):
        A(f"    s_sub_u32 s73, s{base+2*i}, s{base}")
        A(f"    v_mov_b32 v2, s73")
        A(f"    buffer_store_dword v2, v1, s[68:71], 0 offen offset:{4*i}")
    for j, r in enumerate((rt0, 66, 75, 77, 96)):
        A(f"    v_mov_b32 v2, s{r}")
        A(f"    buffer_store_dword v2, v1, s[68:71], 0 offen offset:{32+4*j}")
def prof_dump(lbl, endlbl, wreg, base, n):
    if PALL:
        return prof_all(wreg, base, n, (200 << 20) + (0 if lbl == "LP" else 1 << 20), 98 if lbl == "LP" else 62)
    A("    s_waitcnt vmcnt(0)")
    A(f"    s_memtime s[{base+2*n}:{base+2*n+1}]")
    A("    s_load_dwordx2 s[64:65], s[0:1], 72")
    A("    s_waitcnt lgkmcnt(0)")
    srd(68, 64, 65, 256)
    A("    s_mov_b32 s72, 0")
    A("    s_cmp_eq_u32 s2, 0")
    A(f"    s_cbranch_scc1 {lbl}_a")
    A("    s_mov_b32 s72, 2")
    A("    s_cmp_eq_u32 s2, 137")
    A(f"    s_cbranch_scc0 {endlbl}")
    A(f"{lbl}_a:")
    A(f"    s_cmp_eq_u32 s{wreg}, 0")
    A(f"    s_cbranch_scc1 {lbl}_b")
    A("    s_add_u32 s72, s72, 1")
    A(f"    s_cmp_eq_u32 s{wreg}, 7")
    A(f"    s_cbranch_scc0 {endlbl}")
    A(f"{lbl}_b:")
    A("    s_lshl_b32 s72, s72, 5")
    A("    s_mov_b64 exec, 1")
    A("    v_mov_b32 v1, s72")
    for i in range(1, n + 1):
        A(f"    s_sub_u32 s73, s{base+2*i}, s{base}")
        A(f"    v_mov_b32 v2, s73")
        A(f"    buffer_store_dword v2, v1, s[68:71], 0 offen offset:{4*i}")

S_HIST = 0
S_OFF = 8192
S_WT = 16384
S_STAGE = 16384 + 64
SORT_LDS = S_STAGE + C * 8
CAP = 512
ST_SZ = 5120
L_ID = 0
ID_RS = 80
L_PA = L_ID + 32 * ID_RS
L_Z = L_PA + 8 * 512
L_PRG = L_Z + 1024
L_W0 = L_PRG + 64
L_W1 = L_W0 + 8 * CAP * 4
L_MS = L_W1 + 8 * CAP * 4
MS_RS = 136
MS_W = 32 * MS_RS
L_ST = L_MS + 8 * MS_W
assert L_PRG % 32 == 0
assert L_ST % 16 == 0 and L_PA % 16 == 0 and L_ID % 16 == 0
L_TB = L_MS
L_WF = L_MS + 8192
assert L_WF + 24576 <= L_ST
L_RAW = L_ST
MAIN_LDS = L_ST + 16 * ST_SZ
assert MAIN_LDS <= 163840, MAIN_LDS

A(f"; @launch kernel=egnn_sort_kernel grid=({G+GW+PFW},1,1) block=(640,1,1) lds={SORT_LDS}")
A(f"; @launch kernel=egnn_main_kernel grid=({NBK},1,1) block=(512,1,1) lds={MAIN_LDS}")
A('.amdgcn_target "amdgcn-amd-amdhsa--gfx950"')
A(".text")

A(".globl egnn_sort_kernel")
A(".p2align 8")
A(".type egnn_sort_kernel,@function")
A("egnn_sort_kernel:")
A(f"    s_cmp_ge_u32 s2, {G+GW}")
A("    s_cbranch_scc1 LS_pf")
A(f"    s_cmp_ge_u32 s2, {G}")
A("    s_cbranch_scc1 LS_weights")
SSTAMP()
if PALL:
    A("    s_memrealtime s[62:63]")
A("    s_load_dwordx2 s[4:5], s[0:1], 8      ; pos")
A("    s_load_dwordx4 s[8:11], s[0:1], 24    ; src, dst")
A("    s_load_dwordx2 s[12:13], s[0:1], 80   ; ws")
if NPS:
    A("    s_load_dwordx2 s[40:41], s[0:1], 0     ; h")
    A("    s_load_dwordx2 s[42:43], s[0:1], 16    ; e_attr")
A("    v_lshlrev_b32 v1, 4, v0")
if NPS:
    A("    v_mov_b32 v82, v1")
for j in range(4):
    A(f"    v_mov_b32 v{4+j}, 0")
A("    v_cmp_gt_u32 vcc, 512, v0")
A("    s_and_saveexec_b64 s[14:15], vcc")
A(f"    ds_write_b128 v1, v[4:7] offset:{S_HIST}")
A("    s_mov_b64 exec, s[14:15]")
A("    v_lshlrev_b32 v1, 2, v0")
A(f"    s_mul_i32 s3, s2, {C * 4}")
A("    v_add_u32 v1, s3, v1")
SL = 5
for k in range(1, SL):
    A(f"    s_mov_b32 s{35+k}, {k*2560}")
A(f"    s_mul_i32 s3, s2, {BN}")
A("    v_add_u32 v44, s3, v0                ; node")
A("    v_mul_u32_u24 v45, 6, v44")
A("    s_waitcnt lgkmcnt(0)")
SSTAMP()
srd(24, 10, 11, E * 4)
srd(20, 8, 9, E * 4)
for k in range(SL):
    so = "0" if k == 0 else f"s{35+k}"
    A(f"    buffer_load_dword v{10+k}, v1, s[24:27], {so} offen")
    A(f"    buffer_load_dword v{15+k}, v1, s[20:23], {so} offen")
srd(16, 4, 5, N * 6)
srd(28, 12, 13, WS_USED)
for c in range(3):
    A(f"    buffer_load_ushort v{40+c}, v45, s[16:19], 0 offen offset:{2*c}")
if NPS:
    srd(64, 40, 41, N * 128)
    srd(68, 42, 43, E * 32)
    A(f"    s_mul_i32 s40, s2, {BN*128}")
    A(f"    s_mul_i32 s41, s2, {PFS*10240}")
    for i in range(max(PFS, PFSH)):
        if i < PFSH:
            A(f"    buffer_load_dwordx4 v[84:87], v82, s[64:67], s40 offen")
            A(f"    s_add_u32 s40, s40, 10240")
        if i < PFS:
            A(f"    buffer_load_dwordx4 v[84:87], v82, s[68:71], s41 offen")
            A(f"    s_add_u32 s41, s41, 10240")
A("    s_barrier")
A("    s_mov_b32 s14, 83887")
A("    v_mov_b32 v3, 1")
A(f"    s_mul_i32 s3, s2, {C}")
A("    v_add_u32 v46, s3, v0")
for k in range(SL):
    A(f"    s_waitcnt vmcnt({NPS + 3 + 2*(SL-1-k)})")
    d, s = 10 + k, 15 + k
    A(f"    v_mul_u32_u24 v4, s14, v{d}")
    A(f"    v_lshrrev_b32 v4, 21, v4             ; key = dst/25")
    A(f"    v_lshlrev_b32 v{20+k}, 2, v4")
    A(f"    ds_add_rtn_u32 v{30+k}, v{20+k}, v3 offset:{S_HIST}")
    A(f"    v_mul_u32_u24 v5, {FBN}, v4")
    A(f"    v_sub_u32 v7, v{d}, v5               ; nb")
    A(f"    v_lshl_or_b32 v{50+2*k}, v{s}, 7, v7   ; w0")
    A(f"    v_add_u32 v8, {k*640}, v46")
    A(f"    v_lshlrev_b32 v{51+2*k}, 5, v8         ; w1")
A(f"    s_waitcnt vmcnt({NPS})")
A("    v_lshl_or_b32 v40, v41, 16, v40")
A("    v_lshlrev_b32 v41, 16, v42")
A("    v_lshlrev_b32 v44, 3, v44")
A(f"    v_add_u32 v44, {P4_OFF}, v44")
A(f"    v_cmp_gt_u32 vcc, {BN}, v0")
A("    s_and_saveexec_b64 s[44:45], vcc")
A("    s_cbranch_execz LS_nop4")
A("    buffer_store_dwordx2 v[40:41], v44, s[28:31], 0 offen")
A("LS_nop4:")
A("    s_mov_b64 exec, s[44:45]")
A("    s_waitcnt lgkmcnt(0)")
A("    s_barrier")
SSTAMP()
A("    v_lshrrev_b32 v81, 6, v0")
A("    v_lshlrev_b32 v2, 4, v0")
A("    v_readfirstlane_b32 s6, v81          ; wave")
A("    s_cmp_ge_u32 s6, 8")
A("    s_cbranch_scc1 LS_noscan1")
A(f"    ds_read_b128 v[4:7], v2 offset:{S_HIST}")
A("    s_waitcnt lgkmcnt(0)")
A("    v_add_u32 v8, v4, v5")
A("    v_add_u32 v9, v8, v6")
A("    v_add_u32 v70, v9, v7                ; total")
A("    v_mov_b32 v71, v70")
wave_scan(71)
A("    v_readlane_b32 s7, v71, 63")
A("    v_lshlrev_b32 v81, 2, v81")
A("    v_mov_b32 v72, s7")
A(f"    ds_write_b32 v81, v72 offset:{S_WT}")
A("    s_waitcnt lgkmcnt(0)")
A("LS_noscan1:")
A("    s_barrier")
A("    s_cmp_ge_u32 s6, 8")
A("    s_cbranch_scc1 LS_noscan")
A("    v_mov_b32 v81, 0")
A(f"    ds_read_b128 v[72:75], v81 offset:{S_WT}")
A(f"    ds_read_b128 v[76:79], v81 offset:{S_WT+16}")
A("    v_sub_u32 v71, v71, v70            ; exclusive")
A("    s_waitcnt lgkmcnt(0)")
for j in range(7):
    A(f"    s_cmp_gt_u32 s6, {j}")
    A(f"    s_cselect_b32 s7, -1, 0")
    A(f"    v_and_b32 v{72+j}, s7, v{72+j}")
    A(f"    v_add_u32 v71, v71, v{72+j}")
A("    v_mov_b32 v72, v71")
A("    v_add_u32 v73, v71, v4")
A("    v_add_u32 v74, v71, v8")
A("    v_add_u32 v75, v71, v9")
A(f"    ds_write_b128 v2, v[72:75] offset:{S_OFF}")
A("    v_lshl_or_b32 v76, v4, 16, v72")
A("    v_lshl_or_b32 v77, v5, 16, v73")
A("    v_lshl_or_b32 v78, v6, 16, v74")
A("    v_lshl_or_b32 v79, v7, 16, v75")
A("    s_and_b32 s3, s2, 3")
A("    s_lshl_b32 s3, s3, 6")
A("    s_lshr_b32 s7, s2, 2")
A("    s_add_u32 s3, s3, s7                 ; slot")
A("    s_lshl_b32 s3, s3, 5")
A(f"    s_add_u32 s3, s3, {TBL_OFF}")
A("    v_lshrrev_b32 v80, 1, v0")
A("    v_lshlrev_b32 v80, 13, v80")
A("    v_and_b32 v81, 1, v0")
A("    v_lshl_add_u32 v80, v81, 4, v80")
A("    buffer_store_dwordx4 v[76:79], v80, s[28:31], s3 offen")
A("    s_waitcnt lgkmcnt(0)")
A("LS_noscan:")
A("    s_barrier")
for k in range(SL):
    A(f"    ds_read_b32 v{35+k}, v{20+k} offset:{S_OFF}")
SSTAMP()
A("    s_waitcnt lgkmcnt(0)")
for k in range(SL):
    A(f"    v_add_u32 v2, v{35+k}, v{30+k}")
    A(f"    v_lshlrev_b32 v2, 3, v2")
    A(f"    ds_write_b64 v2, v[{50+2*k}:{51+2*k}] offset:{S_STAGE}")
A("    s_waitcnt lgkmcnt(0)")
A("    s_barrier")
SSTAMP()
A("    v_lshlrev_b32 v1, 3, v0")
for k in range(SL):
    A(f"    ds_read_b64 v[{50+2*k}:{51+2*k}], v1 offset:{S_STAGE + k*5120}")
A(f"    s_mul_i32 s3, s2, {C*8}")
A("    v_add_u32 v2, s3, v1")
for k in range(1, SL):
    A(f"    s_mov_b32 s{35+k}, {k*5120}")
for k in range(SL):
    A(f"    s_waitcnt lgkmcnt({SL-1-k})")
    so = "0" if k == 0 else f"s{35+k}"
    A(f"    buffer_store_dwordx2 v[{50+2*k}:{51+2*k}], v2, s[28:31], {so} offen")
if PROF:
    A("    v_lshrrev_b32 v1, 6, v0")
    A("    s_nop 0")
    A("    v_readfirstlane_b32 s74, v1")
    prof_dump("LQ", "LS_end", 74, 46, _sst[0])
A("    s_branch LS_end")
A("LS_weights:")
A("    s_load_dwordx2 s[4:5], s[0:1], 40     ; w_e")
A("    s_load_dwordx2 s[6:7], s[0:1], 56     ; w_h")
A("    s_load_dwordx2 s[26:27], s[0:1], 48   ; w_x")
A("    s_load_dwordx2 s[12:13], s[0:1], 80   ; ws")
A("    v_lshrrev_b32 v1, 6, v0")
A("    s_nop 0")
A("    v_readfirstlane_b32 s3, v1")
A(f"    s_sub_u32 s8, s2, {G}")
A("    s_mul_i32 s8, s8, 10")
A("    s_add_u32 s8, s8, s3")
A("    s_cmp_eq_u32 s8, 23")
A("    s_cbranch_scc1 LS_end")
A("    s_waitcnt lgkmcnt(0)")
srd(16, 4, 5, 145 * 128)
srd(20, 6, 7, 128 * 128)
srd(28, 12, 13, WS_USED)
A("    s_and_b32 s14, s8, 1")
A("    s_lshr_b32 s15, s8, 1                  ; ks / q")
A("    s_mov_b32 s10, 8")
A("    s_mov_b32 s11, 4")
A("    s_mov_b32 s24, 1.0")
A("    s_cmp_ge_u32 s8, 24")
A("    s_cbranch_scc1 LS_wh")
A("    s_cmp_eq_u32 s8, 22")
A("    s_cbranch_scc1 LS_wd")
A("    s_cmp_ge_u32 s8, 18")
A("    s_cbranch_scc1 LS_wx")
A("    s_lshl_b32 s9, s15, 4")
A("    s_cmp_ge_u32 s15, 8")
A("    s_cselect_b32 s9, 129, s9")
A("    s_cmp_ge_u32 s15, 4")
A(f"    s_cselect_b32 s24, 0x{LOG2E:08x}, s24")
A("    s_branch LS_wgo")
A("LS_wh:")
A("    s_sub_u32 s15, s15, 12")
A("    s_lshl_b32 s9, s15, 4")
A("    s_cmp_ge_u32 s15, 4")
A("    s_cselect_b32 s10, 4, 8")
A("    s_cselect_b32 s11, 8, 4")
A("    s_mov_b32 s16, s20")
A("    s_mov_b32 s17, s21")
A("    s_mov_b32 s18, s22")
A("LS_wgo:")
A("    v_and_b32 v1, 31, v0")
A("    v_bfe_u32 v2, v0, 5, 1")
A("    v_mul_u32_u24 v2, s10, v2")
A("    v_add_u32 v2, s9, v2")
A("    v_lshlrev_b32 v2, 7, v2")
A("    v_lshl_add_u32 v2, v1, 1, v2")
A("    s_lshl_b32 s3, s14, 6")
A("    v_add_u32 v2, s3, v2")
A("    s_lshl_b32 s3, s11, 7")
A("    v_add_u32 v3, s3, v2                   ; j=4")
for j in range(4):
    A(f"    buffer_load_ushort v{10+j}, v2, s[16:19], 0 offen offset:{128*j}")
for j in range(4):
    A(f"    buffer_load_ushort v{14+j}, v3, s[16:19], 0 offen offset:{128*j}")
A("    s_waitcnt vmcnt(0)")
for j in range(8):
    A(f"    v_lshlrev_b32 v{10+j}, 16, v{10+j}")
    A(f"    v_mul_f32 v{10+j}, s24, v{10+j}")
for j in range(4):
    A(f"    v_cvt_pk_bf16_f32 v{20+j}, v{10+2*j}, v{11+2*j}")
A("LS_wst:")
A("    v_and_b32 v1, 63, v0")
A("    v_lshlrev_b32 v1, 4, v1")
A("    s_lshl_b32 s3, s8, 10")
A(f"    s_add_u32 s3, s3, {WF_OFF}")
A("    v_add_u32 v1, s3, v1")
A("    buffer_store_dwordx4 v[20:23], v1, s[28:31], 0 offen")
A("    s_branch LS_end")
A("LS_wx:")
srd(16, 26, 27, 128)
A("    s_sub_u32 s3, s8, 18")
A("    s_lshl_b32 s3, s3, 5")
A("    v_bfe_u32 v2, v0, 5, 1")
A("    v_lshlrev_b32 v2, 3, v2")
A("    v_add_u32 v2, s3, v2")
A("    buffer_load_dwordx2 v[20:21], v2, s[16:19], 0 offen")
A("    buffer_load_dwordx2 v[22:23], v2, s[16:19], 0 offen offset:16")
A(f"    s_mov_b32 s14, {(1<<8)|(1<<28)}")
A(f"    s_mov_b32 s15, {(1<<8)|(1<<28)}")
A("    s_waitcnt vmcnt(0)")
for j in range(4):
    A(f"    v_cndmask_b32 v{20+j}, 0, v{20+j}, s[14:15]")
    if F16:
        A(f"    v_lshlrev_b32 v3, 16, v{20+j}")
        A(f"    v_and_b32 v{20+j}, 0xffff0000, v{20+j}")
        A(f"    v_cvt_pk_f16_f32 v{20+j}, v3, v{20+j}")
A("    s_branch LS_wst")
A("LS_wd:")
A("    v_and_b32 v1, 31, v0")
A("    v_lshlrev_b32 v1, 1, v1")
A(f"    v_add_u32 v1, {128*128}, v1")
A("    buffer_load_ushort v20, v1, s[16:19], 0 offen")
A("    buffer_load_ushort v21, v1, s[16:19], 0 offen offset:64")
A(f"    s_mov_b32 s3, 0x{LOG2E:08x}")
A("    v_mov_b32 v22, 0")
A("    v_mov_b32 v23, 0")
A("    s_waitcnt vmcnt(0)")
for t in range(2):
    A(f"    v_lshlrev_b32 v{20+t}, 16, v{20+t}")
    A(f"    v_mul_f32 v{20+t}, s3, v{20+t}")
    A(f"    v_cvt_pk_bf16_f32 v{20+t}, v{20+t}, v{20+t}")
A("    s_branch LS_wst")
A("LS_pf:")
if PFW:
    A(f"    s_cmp_ge_u32 s2, {G+GW+PFW}")
    A("    s_cbranch_scc1 LS_end")
    A("    s_load_dwordx2 s[4:5], s[0:1], 0      ; h")
    A("    s_load_dwordx2 s[6:7], s[0:1], 16     ; e_attr")
    A(f"    s_sub_u32 s3, s2, {G+GW}")
    A(f"    s_mul_i32 s3, s3, 640")
    A("    v_add_u32 v1, s3, v0")
    A("    v_lshlrev_b32 v2, 7, v1               ; h line")
    A("    v_lshrrev_b32 v3, 6, v1")
    A(f"    v_mul_u32_u24 v3, {PFI*64}, v3")
    A("    v_and_b32 v4, 63, v0")
    A("    v_add_u32 v3, v3, v4")
    A("    v_lshlrev_b32 v3, 7, v3")
    A("    s_waitcnt lgkmcnt(0)")
    srd(16, 4, 5, N * 128)
    srd(20, 6, 7, E * 32)
    for i in range(PFI):
        A(f"    s_mov_b32 s3, {i*8192}")
        A(f"    buffer_load_dword v{8+i}, v3, s[20:23], s3 offen")
    if PFH:
        A(f"    buffer_load_dword v7, v2, s[16:19], 0 offen")
A("LS_end:")
A("    s_endpgm")

S_H, S_EA, S_WS, S_P4, S_WE, S_WX, S_OUT = 8, 12, 16, 20, 24, 28, 32
sW, sT, sBASE, sCNT, sLB, sNT, sNODE, sSTG = 40, 41, 42, 43, 44, 45, 46, 47
sHIGH = 50
sM25 = 52
sHI = 54
sAM = 55
sLN2 = 56
sP4O = 57
sIDRS = 58
sPAB = 59
sONE2 = 60
sPGW, sPGR, sPGP = 62, 63, 76

_next = [1]
def alloc(n, align=1):
    while _next[0] % align:
        _next[0] += 1
    r = _next[0]; _next[0] += n
    return r
WSF = alloc(32, 4)
WAE = alloc(8, 4)
ATF = alloc(16, 4)
WX = alloc(16, 4)
ACC = alloc(32, 4)
SEG = alloc(32, 4)
HB = alloc(16, 4)
EA = alloc(4, 4)
SO = alloc(8, 4)
PK = alloc(16, 4)
TRM = alloc(8, 4)
TRS = alloc(8, 4)
CS = alloc(4, 4)
TMP = alloc(8, 4)
W0D = alloc(4, 4)
PAC = alloc(4, 4)
PS0 = alloc(3, 2); vW0E = alloc(1)
PS1 = alloc(3, 2); vNB = alloc(1)
PD = alloc(3, 2); vSA = alloc(1)
PS = (PS0, PS1)
DX = (alloc(3), alloc(3))
vW1P = alloc(1); vW0E3 = alloc(1)
vSWZ = (alloc(1), alloc(1))
vEAO = alloc(1)
vHBA = [alloc(1) for _ in range(4)]
vEAR, vIDB, vSWL, vMWL, vTRL = [alloc(1) for _ in range(5)]
assert _next[0] <= 256, _next[0]
vTRP, vL0E, vL0D = 1, 2, 3
vL1P, vONE, vZERO, vMASK = [alloc(1) for _ in range(4)]
assert _next[0] <= 256, _next[0]
NVGPR = _next[0]
def wsf(s, t): return WSF + (2 * s + t) * 4
def atf(u, t): return ATF + (2 * u + t) * 4
X = PK
assert W0D + 4 - PK == 48

A(".globl egnn_main_kernel")
A(".p2align 8")
A(".type egnn_main_kernel,@function")
A("egnn_main_kernel:")
A(f"    s_cmp_ge_u32 s2, {os.environ.get('LIMWG', NBK)}")
A("    s_cbranch_scc1 LM_end")
STAMP(0)
if PALL:
    A("    s_memrealtime s[98:99]")
A("    s_load_dwordx2 s[80:81], s[0:1], 80    ; ws")
A("    s_load_dwordx2 s[64:65], s[0:1], 0     ; h")
A("    s_load_dwordx2 s[66:67], s[0:1], 16    ; e_attr")
A("    s_load_dwordx2 s[78:79], s[0:1], 64    ; out")
xLANE, xE32, xHH, xH16, xL16, xT4 = X + 40, X + 41, X + 42, X + 43, X + 44, X + 45
def lane_consts():
    A(f"    v_and_b32 v{xLANE}, 63, v0")
    A(f"    v_and_b32 v{xE32}, 31, v0")
    A(f"    v_bfe_u32 v{xHH}, v0, 5, 1")
    A(f"    v_lshlrev_b32 v{xH16}, 4, v{xHH}")
    A(f"    v_lshlrev_b32 v{xL16}, 4, v{xLANE}")
    A(f"    v_lshlrev_b32 v{xT4}, 2, v0")
lane_consts()
A(f"    v_lshrrev_b32 v{X}, 6, v0")
A(f"    s_mov_b32 s{sHIGH}, 0")
A(f"    v_readfirstlane_b32 s{sW}, v{X}")
A(f"    s_mov_b32 s{sHIGH+1}, -1")
A(f"    s_mov_b32 s{sM25}, 0x01ffffff")
A(f"    s_mov_b32 s{sM25+1}, 0x01ffffff")
A(f"    s_mov_b32 s{sHI}, 0xffff0000")
A(f"    s_mov_b32 s{sAM}, {os.environ.get('HOTH', '0x007fff80')}")
sHOT = 61
A(f"    s_mov_b32 s{sHOT}, {os.environ.get('HOTEA', '0')}")
A(f"    s_mov_b32 s{sLN2}, 0x{LN2:08x}")
A(f"    s_mov_b32 s{sP4O}, {P4_OFF}")
A(f"    s_mov_b32 s{sIDRS}, {ID_RS}")
A(f"    s_mov_b32 s{sONE2}, 0x3c003c00")
A(f"    s_lshl_b32 s{sPGW}, s{sW}, 2")
A(f"    s_add_u32 s{sPGW}, s{sPGW}, {L_PRG}")
A(f"    s_xor_b32 s{sPGR}, s{sPGW}, 16")
A(f"    s_lshl_b32 s3, s2, 13")
A(f"    s_add_u32 s3, s3, {TBL_OFF}")
A(f"    v_lshlrev_b32 v{X+1}, 4, v0")
A(f"    s_lshl_b32 s4, s{sW}, 10")
A(f"    s_add_u32 m0, s4, {L_TB}")
A(f"    s_mov_b32 s5, {WF_OFF}")
A(f"    s_mul_i32 s{sSTG}, s{sW}, {2*ST_SZ}")
A(f"    s_add_u32 s{sSTG}, s{sSTG}, {L_ST}")
A(f"    s_mul_i32 s6, s2, {BN}")
A(f"    s_mul_i32 s4, s{sW}, {FBN}")
A(f"    s_add_u32 s{sNODE}, s6, s4")
A("    s_waitcnt lgkmcnt(0)")
STAMP(2)
srd(S_WS, 80, 81, WS_USED)
A(f"    buffer_load_dwordx4 v{X+1}, s[{S_WS}:{S_WS+3}], s3 offen lds")
A(f"    s_lshl_b32 s4, s{sW}, 10")
A(f"    s_add_u32 s5, s5, s4")
for i in range(3):
    A(f"    s_add_u32 m0, s4, {L_WF + 8192*i}")
    A(f"    s_add_u32 s3, s5, {8192*i}")
    A(f"    buffer_load_dwordx4 v{xL16}, s[{S_WS}:{S_WS+3}], s3 offen lds")
srd(S_H, 64, 65, N * 128)
NPF = 0
if PF:
    per_wg = -(-PFN // PF)
    per_w = -(-per_wg // 8)
    NPF = -(-per_w // 64)
    A(f"    s_mul_i32 s3, s2, {(1 << 20) // PF + 1}")
    A(f"    s_lshr_b32 s3, s3, 20")
    A(f"    s_mul_i32 s3, s3, {PF}")
    A(f"    s_sub_u32 s3, s2, s3                  ; slice")
    A(f"    s_mul_i32 s3, s3, {per_wg}")
    A(f"    s_mul_i32 s4, s{sW}, {per_w}")
    A(f"    s_add_u32 s3, s3, s4")
    A(f"    v_add_u32 v{X+2}, s3, v{xLANE}")
    A(f"    v_lshlrev_b32 v{X+2}, 7, v{X+2}")
    A(f"    s_mov_b32 m0, {L_W0}")
    for i in range(NPF):
        A(f"    s_mov_b32 s3, {i * 64 * 128}")
        A(f"    buffer_load_dword v{X+2}, s[{S_H}:{S_H+3}], s3 offen lds")
srd(S_P4, 80, 81, N, stride=8)
srd(S_EA, 66, 67, E * 32)
srd(S_OUT, 78, 79, N * 128 + N * 6)
STAMP(2)
def own_loads(X=X):
    A(f"    v_add_u32 v{X}, s{sNODE}, v{xE32}")
    A(f"    v_lshl_add_u32 v{X+1}, v{X}, 7, v{xH16}")
    for s in range(4):
        A(f"    buffer_load_dwordx4 {vr(HB+4*s,4)}, v{X+1}, s[{S_H}:{S_H+3}], 0 offen offset:{32*s}")
    A(f"    buffer_load_dwordx2 {vr(PD,2)}, v{X}, s[{S_P4}:{S_P4+3}], s{sP4O} idxen")
NOWN = 4 + 1
STAMP(2)
A(f"    s_mul_i32 s4, s{sW}, {MS_W}")
A(f"    s_add_u32 s4, s4, {L_MS}")
A(f"    v_mul_u32_u24 v{X}, {MS_RS}, v{xE32}")
A(f"    v_add_u32 v{X}, s4, v{X}")
A(f"    v_lshl_add_u32 v{vMWL}, v{xHH}, 3, v{X}")
A(f"    v_add_u32 v{vSWL}, 64, v{X}")
A(f"    v_bfe_u32 v{X}, v{xLANE}, 2, 2")
A(f"    v_lshlrev_b32 v{X}, 2, v{X}")
A(f"    v_add_u32 v{X}, v{X}, v{xHH}")
A(f"    v_mul_u32_u24 v{X}, {2*MS_RS}, v{X}")
A(f"    v_bfe_u32 v{X+1}, v{xLANE}, 4, 1")
A(f"    v_lshl_add_u32 v{X}, v{X+1}, 5, v{X}")
A(f"    v_and_b32 v{X+1}, 3, v{xLANE}")
A(f"    v_lshl_add_u32 v{X}, v{X+1}, 3, v{X}")
A(f"    v_add_u32 v{vTRL}, s4, v{X}")
A(f"    v_bfe_u32 v{X}, v{xLANE}, 2, 2")
A(f"    v_lshlrev_b32 v{X}, 2, v{X}")
A(f"    v_add_u32 v{X}, v{X}, v{xHH}")
A(f"    v_mul_u32_u24 v{X}, {2*MS_RS}, v{X}")
A(f"    v_add_u32 v{X}, s4, v{X}")
A(f"    v_add_u32 v{X}, 128, v{X}")
A(f"    v_bfe_u32 v{X+1}, v{xLANE}, 4, 1")
A(f"    v_and_b32 v{X+2}, 3, v{xLANE}")
A(f"    v_cmp_eq_u32 vcc, v{X+1}, v{X+2}")
A(f"    v_mov_b32 v{vTRP}, {L_Z}")
A(f"    s_lshl_b32 s{sPAB}, s{sW}, 9")
A(f"    v_cndmask_b32 v{vTRP}, v{vTRP}, v{X}, vcc")
A(f"    s_add_u32 s{sPAB}, s{sPAB}, {L_PA}")
A(f"    v_add_u32 v{vIDB}, {L_ID}, v{xH16}")
A(f"    v_mov_b32 v{vONE}, 0x3f80")
A(f"    v_mov_b32 v{vZERO}, 0")
A(f"    v_mul_u32_u24 v{vMASK}, 0xffff, v{xHH}")
A(f"    v_lshlrev_b32 v{vMASK}, 16, v{vMASK}")
A(f"    v_lshrrev_b32 v{X}, 3, v{xLANE}")
A(f"    v_and_b32 v{X+1}, 7, v{xLANE}")
A(f"    v_xor_b32 v{X+1}, v{X+1}, v{X}")
A(f"    v_lshlrev_b32 v{vSWZ[0]}, 4, v{X+1}")
A(f"    v_xor_b32 v{vSWZ[1]}, 16, v{vSWZ[0]}")
A(f"    v_and_b32 v{vEAO}, 1, v{xLANE}")
A(f"    v_lshlrev_b32 v{vEAO}, 4, v{vEAO}")
A(f"    v_lshrrev_b32 v{X}, 3, v{xE32}          ; i")
A(f"    v_and_b32 v{X+1}, 7, v{xE32}            ; r")
A(f"    v_and_b32 v{X+2}, 1, v{X}")
A(f"    v_xor_b32 v{X+2}, v{X+2}, v{X+1}        ; x")
A(f"    v_xor_b32 v{X+2}, v{X+2}, v{xHH}        ; x ^ hh")
A(f"    v_lshlrev_b32 v{X+3}, 10, v{X}")
A(f"    v_lshl_add_u32 v{X+3}, v{X+1}, 7, v{X+3}")
A(f"    v_add_u32 v{X+3}, s{sSTG}, v{X+3}")
for s in range(4):
    A(f"    v_xor_b32 v{vHBA[s]}, {2*s}, v{X+2}")
    A(f"    v_lshl_add_u32 v{vHBA[s]}, v{vHBA[s]}, 4, v{X+3}")
A(f"    v_lshl_add_u32 v{vEAR}, v{xE32}, 5, v{xH16}")
A(f"    v_add_u32 v{vEAR}, s{sSTG}, v{vEAR}")
A(f"    v_add_u32 v{vEAR}, 4096, v{vEAR}")
for j in range(4):
    A(f"    v_mov_b32 v{X+8+j}, 0")
A(f"    ds_write_b128 v{xL16}, {vr(X+8,4)} offset:{L_Z}")
A("    v_cmp_gt_u32 vcc, 32, v0")
A("    s_and_saveexec_b64 s[48:49], vcc")
A(f"    v_mul_u32_u24 v{X}, {ID_RS}, v0")
for j in range(5):
    A(f"    ds_write_b128 v{X}, {vr(X+8,4)} offset:{L_ID + 16*j}")
A(f"    v_lshrrev_b32 v{X+1}, 4, v0")
A(f"    v_lshl_add_u32 v{X}, v{X+1}, 5, v{X}")
A(f"    v_bfe_u32 v{X+1}, v0, 2, 1")
A(f"    v_lshl_add_u32 v{X}, v{X+1}, 4, v{X}")
A(f"    v_bfe_u32 v{X+1}, v0, 3, 1")
A(f"    v_lshl_add_u32 v{X}, v{X+1}, 3, v{X}")
A(f"    v_and_b32 v{X+1}, 3, v0")
A(f"    v_lshl_add_u32 v{X}, v{X+1}, 1, v{X}")
A("    v_cmp_gt_u32 vcc, 31, v0")
A("    s_and_b64 exec, exec, vcc")
A(f"    ds_write_b16 v{X}, v{vONE} offset:{L_ID}")
A("    s_mov_b64 exec, s[48:49]")
OWNE = int(os.environ.get("OWNE", "0"))
if F16:
    A(f"    v_mov_b32 v{vONE}, 0x3c00")
if OWNE == 1:
    own_loads()
T_ = X + 4
A(f"    s_lshl_b32 s3, s{sW}, 2")
A(f"    s_add_u32 s3, s3, {L_TB}")
A(f"    v_lshl_add_u32 v{X}, v{xLANE}, 5, s3")
A(f"    s_lshl_b32 s{sLB}, s{sW}, 11")
A(f"    s_mov_b32 s{sBASE}, 0")
A("    s_mov_b32 s96, 0")
sFAST = 77
F_, L_, DF, BS = SEG, SEG + 4, SEG + 8, X + 36
A(f"    v_lshrrev_b32 v{X+3}, 4, v{xLANE}")
A(f"    s_lshl_b32 s3, s{sW}, 8")
A(f"    s_add_u32 s3, s3, {L_TB}")
A(f"    v_lshl_add_u32 v{X+1}, v{X+3}, 11, s3")
A(f"    v_mul_u32_u24 v{X+2}, {C*8}, v{X+3}")
A(f"    v_and_b32 v{X+3}, 15, v{xLANE}")
A(f"    v_lshl_add_u32 v{X+2}, v{X+3}, 4, v{X+2}")
A(f"    s_mul_i32 s3, s{sW}, {32*C*8}")
A(f"    v_add_u32 v{X+2}, s3, v{X+2}")
A(f"    v_lshlrev_b32 v{X+3}, 5, v{xLANE}")
A(f"    v_add_u32 v{X+3}, {L_TB}, v{X+3}")
A(f"    s_lshl_b32 s4, s{sW}, 13")
A(f"    s_add_u32 s4, s4, {L_RAW}")
STAMP(2)
A(f"    s_waitcnt vmcnt({NOWN if OWNE == 1 else 0}) lgkmcnt(0)")
STAMP(2)
A("    s_barrier")
STAMP(0)
RMASK = int(os.environ.get("RMASK", "1"))
if not RMASK:
    for i in range(8):
        A(f"    ds_read_b32 v{DF+i}, v{X+1} offset:{32*i}")
    for j in range(4):
        A(f"    ds_read_b32 v{T_+j}, v{X} offset:{2048*j}")
    for i in range(8):
        A(f"    s_add_u32 m0, s4, {1024*i}")
        A(f"    s_mov_b32 s3, {4*C*8*i}")
        A(f"    s_waitcnt lgkmcnt({11-i})")
        A(f"    v_and_b32 v{DF+i}, 0xfffe, v{DF+i}")
        A(f"    v_lshl_add_u32 v{DF+i}, v{DF+i}, 3, v{X+2}")
        A(f"    buffer_load_dwordx4 v{DF+i}, s[{S_WS}:{S_WS+3}], s3 offen lds")
else:
    for i in range(8):
        A(f"    ds_read2_b32 v[{DF+2*i}:{DF+2*i+1}], v{X+1} offset0:{8*i} offset1:{8*i+7}")
    for j in range(4):
        A(f"    ds_read_b32 v{T_+j}, v{X} offset:{2048*j}")
    A(f"    v_and_b32 v{BS}, 15, v{xLANE}")
    A(f"    v_lshlrev_b32 v{BS}, 1, v{BS}              ; 2p")
    A(f"    v_mov_b32 v{BS+1}, -16")
    for i in range(8):
        f, l = DF + 2 * i, DF + 2 * i + 1
        A(f"    s_add_u32 m0, s4, {1024*i}")
        A(f"    s_mov_b32 s3, {4*C*8*i}")
        A(f"    s_waitcnt lgkmcnt({11-i})")
        A(f"    v_and_b32 v{f}, 0xfffe, v{f}")
        A(f"    v_add_u32_sdwa v{l}, v{l}, v{l} dst_sel:DWORD dst_unused:UNUSED_PAD src0_sel:WORD_0 src1_sel:WORD_1")
        A(f"    v_sub_u32 v{l}, v{l}, v{f}")
        A(f"    v_cmp_lt_i32 vcc, v{BS}, v{l}")
        A(f"    v_lshl_add_u32 v{f}, v{f}, 3, v{X+2}")
        A(f"    s_nop 0")
        A(f"    v_cndmask_b32 v{f}, v{BS+1}, v{f}, vcc")
        A(f"    buffer_load_dwordx4 v{f}, s[{S_WS}:{S_WS+3}], s3 offen lds")
for j in range(4):
    A(f"    ds_read2_b32 v[{F_+2*j}:{F_+2*j+1}], v{X+3} offset0:0 offset1:7")
    if j < 3:
        A(f"    v_add_u32 v{X+3}, 2048, v{X+3}")
if not OWNE:
    own_loads()
STAMP(2)
A(f"    v_cmp_gt_u32 vcc, 62, v{xLANE}")
A(f"    v_cmp_gt_u32 s[48:49], 63, v{xLANE}")
A(f"    v_lshlrev_b32 v{X}, 7, v{xLANE}")
A("    s_waitcnt lgkmcnt(0)")
for j in range(4):
    f, l = F_ + 2 * j, F_ + 2 * j + 1
    A(f"    v_and_b32 v{f}, 0xfffe, v{f}")
    A(f"    v_lshrrev_b32 v{X+1}, 16, v{l}")
    A(f"    v_and_b32 v{l}, 0xffff, v{l}")
    A(f"    v_add_u32 v{l}, v{l}, v{X+1}")
    A(f"    v_sub_u32 v{l}, v{l}, v{f}")
    A(f"    v_cndmask_b32 v{l}, 0, v{l}, {'s[48:49]' if j < 2 else 'vcc'}")
    A(f"    v_sub_u32 v{BS+j}, v{X}, v{f}")
    A(f"    v_add_u32 v{BS+j}, {32*j + L_RAW//8}, v{BS+j}")
A(f"    v_max_u32 v{F_+1}, v{F_+1}, v{F_+3}")
A(f"    v_max3_u32 v{F_+1}, v{F_+1}, v{F_+5}, v{F_+7}")
A(f"    v_cmp_lt_u32 vcc, {int(os.environ.get('WIN', '32'))}, v{F_+1}")
A(f"    s_mov_b32 s{sFAST}, {L_Z}")
A("    s_cmp_eq_u64 vcc, 0")
A("    s_cbranch_scc1 LM_round")
A("LM_slowbase:")
A(f"    s_mov_b32 s{sFAST}, -128")
A(f"    v_mul_u32_u24 v{BS}, {4*C}, v{xLANE}")
for j in range(1, 4):
    A(f"    v_add_u32 v{BS+j}, {j*C}, v{BS}")
A("LM_round:")
CN, SM, PP, DL, MK = X + 8, X + 12, X + 16, X + 20, X + 24
xMKA, xI = X + 32, X + 33
A(f"    v_lshl_add_u32 v{xMKA}, v{xLANE}, 5, s{sLB}")
for j in range(4):
    A(f"    v_mov_b32 v{MK+j}, 0")
A(f"    ds_write_b128 v{xMKA}, {vr(MK,4)} offset:{L_W1}")
A(f"    ds_write_b128 v{xMKA}, {vr(MK,4)} offset:{L_W1+16}")
A(f"    v_cmp_gt_u32 vcc, 62, v{xLANE}")
A(f"    v_cmp_gt_u32 s[48:49], 63, v{xLANE}")
A("    s_nop 0")
A(f"    v_cndmask_b32 v{T_+2}, 0, v{T_+2}, vcc")
A(f"    v_cndmask_b32 v{T_+3}, 0, v{T_+3}, vcc")
A(f"    v_cndmask_b32 v{T_}, 0, v{T_}, s[48:49]")
A(f"    v_cndmask_b32 v{T_+1}, 0, v{T_+1}, s[48:49]")
for k in range(4):
    A(f"    v_lshrrev_b32 v{CN+k}, 16, v{T_+k}")
for k in range(4):
    A(f"    v_and_b32 v{T_+k}, 0xffff, v{T_+k}")
A(f"    v_add_u32 v{SM}, v{CN}, v{CN+1}")
A(f"    v_add_u32 v{SM+1}, v{SM}, v{CN+2}")
A(f"    v_add_u32 v{SM+2}, v{SM+1}, v{CN+3}")
A(f"    v_mov_b32 v{SM+3}, v{SM+2}")
wave_scan(SM + 3)
A(f"    v_readlane_b32 s{sT}, v{SM+3}, 63")
A(f"    v_sub_u32 v{PP}, v{SM+3}, v{SM+2}")
A(f"    v_add_u32 v{PP+1}, v{PP}, v{CN}")
A(f"    v_add_u32 v{PP+2}, v{PP}, v{SM}")
A(f"    v_add_u32 v{PP+3}, v{PP}, v{SM+1}")
for k in range(4):
    A(f"    v_add_u32 v{DL+k}, v{BS+k}, v{T_+k}")
    A(f"    v_sub_u32 v{DL+k}, v{DL+k}, v{PP+k}")
A(f"    s_add_u32 s3, s{sLB}, {L_W1}")
A(f"    s_add_u32 s4, s{sLB}, {L_W0}")
A(f"    v_mov_b32 v{SM+1}, s4")
for k in range(4):
    A(f"    v_subrev_u32 v{PP+k}, s{sBASE}, v{PP+k}     ; q")
    A(f"    v_add_u32 v{CN+k}, v{CN+k}, v{PP+k}         ; e")
    A(f"    v_max_i32 v{PP+k}, 0, v{PP+k}")
    A(f"    v_min_i32 v{CN+k}, {CAP}, v{CN+k}")
    A(f"    v_cmp_lt_i32 vcc, v{PP+k}, v{CN+k}")
    A(f"    v_lshl_add_u32 v{PP+k}, v{PP+k}, 2, s3")
    A("    s_nop 0")
    A(f"    v_cndmask_b32 v{PP+k}, v{SM+1}, v{PP+k}, vcc")
    A(f"    ds_write_b32 v{PP+k}, v{DL+k}")
A(f"    ds_read_b128 {vr(MK,4)}, v{xMKA} offset:{L_W1}")
A(f"    ds_read_b128 {vr(MK+4,4)}, v{xMKA} offset:{L_W1+16}")
xEM, xNEG = X + 34, X + 35
A(f"    v_lshl_add_u32 v{xI}, v{xLANE}, 3, s{sBASE}")
A(f"    v_mov_b32 v{xNEG}, s{sFAST}")
A(f"    v_mov_b32 v{xEM}, 0")
A("    s_waitcnt lgkmcnt(0)")
for k in range(1, 8):
    A(f"    v_max_u32 v{MK+k}, v{MK+k}, v{MK+k-1}")
A("    s_nop 1")
A(f"    v_mov_b32_dpp v{xEM}, v{MK+7} wave_shr:1 row_mask:0xf bank_mask:0xf")
for sh in (1, 2, 4, 8):
    A("    s_nop 1")
    A(f"    v_max_u32_dpp v{xEM}, v{xEM}, v{xEM} row_shr:{sh} row_mask:0xf bank_mask:0xf bound_ctrl:0")
A("    s_nop 1")
A(f"    v_max_u32_dpp v{xEM}, v{xEM}, v{xEM} row_bcast:15 row_mask:0xa bank_mask:0xf")
A("    s_nop 1")
A(f"    v_max_u32_dpp v{xEM}, v{xEM}, v{xEM} row_bcast:31 row_mask:0xc bank_mask:0xf")
RR, W0C, W1C = X, X + 16, X + 24
NS = 8
for k in range(NS):
    A(f"    s_sub_u32 s3, s{sT}, {k}")
    A(f"    v_max_u32 v{MK+k}, v{MK+k}, v{xEM}")
    A(f"    v_cmp_gt_i32 vcc, s3, v{xI}")
    A(f"    v_add_u32 v{MK+k}, v{MK+k}, v{xI}")
    A(f"    v_lshlrev_b32 v{MK+k}, 3, v{MK+k}")
    A(f"    v_cndmask_b32 v{MK+k}, v{xNEG}, v{MK+k}, vcc")
A(f"    s_cmp_ge_i32 s{sFAST}, 0")
A("    s_cbranch_scc1 LM_fast1")
for k in range(NS):
    A(f"    buffer_load_dwordx2 {vr(RR+2*k,2)}, v{MK+k}, s[{S_WS}:{S_WS+3}], 0 offen offset:{8*k}")
A("LM_fast1:")
A(f"    s_sub_u32 s{sCNT}, s{sT}, s{sBASE}")
A(f"    s_min_u32 s{sCNT}, s{sCNT}, {CAP}")
A(f"    s_add_u32 s3, s{sCNT}, 31")
A(f"    s_lshr_b32 s{sNT}, s3, 5               ; ntiles")
RG = W0C
A(f"    v_and_b32 v{RG}, 7, v{xE32}")
A(f"    v_lshrrev_b32 v{RG+1}, 3, v{xE32}")
A(f"    v_lshl_add_u32 v{RG}, v{RG}, 2, v{RG+1}     ; p(e)")
A(f"    v_lshl_add_u32 v{vL0E}, v{RG}, 2, s{sLB}")
A(f"    v_lshrrev_b32 v{RG}, 3, v{xLANE}")
A(f"    v_lshl_add_u32 v{vL0D}, v{RG}, 4, s{sLB}")
A(f"    v_bfe_u32 v{RG}, v{xLANE}, 1, 3            ; (l/2)%8")
A(f"    v_lshrrev_b32 v{RG+1}, 4, v{xLANE}         ; (l/2)/8")
A(f"    v_lshl_add_u32 v{RG}, v{RG}, 2, v{RG+1}")
A(f"    v_lshl_add_u32 v{vL1P}, v{RG}, 2, s{sLB}")
A(f"    s_cmp_lg_u32 s{sBASE}, 0")
A("    s_cbranch_scc1 LM_noat")
A(f"    v_add_u32 v{RG}, {L_WF}, v{xL16}")
for f in range(8):
    A(f"    ds_read_b128 {vr(ACC+4*f,4)}, v{RG} offset:{1024*f}")
for f in range(10):
    A(f"    ds_read_b128 {vr(WSF+4*f,4)}, v{RG} offset:{8192+1024*f}")
for f in range(4):
    A(f"    ds_read_b128 {vr(WX+4*f,4)}, v{RG} offset:{8192+1024*(10+f)}")
A(f"    ds_read_b64 {vr(EA,2)}, v{RG} offset:{8192+1024*14}")
A(f"    s_waitcnt vmcnt({0 if OWNE else NOWN}) lgkmcnt(0)")
A("    s_barrier")
STAMP()
if OWNE == 2:
    own_loads(SEG + 24)
A("LM_noat:")
A(f"    s_cmp_ge_i32 s{sFAST}, 0")
A("    s_cbranch_scc1 LM_fast2")
A("    s_waitcnt vmcnt(0)")
A("    s_branch LM_recs")
A("LM_fast2:")
for k in range(NS):
    A(f"    ds_read_b64 {vr(RR+2*k,2)}, v{MK+k} offset:{8*k}")
A("LM_recs:")
if not PH:
    A(f"    v_mov_b32 v{xNEG}, {PADNB}")
    for k in range(NS):
        A(f"    s_sub_u32 s3, s{sT}, {k}")
        A(f"    v_cmp_gt_i32 vcc, s3, v{xI}")
        A(f"    s_waitcnt lgkmcnt({NS-1-k})")
        A(f"    v_mov_b32 v{W1C+k}, v{RR+2*k+1}")
        A(f"    v_cndmask_b32 v{W0C+k}, v{xNEG}, v{RR+2*k}, vcc")
    A(f"    ds_write_b128 v{xMKA}, {vr(W0C,4)} offset:{L_W0}")
    A(f"    ds_write_b128 v{xMKA}, {vr(W0C+4,4)} offset:{L_W0+16}")
    A(f"    ds_write_b128 v{xMKA}, {vr(W1C,4)} offset:{L_W1}")
    A(f"    ds_write_b128 v{xMKA}, {vr(W1C+4,4)} offset:{L_W1+16}")
else:
    FS = (64, 66, 68, 70, 72, 74, 78, 80)
    RK = SO
    SC, BA, BB, TB = BS, BS + 1, BS + 2, BS + 3
    TA = W1C
    A(f"    v_mov_b32 v{xNEG}, 0x{0x007fff80 | PADNB:x}")
    A(f"    s_mov_b32 s4, {TH << 7}")
    A(f"    v_mov_b32 v{RK}, 0")
    for k in range(NS):
        A(f"    s_sub_u32 s3, s{sT}, {k}")
        A(f"    v_cmp_gt_i32 vcc, s3, v{xI}")
        A(f"    s_waitcnt lgkmcnt({NS-1-k})")
        A(f"    s_nop 0")
        A(f"    v_cndmask_b32 v{W0C+k}, v{xNEG}, v{RR+2*k}, vcc")
        A(f"    v_cmp_le_u32 s[{FS[k]}:{FS[k]+1}], s4, v{W0C+k}")
        A(f"    s_nop 1")
        A(f"    v_addc_co_u32 v{RK+k+1 if k < 7 else BA}, vcc, v{RK+k}, 0, s[{FS[k]}:{FS[k]+1}]")
    A(f"    v_mov_b32 v{SC}, v{BA}")
    wave_scan(SC)
    A(f"    v_readlane_b32 s3, v{SC}, 63")
    A(f"    v_sub_u32 v{SC}, v{SC}, v{BA}        ; P")
    A(f"    s_sub_u32 s3, {CAP}, s3               ; N0")
    A(f"    s_lshl_b32 s3, s3, 2")
    A(f"    s_add_u32 s5, s{sLB}, {L_W0}")
    A(f"    s_add_u32 s3, s3, s5")
    A(f"    v_lshl_add_u32 v{BA}, v{SC}, 2, s3")
    A(f"    v_lshlrev_b32 v{BB}, 3, v{xLANE}")
    A(f"    v_sub_u32 v{BB}, v{BB}, v{SC}")
    A(f"    v_lshl_add_u32 v{BB}, v{BB}, 2, s5")
    assert L_W1 - L_W0 == 64 * 256
    for k in range(NS):
        A(f"    v_lshl_add_u32 v{TA+k}, v{RK+k}, 2, v{BA}")
        A(f"    v_sub_u32 v{TB}, {k}, v{RK+k}")
        A(f"    v_lshl_add_u32 v{TB}, v{TB}, 2, v{BB}")
        A(f"    v_cndmask_b32 v{TA+k}, v{TB}, v{TA+k}, s[{FS[k]}:{FS[k]+1}]")
        A(f"    ds_write2st64_b32 v{TA+k}, v{W0C+k}, v{RR+2*k+1} offset0:0 offset1:64")
A(f"    s_cmp_lg_u32 s{sBASE}, 0")
A("    s_cbranch_scc1 LM_nob3")
A("    s_barrier")
A("LM_nob3:")
STAMP()
def at_block():
    A(f"    v_mov_b32 v{RG+2}, 0")
    A(f"    v_mov_b32 v{RG+3}, 0")
    A(f"    v_lshl_add_u32 v{RG}, v{xHH}, 5, v{vSWL}")
    for j in range(4):
        A(f"    ds_write_b64 v{RG}, {vr(RG+2,2)} offset:{8*j}")
    for t in range(2):
        for s_ in range(4):
            c = "0" if s_ == 0 else vr(SEG+16*t,16)
            A(f"    v_mfma_f32_32x32x16_bf16 {vr(SEG+16*t,16)}, {vr(HB+4*s_,4)}, {vr(ACC+4*(2*s_+t),4)}, {c}")
    A(f"    v_lshl_add_u32 v{RG}, v{xE32}, 4, s{sPAB}")
    A(f"    v_mov_b32 v{PD+2}, v{PD+1}")
    A(f"    v_and_b32 v{PD+1}, s{sHI}, v{PD}")
    A(f"    v_lshlrev_b32 v{PD}, 16, v{PD}")
    A(f"    ds_write_b96 v{RG}, {vr(PD,3)}")
    for j in range(4):
        A(f"    v_mov_b32 v{PAC+j}, 0")
    A(f"    s_mov_b32 s3, 0x{LOG2E:08x}")
    A("    s_nop 7")
    for r in range(32):
        A(f"    v_mul_f32 v{SEG+r}, s3, v{SEG+r}")
    for t in range(2):
        for u in range(2):
            for j in range(4):
                A(f"    v_cvt_pk_bf16_f32 v{atf(u,t)+j}, v{SEG+16*t+8*u+2*j}, v{SEG+16*t+8*u+2*j+1}")
        A(f"    v_bfi_b32 v{atf(1,t)+3}, v{vMASK}, v{EA+t}, v{atf(1,t)+3}")
    for r in range(32):
        A(f"    v_mov_b32 v{SEG+r}, 0")


def V(t): return ('v', t, None)
def M(t): return ('m', t, None)
def DS(t, tag=None): return ('ds', t, tag)
def VM(t): return ('vm', t, None)
def S(t): return ('s', t, None)
def WL(tag): return ('wl', None, tag)
def WV(n): return ('s', f"s_waitcnt vmcnt({n})", None)

def mf(d, a, b, c0=False, ty="bf16"):
    return M(f"v_mfma_f32_32x32x16_{ty} {vr(d,16)}, {vr(a,4)}, {vr(b,4)}, {'0' if c0 else vr(d,16)}")
def chain(t):
    d = ACC + 16 * t
    l = [mf(d, wsf(s, t), HB + 4 * s, s == 0) for s in range(4)]
    l.append(mf(d, WAE + 4 * t, EA))
    l += [mf(d, atf(u, t), SO + 4 * u) for u in range(2)]
    return l
def seg(t, s):
    return mf(SEG + 16 * t, TRM + 4 * s, TRS + 4 * s, ty=MT)
def csm(t, u):
    c = '0' if (t == 0 and u == 0) else vr(CS, 4)
    return M(f"v_mfma_f32_16x16x32_{MT} {vr(CS,4)}, {vr(WX+8*t+4*u,4)}, {vr(PK+8*t+4*u,4)}, {c}")
def list_reads(k):
    return [DS(f"ds_read_b128 {vr(W0D,4)}, v{vL0D} offset:{L_W0 + 128*k}"),
            DS(f"ds_read_b32 v{vW1P}, v{vL1P} offset:{L_W1 + 128*k}"),
            DS(f"ds_read_b32 v{vW0E3}, v{vL0E} offset:{L_W0 + 128*k}", 'L3')]
def dma_addr():
    l = [V(f"v_and_or_b32 v{W0D+i}, v{W0D+i}, s{sAM}, v{vSWZ[i&1]}") for i in range(4)]
    if os.environ.get("HOTEA"):
        l.append(V(f"v_and_or_b32 v{vW1P}, v{vW1P}, s{sHOT}, v{vEAO}"))
    else:
        l.append(V(f"v_add_u32 v{vW1P}, v{vW1P}, v{vEAO}"))
    l.append(V(f"v_bfe_u32 v{vW0E3}, v{vW0E3}, 7, 16"))
    return l
def dma_pairs(q):
    l = []
    for i in range(4):
        l.append((S(f"s_add_u32 m0, s{sSTG}, {q*ST_SZ + i*1024}"),
                  VM(f"buffer_load_dwordx4 v{W0D+i}, s[{S_H}:{S_H+3}], 0 offen lds")))
    l.append((S(f"s_add_u32 m0, s{sSTG}, {q*ST_SZ + 4096}"),
              VM(f"buffer_load_dwordx4 v{vW1P}, s[{S_EA}:{S_EA+3}], 0 offen{EANT} lds")))
    pos = [S(f"s_mov_b64 exec, s[{sHIGH}:{sHIGH+1}]"),
           VM(f"buffer_load_dwordx2 {vr(PS[q],2)}, v{vW0E3}, s[{S_P4}:{S_P4+3}], s{sP4O} idxen"),
           S("s_mov_b64 exec, -1")]
    return l, pos
def stage_reads(q):
    l = [DS(f"ds_read_b128 {vr(HB+4*s,4)}, v{vHBA[s]} offset:{q*ST_SZ}") for s in range(4)]
    l.append(DS(f"ds_read_b128 {vr(EA,4)}, v{vEAR} offset:{q*ST_SZ}"))
    return l
def nb_ops(q):
    return [V(f"v_and_b32 v{vNB}, 31, v{vW0E}"),
            V(f"v_mad_u32_u24 v{vW0E}, v{vNB}, s{sIDRS}, v{vIDB}"),
            V(f"v_lshl_add_u32 v{PD}, v{vNB}, 4, s{sPAB}")]
def so_reads(q):
    return [DS(f"ds_read_b128 {vr(SO,4)}, v{vW0E}"),
            DS(f"ds_read_b128 {vr(SO+4,4)}, v{vW0E} offset:32"),
            DS(f"ds_read_b96 {vr(PD,3)}, v{PD}", 'PD')]
def pre_ops(q):
    d = DX[q]; p = PS[q]
    return [V(f"v_sub_f32 v{PD}, v{PD}, v{p+2}"),
            V(f"v_sub_f32 v{PD+1}, v{PD+1}, v{p}"),
            V(f"v_sub_f32 v{PD+2}, v{PD+2}, v{p+1}"),
            V(f"v_cvt_pk_bf16_f32 v{PD}, v{PD}, v{PD+1}"),
            V(f"v_cvt_pk_bf16_f32 v{PD+2}, v{PD+2}, v{PD+2}"),
            V(f"v_lshlrev_b32 v{d}, 16, v{PD}"),
            V(f"v_and_b32 v{d+1}, s{sHI}, v{PD}"),
            V(f"v_lshlrev_b32 v{d+2}, 16, v{PD+2}"),
            V(f"v_mul_f32 v{PD+1}, v{d}, v{d}"),
            V(f"v_fma_f32 v{PD+1}, v{d+1}, v{d+1}, v{PD+1}"),
            V(f"v_fma_f32 v{PD+1}, v{d+2}, v{d+2}, v{PD+1}"),
            V(f"v_cvt_pk_bf16_f32 v{PD+1}, v{PD+1}, v{PD+1}"),
            V(f"v_bfi_b32 v{SO+7}, v{vMASK}, v{PD+1}, v{SO+7}")]
def unp_ops(q):
    p = PS[q]
    return [V(f"v_lshlrev_b32 v{p+2}, 16, v{p}"),
            V(f"v_and_b32 v{p}, s{sHI}, v{p}")]
def post_ops(q):
    d = DX[q]
    va = [V(f"v_mul_f32 v{CS}, s{sLN2}, v{CS}"),
          V(f"v_cvt_pk_bf16_f32 v{CS}, v{CS}, v{CS}"),
          V(f"v_and_b32 v{CS}, s{sHI}, v{CS}"),
          V(f"v_mul_f32 v{d}, v{d}, v{CS}"),
          V(f"v_mul_f32 v{d+1}, v{d+1}, v{CS}"),
          V(f"v_mul_f32 v{d+2}, v{d+2}, v{CS}"),
          V(f"{CVT} v{CS+2}, v{d}, v{d+1}"),
          V(f"{CVT} v{CS+3}, v{d+2}, v{d+2}")]
    da = [S(f"s_mov_b64 exec, s[{sHIGH}:{sHIGH+1}]"),
          DS(f"ds_write_b64 v{vSWL}, {vr(CS+2,2)} offset:64"),
          S("s_mov_b64 exec, -1")]
    da += [DS(f"ds_read_b64_tr_b16 {vr(TRM+4*s+2*p,2)}, v{vTRP} offset:{(4*s+p)*MS_RS}", 'TRP' if (s, p) == (1, 1) else None)
           for s in range(2) for p in range(2)]
    pm = [M(f"v_mfma_f32_16x16x32_{MT} {vr(PAC,4)}, {vr(TRM+4*s,4)}, {vr(TRS+4*s,4)}, {vr(PAC,4)}") for s in range(2)]
    return va, da, pm
def m_write(t, qs):
    return [DS(f"ds_write_b64 v{vMWL}, {vr(PK+8*t+2*q,2)} offset:{16*q}") for q in qs]
def trm_reads(tag):
    l = [DS(f"ds_read_b64_tr_b16 {vr(TRM+4*s+2*p,2)}, v{vTRL} offset:{(4*s+p)*MS_RS}") for s in range(2) for p in range(2)]
    l[-1] = (l[-1][0], l[-1][1], tag)
    return l
def trs_reads():
    l = [DS(f"ds_read_b64_tr_b16 {vr(TRS+4*s+2*p,2)}, v{vTRL} offset:{(4*s+p)*MS_RS+64}") for s in range(2) for p in range(2)]
    l[-1] = (l[-1][0], l[-1][1], 'TRS')
    return l
SA_OP = V(f"v_lshl_add_u32 v{vSA}, v{vNB}, 1, v{vSWL}")

def silu_stream(t):
    a = ACC + 16 * t
    l = []
    if F16:
        LO = "dst_sel:WORD_0 dst_unused:UNUSED_PRESERVE src0_sel:WORD_0"
        HI = "dst_sel:WORD_1 dst_unused:UNUSED_PRESERVE src0_sel:WORD_1"
        for g in range(2):
            js = range(4)
            pk = lambda j: PK + 8 * t + 4 * g + j
            tm = lambda j: TMP + 4 * g + j
            l += [V(f"v_cvt_pk_f16_f32 v{pk(j)}, v{a+8*g+2*j}, v{a+8*g+2*j+1}") for j in js]
            l += [V(f"v_exp_f16 v{tm(j)}, v{pk(j)}") for j in js]
            l += [V(f"v_exp_f16_sdwa v{tm(j)}, v{pk(j)} {HI}") for j in js]
            l += [V(f"v_pk_add_f16 v{tm(j)}, v{tm(j)}, s{sONE2}") for j in js]
            l += [V(f"v_rcp_f16_sdwa v{tm(j)}, v{tm(j)} {LO}") for j in js]
            l += [V(f"v_rcp_f16_sdwa v{tm(j)}, v{tm(j)} {HI}") for j in js]
            l += [V(f"v_pk_mul_f16 v{pk(j)}, v{pk(j)}, v{tm(j)}") for j in js]
        return l
    for g in range(2):
        rs = range(8 * g, 8 * g + 8)
        l += [V(f"v_exp_f32 v{TMP+r%8}, v{a+r}") for r in rs]
        l += [V(f"v_add_f32 v{TMP+r%8}, 1.0, v{TMP+r%8}") for r in rs]
        l += [V(f"v_rcp_f32 v{TMP+r%8}, v{TMP+r%8}") for r in rs]
        l += [V(f"v_mul_f32 v{a+r}, v{a+r}, v{TMP+r%8}") for r in rs]
        l += [V(f"v_cvt_pk_bf16_f32 v{PK+8*t+4*g+j}, v{a+8*g+2*j}, v{a+8*g+2*j+1}") for j in range(4)]
    return l

def remap(p):
    g, r = divmod(p, 36)
    if r < 8: n = r
    elif r < 16: n = 8 + (r - 8) // 2
    elif r < 24: n = 12 + (r - 16)
    elif r < 32: n = 20 + (r - 24) // 2
    else: n = 24 + (r - 32)
    return 28 * g + n
def merge(main, side):
    res = []
    if F16:
        side = [((p * 28 + 35) // 36, o) for p, o in side]
    side = sorted(enumerate(side), key=lambda x: (x[1][0], x[0]))
    k = 0
    for i in range(len(main) + 1):
        while k < len(side) and side[k][1][0] <= i:
            ops = side[k][1][1]
            res += ops if isinstance(ops, list) else [ops]
            k += 1
        if i < len(main):
            res.append(main[i])
    assert k == len(side)
    return res

VMW = int(os.environ.get("VMW", "0"))
def wv6():
    if not VMW:
        return [WV(6)]
    l = [WV(6)] if VMW == 2 else []
    l += [S("s_memtime s[64:65]"), S("s_waitcnt lgkmcnt(0)"), WV(6), S("s_memtime s[66:67]"), S("s_waitcnt lgkmcnt(0)"),
          S("s_sub_u32 s64, s66, s64"), S("s_add_u32 s96, s96, s64")]
    return l
SPREAD = int(os.environ.get("SPREAD", "0"))
SPOS = [int(x) for x in os.environ.get("SPOS", "12,23,34,45,56,67").split(",")]
def phaseA(par):
    q = 1 - par
    ch = chain(1)
    pv, pd, pm = post_ops(q)
    nb = nb_ops(q)
    sd = [(0, DS(f"ds_read_b32 v{vW0E}, v{vL0E} offset:{L_W0 + 128*(par+1)}", 'W0E')),
          (0, ch[0]), (5, [WL('TRM1'), seg(1, 0)]), (8, ch[1]), (12, seg(1, 1)), (16, ch[2]),
          (20, csm(1, 0)), (24, ch[3]), (27, csm(1, 1)), (30, ch[4]),
          (36, m_write(0, (0, 1))), (36, ch[5]),
          (38, wv6() + stage_reads(q)), (42, ch[6]),
          (39, pv[0]), (40, pv[1]), (41, pv[2]), (43, pv[3]), (44, pv[4]), (45, pv[5]), (46, pv[6]), (47, [pv[7]] + pd),
          (48, [WL('W0E'), nb[0]]), (49, nb[1]), (50, nb[2]), (51, so_reads(q)),
          (53, unp_ops(q)[0]), (55, unp_ops(q)[1]),
          (64, [WL('TRP'), pm[0]]), (67, pm[1]),
          (60, DS(f"ds_write_b16 v{vSA}, v{vONE}")),
          (72, m_write(0, (2, 3)) + trm_reads('TRM0') + trs_reads() + [DS(f"ds_write_b16 v{vSA}, v{vZERO}")])]
    if SPREAD:
        sd += [(57, list_reads(par + 3))]
    if BAL:
        sd += [(2, V(f"v_mov_b32 v{W0D}, s{sNT}")), (3, V(f"v_mov_b32 v{W0D+1}, s{sPGW}")),
               (4, V(f"v_mov_b32 v{W0D+2}, s{sPGR}")),
               (6, [DS(f"ds_write_b32 v{W0D+1}, v{W0D}"), DS(f"ds_read_b32 v{W0D+3}, v{W0D+2}", 'PG')]),
               (33, [WL('PG'), V(f"v_readfirstlane_b32 s{sPGP}, v{W0D+3}")]),
               (35, [S("s_setprio 0"), S(f"s_cmp_gt_u32 s{sNT}, s{sPGP}"), S(f"s_cbranch_scc0 LM_pg{par}"),
                     S("s_setprio 1"), S(f"LM_pg{par}:")])]
    return merge(silu_stream(0), sd)

def phaseB(par):
    q = 1 - par
    ch = chain(0)
    pr = pre_ops(q)
    da = dma_addr()
    dp, dpos = dma_pairs(q)
    sd = [(0, list_reads(par + 3)),
          (31, [S(f"s_cmp_lt_u32 s{sNT}, 4"), S(f"s_cselect_b32 s{S_H+2}, 0, s{S_H+2}")]),
          (32, [S(f"s_cselect_b32 s{S_EA+2}, 0, s{S_EA+2}"), S(f"s_cselect_b32 s{S_P4+2}, 0, s{S_P4+2}")]),
          (2, [WL('PD'), pr[0]]), (3, pr[1]), (4, pr[2]), (6, pr[3]), (7, pr[4]), (9, pr[5]), (10, pr[6]),
          (11, pr[7]), (13, pr[8]), (14, pr[9]), (15, pr[10]), (17, pr[11]), (18, pr[12]),
          (4, ch[0]), (8, [WL('TRS'), seg(0, 0)]), (12, ch[1]), (16, seg(0, 1)), (20, ch[2]),
          (23, csm(0, 0)), (27, ch[3]), (30, csm(0, 1)), (33, ch[4]),
          (36, m_write(1, (0, 1))), (19, SA_OP), (39, ch[5]), (46, ch[6]),
          (21, [WL('L3'), da[0]]), (22, da[1]), (24, da[2]), (25, da[3]), (26, da[4]), (28, da[5]),
          (39, dp[0][0]), (41, dp[0][1]), (43, dp[1][0]), (44, dp[1][1]), (47, dp[2][0]), (48, dp[2][1]),
          (49, dp[3][0]), (51, dp[3][1]), (52, dp[4][0]), (54, dp[4][1]), (56, dpos),
          (72, m_write(1, (2, 3)) + trm_reads('TRM1'))]
    if SPREAD:
        sd = [(0, [S(f"s_cmp_lt_u32 s{sNT}, 4"), S(f"s_cselect_b32 s{S_H+2}, 0, s{S_H+2}")]),
          (1, [S(f"s_cselect_b32 s{S_EA+2}, 0, s{S_EA+2}"), S(f"s_cselect_b32 s{S_P4+2}, 0, s{S_P4+2}")]),
          (2, [WL('L3'), pr[0]]), (3, pr[1]), (4, pr[2]), (6, pr[3]), (7, pr[4]), (13, pr[5]), (14, pr[6]),
          (15, pr[7]), (17, pr[8]), (18, pr[9]), (21, pr[10]), (22, pr[11]), (24, pr[12]),
          (4, ch[0]), (8, [WL('TRS'), seg(0, 0)]), (12, ch[1]), (16, seg(0, 1)), (20, ch[2]),
          (23, csm(0, 0)), (27, ch[3]), (30, csm(0, 1)), (33, ch[4]),
          (36, m_write(1, (0, 1))), (25, SA_OP), (39, ch[5]), (46, ch[6]),
          (5, da[0]), (9, da[1]), (10, da[2]), (11, da[3]), (26, da[4]), (28, da[5]),
          (72, m_write(1, (2, 3)) + trm_reads('TRM1'))]
        for i in range(5):
            sd += [(SPOS[i] - 2, dp[i][0]), (SPOS[i], dp[i][1])]
        sd += [(SPOS[5], dpos)]
    if par == 1 and not MB:
        sd += [(60, V(f"v_add_u32 v{vL0E}, 256, v{vL0E}")), (62, V(f"v_add_u32 v{vL0D}, 256, v{vL0D}")),
               (64, V(f"v_add_u32 v{vL1P}, 256, v{vL1P}"))]
    return merge(silu_stream(1), sd)

def resolve(body):
    n = len(body)
    res = []
    for i, op in enumerate(body):
        if op[0] != 'wl':
            res.append(op[1]); continue
        cnt = 0
        for d in range(1, n + 1):
            o = body[(i - d) % n]
            if o[0] == 'ds':
                if o[2] == op[2]:
                    break
                cnt += 1
        else:
            raise Exception("tag not found " + op[2])
        res.append(f"s_waitcnt lgkmcnt({min(cnt, 15)})")
    return res

def emit(ops):
    for o in ops:
        assert o[0] != 'wl'
        A("    " + o[1])
def emit_dma(q):
    dp, dpos = dma_pairs(q)
    for a, b in dp:
        emit([a, S("s_nop 0"), b])
    emit(dpos)

fill_start = len(out)
A(f"    s_cmp_lg_u32 s{sNT}, 0")
A("    s_cbranch_scc1 LM_g01")
A("    s_waitcnt vmcnt(0)")
A("    s_branch LM_nog")
A("LM_g01:")
for k in range(2):
    emit(list_reads(k))
    A("    s_waitcnt lgkmcnt(0)")
    emit(dma_addr())
    emit_dma(k)
A("LM_nog:")
A(f"    s_cmp_lg_u32 s{sBASE}, 0")
A("    s_cbranch_scc1 LM_noat2")
A("    s_waitcnt vmcnt(12)")
at_block()
A("LM_noat2:")
A(f"    s_cmp_eq_u32 s{sNT}, 0")
A("    s_cbranch_scc1 LM_tiles_done")
A(f"    ds_read_b32 v{vW0E}, v{vL0E} offset:{L_W0}")
emit(list_reads(2))
for r in list(range(TRM, TRM + 16)) + list(range(PK + 8, PK + 16)) + list(range(CS, CS + 4)) + list(range(DX[1], DX[1] + 3)):
    A(f"    v_mov_b32 v{r}, 0")
A("    s_waitcnt lgkmcnt(0)")
emit(nb_ops(0))
emit([SA_OP])
emit(dma_addr())
A("    s_waitcnt vmcnt(6)")
emit(stage_reads(0))
emit(so_reads(0))
emit(unp_ops(0))
A("    s_waitcnt lgkmcnt(0)")
emit(pre_ops(0))
emit_dma(0)
emit(chain(0))
A("    s_nop 15")
if MB:
    A(f"    s_mov_b32 s{sNT}, 400")
    STAMP()
HALF = None
body = []
marks = []
for par in range(2):
    body += phaseA(par) + phaseB(par)
    body.append(('br', par, None))
XF = os.environ.get("XF", "").split(",")
def keep(o):
    if o[0] in ('br', 'wl'): return True
    t = o[1]
    if 'nodma' in XF and o[0] == 'vm': return False
    if 'noea' in XF and o[0] == 'vm' and f"s[{S_EA}:" in t: return False
    if 'noh' in XF and o[0] == 'vm' and f"s[{S_H}:" in t: return False
    if 'nopos' in XF and o[0] == 'vm' and f"s[{S_P4}:" in t: return False
    if 'noadd' in XF and t.startswith('ds_add'): return False
    if 'nomw' in XF and t.startswith('ds_write'): return False
    if 'notrans' in XF and (t.startswith('v_exp') or t.startswith('v_rcp')): return False
    if 'novalu' in XF and o[0] == 'v': return False
    if 'nomfma' in XF and o[0] == 'm': return False
    if 'nods' in XF and o[0] == 'ds' and o[2] is None: return False
    return True
body = [o for o in body if keep(o)]
flat = [o for o in body if o[0] != 'br']
txt = resolve(flat)
A("LM_loop:")
k = 0
loop_lines = []
for o in body:
    if o[0] == 'br':
        l = [f"s_sub_u32 s{sNT}, s{sNT}, 1"]
        if o[1] == 0:
            l += [f"s_cmp_eq_u32 s{sNT}, 0", "s_cbranch_scc1 LM_drain0"]
        else:
            l += [f"s_cmp_lg_u32 s{sNT}, 0", "s_cbranch_scc1 LM_loop"]
        for x in l:
            A("    " + x); loop_lines.append(x)
    else:
        A("    " + txt[k]); loop_lines.append(txt[k]); k += 1
def drain(par):
    l = [S("s_waitcnt lgkmcnt(0)"), seg(1, 0), seg(1, 1), csm(1, 0), csm(1, 1), S("s_nop 9")]
    pv, pd, pm = post_ops(par)
    return l + pv + pd + [S("s_waitcnt lgkmcnt(0)")] + pm
emit(drain(1))
A("    s_branch LM_tiles_done")
A("LM_drain0:")
emit(drain(0))
A("LM_tiles_done:")
A(f"    s_mov_b32 s{S_H+2}, {N*128}")
A(f"    s_mov_b32 s{S_EA+2}, {E*32}")
A(f"    s_mov_b32 s{S_P4+2}, {N}")
errs = lint(out[fill_start:out.index("LM_loop:")] + loop_lines + loop_lines + [o[1] for o in drain(1)], "loop")
half = loop_lines.index("s_cbranch_scc1 LM_drain0") + 1
errs += lint(loop_lines[:half] + [o[1] for o in drain(0)], "drain0")
for e in errs:
    print("LINT", e)
nv = sum(1 for l in loop_lines if l.startswith("v_") and not l.startswith("v_mfma"))
print("loop: instrs", len(loop_lines), "valu", nv, "per tile", nv / 2)

A("    s_waitcnt vmcnt(0) lgkmcnt(0)")
A(f"    s_add_u32 s{sBASE}, s{sBASE}, {CAP}")
A(f"    s_cmp_ge_u32 s{sBASE}, s{sT}")
A("    s_cbranch_scc1 LM_epi")
lane_consts()
A(f"    s_lshl_b32 s3, s2, 13")
A(f"    s_lshl_b32 s4, s{sW}, 2")
A(f"    s_add_u32 s3, s3, s4")
A(f"    s_add_u32 s3, s3, {TBL_OFF}")
A(f"    v_lshlrev_b32 v{X}, 5, v{xLANE}")
A(f"    v_add_u32 v{X+1}, 4096, v{X}")
for j in range(4):
    A(f"    buffer_load_dword v{T_+j}, v{X+j//2}, s[{S_WS}:{S_WS+3}], s3 offen offset:{2048*(j%2)}")
A("    s_waitcnt vmcnt(0)")
A("    s_branch LM_slowbase")
A("LM_epi:")
STAMP()
epi_start = len(out)
eE32, eHH, eH16, eL16, eNODE, eSTO, ePOFF, eT = SO, SO + 1, SO + 2, SO + 3, SO + 4, SO + 5, SO + 6, SO + 7
HD = TRM
def whf(q, tp):
    return WSF + 4 * (2 * q + tp)
A(f"    v_and_b32 v{eE32}, 31, v0")
A(f"    v_bfe_u32 v{eHH}, v0, 5, 1")
A(f"    v_lshlrev_b32 v{eH16}, 4, v{eHH}")
A(f"    v_and_b32 v{eL16}, 63, v0")
A(f"    v_lshlrev_b32 v{eL16}, 4, v{eL16}")
A(f"    v_add_u32 v{eNODE}, s{sNODE}, v{eE32}")
A(f"    s_mov_b32 s5, {WF_OFF + 24*1024}")
for f in (8, 9, 10, 11, 12, 13, 14, 15, 0, 1, 2, 3, 4, 5, 6, 7):
    if f % 4 == 0:
        A(f"    v_add_u32 v{eT}, {(f//4)*4096}, v{eL16}")
    A(f"    buffer_load_dwordx4 {vr(WSF+4*f,4)}, v{eT}, s[{S_WS}:{S_WS+3}], s5 offen offset:{(f%4)*1024}")
A(f"    v_lshl_add_u32 v{eT}, v{eNODE}, 7, v{eH16}")
for s in range(4):
    A(f"    buffer_load_dwordx4 {vr(HB+4*s,4)}, v{eT}, s[{S_H}:{S_H+3}], 0 offen offset:{32*s}")
A(f"    v_lshlrev_b32 v{eSTO}, 7, v{eNODE}")
A(f"    v_lshl_add_u32 v{eSTO}, v{eHH}, 3, v{eSTO}")
for t in range(2):
    for q in range(4):
        A(f"    buffer_load_dwordx2 {vr(HD+8*t+2*q,2)}, v{eSTO}, s[{S_H}:{S_H+3}], 0 offen offset:{64*t+16*q}")
for r in range(32):
    A(f"    v_mul_f32 v{SEG+r}, s{sLN2}, v{SEG+r}")
for j in range(16):
    A(f"    v_cvt_pk_bf16_f32 v{PK+j}, v{SEG+2*j}, v{SEG+2*j+1}")
A("    s_mov_b64 exec, 0x01ffffff")
A(f"    v_lshl_add_u32 v{eT}, v{eE32}, 4, s{sPAB}")
A(f"    ds_read_b96 {vr(TMP+4,3)}, v{eT}")
A(f"    v_mul_u32_u24 v{ePOFF}, 6, v{eNODE}")
A(f"    v_add_u32 v{ePOFF}, {N*128}, v{ePOFF}")
A("    s_waitcnt lgkmcnt(0)")
A(f"    v_cvt_pk_bf16_f32 v{CS}, v{PAC}, v{PAC+1}")
A(f"    v_cvt_pk_bf16_f32 v{CS+1}, v{PAC+2}, v{PAC+2}")
A(f"    v_lshlrev_b32 v{TMP}, 16, v{CS}")
A(f"    v_and_b32 v{TMP+1}, s{sHI}, v{CS}")
A(f"    v_lshlrev_b32 v{TMP+2}, 16, v{CS+1}")
for c in range(3):
    A(f"    v_add_f32 v{TMP+c}, v{TMP+c}, v{TMP+4+c}")
for c in range(3):
    A(f"    v_cvt_pk_bf16_f32 v{CS+c}, v{TMP+c}, v{TMP+c}")
for c in range(3):
    A(f"    buffer_store_short v{CS+c}, v{ePOFF}, s[{S_OUT}:{S_OUT+3}], 0 offen offset:{2*c}")
A("    s_mov_b64 exec, -1")
A(f"    s_waitcnt vmcnt({8 + 4 + 8 + 3})")
for tp in range(2):
    for i, q in enumerate((4, 5, 6, 7)):
        c = "0" if i == 0 else vr(ACC+16*tp,16)
        A(f"    v_mfma_f32_32x32x16_bf16 {vr(ACC+16*tp,16)}, {vr(whf(q,tp),4)}, {vr(PK+4*(q-4),4)}, {c}")
A(f"    s_waitcnt vmcnt({8 + 3})")
for tp in range(2):
    for q in range(4):
        A(f"    v_mfma_f32_32x32x16_bf16 {vr(ACC+16*tp,16)}, {vr(whf(q,tp),4)}, {vr(HB+4*q,4)}, {vr(ACC+16*tp,16)}")
A("    s_nop 15")
for j in range(16):
    a0, a1 = ACC + 2 * j, ACC + 2 * j + 1
    A(f"    v_cvt_pk_bf16_f32 v{TMP}, v{a0}, v{a1}")
    A(f"    v_lshlrev_b32 v{a0}, 16, v{TMP}")
    A(f"    v_and_b32 v{a1}, s{sHI}, v{TMP}")
A(f"    s_mov_b32 s3, 0x{LOG2E:08x}")
for g0 in range(0, 32, 8):
    rs = range(g0, g0 + 8)
    for r in rs: A(f"    v_mul_f32 v{TMP+r%8}, s3, v{ACC+r}")
    for r in rs: A(f"    v_exp_f32 v{TMP+r%8}, v{TMP+r%8}")
    for r in rs: A(f"    v_add_f32 v{TMP+r%8}, 1.0, v{TMP+r%8}")
    for r in rs: A(f"    v_rcp_f32 v{TMP+r%8}, v{TMP+r%8}")
    for r in rs: A(f"    v_mul_f32 v{ACC+r}, v{ACC+r}, v{TMP+r%8}")
A("    s_waitcnt vmcnt(3)")
for j in range(16):
    a0, a1 = ACC + 2 * j, ACC + 2 * j + 1
    hv = HD + j
    A(f"    v_cvt_pk_bf16_f32 v{TMP}, v{a0}, v{a1}")
    A(f"    v_lshlrev_b32 v{a0}, 16, v{TMP}")
    A(f"    v_and_b32 v{a1}, s{sHI}, v{TMP}")
    A(f"    v_lshlrev_b32 v{TMP+1}, 16, v{hv}")
    A(f"    v_and_b32 v{TMP+2}, s{sHI}, v{hv}")
    A(f"    v_add_f32 v{a0}, v{a0}, v{TMP+1}")
    A(f"    v_add_f32 v{a1}, v{a1}, v{TMP+2}")
    A(f"    v_cvt_pk_bf16_f32 v{PK+j}, v{a0}, v{a1}")
A(f"    s_mov_b64 exec, s[{sM25}:{sM25+1}]")
for t in range(2):
    for q in range(4):
        A(f"    buffer_store_dwordx2 {vr(PK+8*t+2*q,2)}, v{eSTO}, s[{S_OUT}:{S_OUT+3}], 0 offen offset:{64*t+16*q}")
for e in lint(out[epi_start:], "epi"):
    print("LINT", e)
if PROF:
    A("    s_mov_b64 exec, -1")
    prof_dump("LP", "LM_end", sW, 82, _stamp[0])
A("LM_end:")
A("    s_endpgm")

A('.section .rodata,"a"')
for name, nv in (("egnn_sort_kernel", 88), ("egnn_main_kernel", 256)):
    A(".p2align 6")
    A(f".amdhsa_kernel {name}")
    A(f"  .amdhsa_next_free_vgpr {nv}")
    A("  .amdhsa_next_free_sgpr 100")
    A(f"  .amdhsa_accum_offset {nv}")
    A("  .amdhsa_group_segment_fixed_size 0")
    A("  .amdhsa_kernarg_size 88")
    A("  .amdhsa_user_sgpr_count 2")
    A("  .amdhsa_user_sgpr_kernarg_segment_ptr 1")
    A("  .amdhsa_system_sgpr_workgroup_id_x 1")
    A(".end_amdhsa_kernel")

path = sys.argv[1] if len(sys.argv) > 1 else f"cdna_kernels/{NAME}.s"
open(path, "w").write("\n".join(out) + "\n")
print("wrote", path, len(out), "lines; sort lds", SORT_LDS, "main lds", MAIN_LDS, "vgprs", NVGPR)
```

```python
import sys, os
sys.path.insert(0, os.path.dirname(os.path.abspath(__file__)))
from lint import lint
PROF = int(os.environ.get("PROF", "0"))
MB = int(os.environ.get("MB", "0"))
EANT = os.environ.get("EANT", "")
BAL = int(os.environ.get("BAL", "1"))
PH = int(os.environ.get("PH", "1"))
F16 = int(os.environ.get("F16", "1"))
MT = "f16" if F16 else "bf16"
CVT = "v_cvt_pk_f16_f32" if F16 else "v_cvt_pk_bf16_f32"
PF = int(os.environ.get("PF", "0"))
PFN = int(os.environ.get("PFN", "25000"))
TH = int(os.environ.get("TH", "25000"))

PFW = int(os.environ.get("PFW", "0"))
PFS = int(os.environ.get("PFS", "0"))
PFSH = int(os.environ.get("PFSH", "0"))
NPS = PFS + PFSH
PFI = int(os.environ.get("PFI", "2"))
PFH = int(os.environ.get("PFH", "1"))
SST = os.environ.get("SST", "")
SST = (" " + SST.replace(",", " ")) if SST else ""
OST = os.environ.get("OST", "")
OST = (" " + OST.replace(",", " ")) if OST else ""
NAME = "gather_scatter__cheap_equivariant_egnn__graph"
N = 50000
E = 800000
G = 250
GW = 4
C = 3200
NBK = 250
BN = 200
FBN = 25
REC_OFF = 0
TBL_OFF = E * 8
WF_OFF = TBL_OFF + 256 * 8192
P4_OFF = WF_OFF + 40 * 1024
WS_USED = P4_OFF + N * 8
LOG2E = 0xbfb8aa3b
LN2 = 0xbf317218
PADNB = 30

out = []
def A(s=""):
    out.append(s)

_stamp = [0]
def STAMP(lvl=1):
    if PROF != lvl and lvl != 0:
        return
    if not PROF:
        return
    i = _stamp[0]; _stamp[0] += 1
    assert i < 7
    A(f"    s_memtime s[{82+2*i}:{83+2*i}]")
_sst = [0]
def SSTAMP():
    if not PROF:
        return
    i = _sst[0]; _sst[0] += 1
    assert i < 7
    A(f"    s_memtime s[{46+2*i}:{47+2*i}]")

def srd(base, lo, hi, nbytes, stride=0):
    A(f"    s_mov_b32 s{base}, s{lo}")
    A(f"    s_and_b32 s{base+1}, s{hi}, 0xffff")
    if stride:
        A(f"    s_or_b32 s{base+1}, s{base+1}, {stride << 16}")
    A(f"    s_mov_b32 s{base+2}, {nbytes}")
    A(f"    s_mov_b32 s{base+3}, 0x00020000")

def vr(a, n):
    return f"v[{a}:{a+n-1}]"

def wave_scan(x):
    for sh in (1, 2, 4, 8):
        A("    s_nop 1")
        A(f"    v_add_u32_dpp v{x}, v{x}, v{x} row_shr:{sh} row_mask:0xf bank_mask:0xf bound_ctrl:0")
    A("    s_nop 1")
    A(f"    v_add_u32_dpp v{x}, v{x}, v{x} row_bcast:15 row_mask:0xa bank_mask:0xf")
    A("    s_nop 1")
    A(f"    v_add_u32_dpp v{x}, v{x}, v{x} row_bcast:31 row_mask:0xc bank_mask:0xf")
    A("    s_nop 1")

PALL = int(os.environ.get("PALL", "0"))
def prof_all(wreg, base, n, off, rt0):
    A("    s_waitcnt vmcnt(0)")
    A(f"    s_memtime s[{base+2*n}:{base+2*n+1}]")
    A(f"    s_memrealtime s[66:67]")
    A("    s_load_dwordx2 s[64:65], s[0:1], 80")
    A("    s_getreg_b32 s75, hwreg(HW_REG_HW_ID)")
    A("    s_getreg_b32 s77, hwreg(HW_REG_XCC_ID)")
    A("    s_waitcnt lgkmcnt(0)")
    srd(68, 64, 65, 256 << 20)
    A("    s_lshl_b32 s72, s2, 4")
    A(f"    s_add_u32 s72, s72, s{wreg}")
    A("    s_lshl_b32 s72, s72, 6")
    A(f"    s_add_u32 s72, s72, {off}")
    A("    s_mov_b64 exec, 1")
    A("    v_mov_b32 v1, s72")
    for i in range(1, n + 1):
        A(f"    s_sub_u32 s73, s{base+2*i}, s{base}")
        A(f"    v_mov_b32 v2, s73")
        A(f"    buffer_store_dword v2, v1, s[68:71], 0 offen offset:{4*i}")
    for j, r in enumerate((rt0, 66, 75, 77, 96)):
        A(f"    v_mov_b32 v2, s{r}")
        A(f"    buffer_store_dword v2, v1, s[68:71], 0 offen offset:{32+4*j}")
def prof_dump(lbl, endlbl, wreg, base, n):
    if PALL:
        return prof_all(wreg, base, n, (200 << 20) + (0 if lbl == "LP" else 1 << 20), 98 if lbl == "LP" else 62)
    A("    s_waitcnt vmcnt(0)")
    A(f"    s_memtime s[{base+2*n}:{base+2*n+1}]")
    A("    s_load_dwordx2 s[64:65], s[0:1], 72")
    A("    s_waitcnt lgkmcnt(0)")
    srd(68, 64, 65, 256)
    A("    s_mov_b32 s72, 0")
    A("    s_cmp_eq_u32 s2, 0")
    A(f"    s_cbranch_scc1 {lbl}_a")
    A("    s_mov_b32 s72, 2")
    A("    s_cmp_eq_u32 s2, 137")
    A(f"    s_cbranch_scc0 {endlbl}")
    A(f"{lbl}_a:")
    A(f"    s_cmp_eq_u32 s{wreg}, 0")
    A(f"    s_cbranch_scc1 {lbl}_b")
    A("    s_add_u32 s72, s72, 1")
    A(f"    s_cmp_eq_u32 s{wreg}, 7")
    A(f"    s_cbranch_scc0 {endlbl}")
    A(f"{lbl}_b:")
    A("    s_lshl_b32 s72, s72, 5")
    A("    s_mov_b64 exec, 1")
    A("    v_mov_b32 v1, s72")
    for i in range(1, n + 1):
        A(f"    s_sub_u32 s73, s{base+2*i}, s{base}")
        A(f"    v_mov_b32 v2, s73")
        A(f"    buffer_store_dword v2, v1, s[68:71], 0 offen offset:{4*i}")

S_HIST = 0
S_OFF = 8192
S_WT = 16384
S_STAGE = 16384 + 64
SORT_LDS = S_STAGE + C * 8
CAP = 512
ST_SZ = 5120
L_ID = 0
ID_RS = 80
L_PA = L_ID + 32 * ID_RS
L_Z = L_PA + 8 * 512
L_PRG = L_Z + 1024
L_PS = L_PRG + 128
L_W0 = L_PS + 1024
L_W1 = L_W0 + 8 * CAP * 4
L_MS = L_W1 + 8 * CAP * 4
MS_RS = 136
MS_W = 32 * MS_RS
L_ST = L_MS + 8 * MS_W
assert L_PRG % 32 == 0
assert L_ST % 128 == 0 and L_PA % 16 == 0 and L_ID % 16 == 0
L_TB = L_MS
L_WF = L_MS + 8192
assert L_WF + 24576 <= L_ST
L_RAW = L_ST
MAIN_LDS = L_ST + 16 * ST_SZ
assert MAIN_LDS <= 163840, MAIN_LDS

A(f"; @launch kernel=egnn_sort_kernel grid=({G+GW+PFW},1,1) block=(640,1,1) lds={SORT_LDS}")
A(f"; @launch kernel=egnn_main_kernel grid=({NBK},1,1) block=(512,1,1) lds={MAIN_LDS}")
A('.amdgcn_target "amdgcn-amd-amdhsa--gfx950"')
A(".text")

A(".globl egnn_sort_kernel")
A(".p2align 8")
A(".type egnn_sort_kernel,@function")
A("egnn_sort_kernel:")
A(f"    s_cmp_ge_u32 s2, {G+GW}")
A("    s_cbranch_scc1 LS_pf")
A(f"    s_cmp_ge_u32 s2, {G}")
A("    s_cbranch_scc1 LS_weights")
SSTAMP()
if PALL:
    A("    s_memrealtime s[62:63]")
A("    s_load_dwordx2 s[4:5], s[0:1], 8      ; pos")
A("    s_load_dwordx4 s[8:11], s[0:1], 24    ; src, dst")
A("    s_load_dwordx2 s[12:13], s[0:1], 80   ; ws")
if NPS:
    A("    s_load_dwordx2 s[40:41], s[0:1], 0     ; h")
    A("    s_load_dwordx2 s[42:43], s[0:1], 16    ; e_attr")
A("    v_lshlrev_b32 v1, 4, v0")
if NPS:
    A("    v_mov_b32 v82, v1")
for j in range(4):
    A(f"    v_mov_b32 v{4+j}, 0")
A("    v_cmp_gt_u32 vcc, 512, v0")
A("    s_and_saveexec_b64 s[14:15], vcc")
A(f"    ds_write_b128 v1, v[4:7] offset:{S_HIST}")
A("    s_mov_b64 exec, s[14:15]")
A("    v_lshlrev_b32 v1, 2, v0")
A(f"    s_mul_i32 s3, s2, {C * 4}")
A("    v_add_u32 v1, s3, v1")
SL = 5
for k in range(1, SL):
    A(f"    s_mov_b32 s{35+k}, {k*2560}")
A(f"    s_mul_i32 s3, s2, {BN}")
A("    v_add_u32 v44, s3, v0                ; node")
A("    v_mul_u32_u24 v45, 6, v44")
A("    s_waitcnt lgkmcnt(0)")
SSTAMP()
srd(24, 10, 11, E * 4)
srd(20, 8, 9, E * 4)
for k in range(SL):
    so = "0" if k == 0 else f"s{35+k}"
    A(f"    buffer_load_dword v{10+k}, v1, s[24:27], {so} offen")
    A(f"    buffer_load_dword v{15+k}, v1, s[20:23], {so} offen")
srd(16, 4, 5, N * 6)
srd(28, 12, 13, WS_USED)
for c in range(3):
    A(f"    buffer_load_ushort v{40+c}, v45, s[16:19], 0 offen offset:{2*c}")
if NPS:
    srd(64, 40, 41, N * 128)
    srd(68, 42, 43, E * 32)
    A(f"    s_mul_i32 s40, s2, {BN*128}")
    A(f"    s_mul_i32 s41, s2, {PFS*10240}")
    for i in range(max(PFS, PFSH)):
        if i < PFSH:
            A(f"    buffer_load_dwordx4 v[84:87], v82, s[64:67], s40 offen")
            A(f"    s_add_u32 s40, s40, 10240")
        if i < PFS:
            A(f"    buffer_load_dwordx4 v[84:87], v82, s[68:71], s41 offen")
            A(f"    s_add_u32 s41, s41, 10240")
A("    s_barrier")
A("    s_mov_b32 s14, 83887")
A("    v_mov_b32 v3, 1")
A(f"    s_mul_i32 s3, s2, {C}")
A("    v_add_u32 v46, s3, v0")
for k in range(SL):
    A(f"    s_waitcnt vmcnt({NPS + 3 + 2*(SL-1-k)})")
    d, s = 10 + k, 15 + k
    A(f"    v_mul_u32_u24 v4, s14, v{d}")
    A(f"    v_lshrrev_b32 v4, 21, v4             ; key = dst/25")
    A(f"    v_lshlrev_b32 v{20+k}, 2, v4")
    A(f"    ds_add_rtn_u32 v{30+k}, v{20+k}, v3 offset:{S_HIST}")
    A(f"    v_mul_u32_u24 v5, {FBN}, v4")
    A(f"    v_sub_u32 v7, v{d}, v5               ; nb")
    A(f"    v_lshl_or_b32 v{50+2*k}, v{s}, 7, v7   ; w0")
    A(f"    v_add_u32 v8, {k*640}, v46")
    A(f"    v_lshlrev_b32 v{51+2*k}, 5, v8         ; w1")
A(f"    s_waitcnt vmcnt({NPS})")
A("    v_lshl_or_b32 v40, v41, 16, v40")
A("    v_lshlrev_b32 v41, 16, v42")
A("    v_lshlrev_b32 v44, 3, v44")
A(f"    v_add_u32 v44, {P4_OFF}, v44")
A(f"    v_cmp_gt_u32 vcc, {BN}, v0")
A("    s_and_saveexec_b64 s[44:45], vcc")
A("    s_cbranch_execz LS_nop4")
A("    buffer_store_dwordx2 v[40:41], v44, s[28:31], 0 offen" + SST)
A("LS_nop4:")
A("    s_mov_b64 exec, s[44:45]")
A("    s_waitcnt lgkmcnt(0)")
A("    s_barrier")
SSTAMP()
A("    v_lshrrev_b32 v81, 6, v0")
A("    v_lshlrev_b32 v2, 4, v0")
A("    v_readfirstlane_b32 s6, v81          ; wave")
A("    s_cmp_ge_u32 s6, 8")
A("    s_cbranch_scc1 LS_noscan1")
A(f"    ds_read_b128 v[4:7], v2 offset:{S_HIST}")
A("    s_waitcnt lgkmcnt(0)")
A("    v_add_u32 v8, v4, v5")
A("    v_add_u32 v9, v8, v6")
A("    v_add_u32 v70, v9, v7                ; total")
A("    v_mov_b32 v71, v70")
wave_scan(71)
A("    v_readlane_b32 s7, v71, 63")
A("    v_lshlrev_b32 v81, 2, v81")
A("    v_mov_b32 v72, s7")
A(f"    ds_write_b32 v81, v72 offset:{S_WT}")
A("    s_waitcnt lgkmcnt(0)")
A("LS_noscan1:")
A("    s_barrier")
A("    s_cmp_ge_u32 s6, 8")
A("    s_cbranch_scc1 LS_noscan")
A("    v_mov_b32 v81, 0")
A(f"    ds_read_b128 v[72:75], v81 offset:{S_WT}")
A(f"    ds_read_b128 v[76:79], v81 offset:{S_WT+16}")
A("    v_sub_u32 v71, v71, v70            ; exclusive")
A("    s_waitcnt lgkmcnt(0)")
for j in range(7):
    A(f"    s_cmp_gt_u32 s6, {j}")
    A(f"    s_cselect_b32 s7, -1, 0")
    A(f"    v_and_b32 v{72+j}, s7, v{72+j}")
    A(f"    v_add_u32 v71, v71, v{72+j}")
A("    v_mov_b32 v72, v71")
A("    v_add_u32 v73, v71, v4")
A("    v_add_u32 v74, v71, v8")
A("    v_add_u32 v75, v71, v9")
A(f"    ds_write_b128 v2, v[72:75] offset:{S_OFF}")
A("    v_lshl_or_b32 v76, v4, 16, v72")
A("    v_lshl_or_b32 v77, v5, 16, v73")
A("    v_lshl_or_b32 v78, v6, 16, v74")
A("    v_lshl_or_b32 v79, v7, 16, v75")
A("    s_and_b32 s3, s2, 3")
A("    s_lshl_b32 s3, s3, 6")
A("    s_lshr_b32 s7, s2, 2")
A("    s_add_u32 s3, s3, s7                 ; slot")
A("    s_lshl_b32 s3, s3, 5")
A(f"    s_add_u32 s3, s3, {TBL_OFF}")
A("    v_lshrrev_b32 v80, 1, v0")
A("    v_lshlrev_b32 v80, 13, v80")
A("    v_and_b32 v81, 1, v0")
A("    v_lshl_add_u32 v80, v81, 4, v80")
A("    buffer_store_dwordx4 v[76:79], v80, s[28:31], s3 offen" + SST)
A("    s_waitcnt lgkmcnt(0)")
A("LS_noscan:")
A("    s_barrier")
for k in range(SL):
    A(f"    ds_read_b32 v{35+k}, v{20+k} offset:{S_OFF}")
SSTAMP()
A("    s_waitcnt lgkmcnt(0)")
for k in range(SL):
    A(f"    v_add_u32 v2, v{35+k}, v{30+k}")
    A(f"    v_lshlrev_b32 v2, 3, v2")
    A(f"    ds_write_b64 v2, v[{50+2*k}:{51+2*k}] offset:{S_STAGE}")
A("    s_waitcnt lgkmcnt(0)")
A("    s_barrier")
SSTAMP()
A("    v_lshlrev_b32 v1, 3, v0")
for k in range(SL):
    A(f"    ds_read_b64 v[{50+2*k}:{51+2*k}], v1 offset:{S_STAGE + k*5120}")
A(f"    s_mul_i32 s3, s2, {C*8}")
A("    v_add_u32 v2, s3, v1")
for k in range(1, SL):
    A(f"    s_mov_b32 s{35+k}, {k*5120}")
for k in range(SL):
    A(f"    s_waitcnt lgkmcnt({SL-1-k})")
    so = "0" if k == 0 else f"s{35+k}"
    A(f"    buffer_store_dwordx2 v[{50+2*k}:{51+2*k}], v2, s[28:31], {so} offen" + SST)
if PROF:
    A("    v_lshrrev_b32 v1, 6, v0")
    A("    s_nop 0")
    A("    v_readfirstlane_b32 s74, v1")
    prof_dump("LQ", "LS_end", 74, 46, _sst[0])
A("    s_branch LS_end")
A("LS_weights:")
A("    s_load_dwordx2 s[4:5], s[0:1], 40     ; w_e")
A("    s_load_dwordx2 s[6:7], s[0:1], 56     ; w_h")
A("    s_load_dwordx2 s[26:27], s[0:1], 48   ; w_x")
A("    s_load_dwordx2 s[12:13], s[0:1], 80   ; ws")
A("    v_lshrrev_b32 v1, 6, v0")
A("    s_nop 0")
A("    v_readfirstlane_b32 s3, v1")
A(f"    s_sub_u32 s8, s2, {G}")
A("    s_mul_i32 s8, s8, 10")
A("    s_add_u32 s8, s8, s3")
A("    s_cmp_eq_u32 s8, 23")
A("    s_cbranch_scc1 LS_end")
A("    s_waitcnt lgkmcnt(0)")
srd(16, 4, 5, 145 * 128)
srd(20, 6, 7, 128 * 128)
srd(28, 12, 13, WS_USED)
A("    s_and_b32 s14, s8, 1")
A("    s_lshr_b32 s15, s8, 1                  ; ks / q")
A("    s_mov_b32 s10, 8")
A("    s_mov_b32 s11, 4")
A("    s_mov_b32 s24, 1.0")
A("    s_cmp_ge_u32 s8, 24")
A("    s_cbranch_scc1 LS_wh")
A("    s_cmp_eq_u32 s8, 22")
A("    s_cbranch_scc1 LS_wd")
A("    s_cmp_ge_u32 s8, 18")
A("    s_cbranch_scc1 LS_wx")
A("    s_lshl_b32 s9, s15, 4")
A("    s_cmp_ge_u32 s15, 8")
A("    s_cselect_b32 s9, 129, s9")
A("    s_cmp_ge_u32 s15, 4")
A(f"    s_cselect_b32 s24, 0x{LOG2E:08x}, s24")
A("    s_branch LS_wgo")
A("LS_wh:")
A("    s_sub_u32 s15, s15, 12")
A("    s_lshl_b32 s9, s15, 4")
A("    s_cmp_ge_u32 s15, 4")
A("    s_cselect_b32 s10, 4, 8")
A("    s_cselect_b32 s11, 8, 4")
A("    s_mov_b32 s16, s20")
A("    s_mov_b32 s17, s21")
A("    s_mov_b32 s18, s22")
A("LS_wgo:")
A("    v_and_b32 v1, 31, v0")
A("    v_bfe_u32 v2, v0, 5, 1")
A("    v_mul_u32_u24 v2, s10, v2")
A("    v_add_u32 v2, s9, v2")
A("    v_lshlrev_b32 v2, 7, v2")
A("    v_lshl_add_u32 v2, v1, 1, v2")
A("    s_lshl_b32 s3, s14, 6")
A("    v_add_u32 v2, s3, v2")
A("    s_lshl_b32 s3, s11, 7")
A("    v_add_u32 v3, s3, v2                   ; j=4")
for j in range(4):
    A(f"    buffer_load_ushort v{10+j}, v2, s[16:19], 0 offen offset:{128*j}")
for j in range(4):
    A(f"    buffer_load_ushort v{14+j}, v3, s[16:19], 0 offen offset:{128*j}")
A("    s_waitcnt vmcnt(0)")
for j in range(8):
    A(f"    v_lshlrev_b32 v{10+j}, 16, v{10+j}")
    A(f"    v_mul_f32 v{10+j}, s24, v{10+j}")
for j in range(4):
    A(f"    v_cvt_pk_bf16_f32 v{20+j}, v{10+2*j}, v{11+2*j}")
A("LS_wst:")
A("    v_and_b32 v1, 63, v0")
A("    v_lshlrev_b32 v1, 4, v1")
A("    s_lshl_b32 s3, s8, 10")
A(f"    s_add_u32 s3, s3, {WF_OFF}")
A("    v_add_u32 v1, s3, v1")
A("    buffer_store_dwordx4 v[20:23], v1, s[28:31], 0 offen" + SST)
A("    s_branch LS_end")
A("LS_wx:")
srd(16, 26, 27, 128)
A("    s_sub_u32 s3, s8, 18")
A("    s_lshl_b32 s3, s3, 5")
A("    v_bfe_u32 v2, v0, 5, 1")
A("    v_lshlrev_b32 v2, 3, v2")
A("    v_add_u32 v2, s3, v2")
A("    buffer_load_dwordx2 v[20:21], v2, s[16:19], 0 offen")
A("    buffer_load_dwordx2 v[22:23], v2, s[16:19], 0 offen offset:16")
A(f"    s_mov_b32 s14, {(1<<8)|(1<<28)}")
A(f"    s_mov_b32 s15, {(1<<8)|(1<<28)}")
A("    s_waitcnt vmcnt(0)")
for j in range(4):
    A(f"    v_cndmask_b32 v{20+j}, 0, v{20+j}, s[14:15]")
    if F16:
        A(f"    v_lshlrev_b32 v3, 16, v{20+j}")
        A(f"    v_and_b32 v{20+j}, 0xffff0000, v{20+j}")
        A(f"    v_cvt_pk_f16_f32 v{20+j}, v3, v{20+j}")
A("    s_branch LS_wst")
A("LS_wd:")
A("    v_and_b32 v1, 31, v0")
A("    v_lshlrev_b32 v1, 1, v1")
A(f"    v_add_u32 v1, {128*128}, v1")
A("    buffer_load_ushort v20, v1, s[16:19], 0 offen")
A("    buffer_load_ushort v21, v1, s[16:19], 0 offen offset:64")
A(f"    s_mov_b32 s3, 0x{LOG2E:08x}")
A("    v_mov_b32 v22, 0")
A("    v_mov_b32 v23, 0")
A("    s_waitcnt vmcnt(0)")
for t in range(2):
    A(f"    v_lshlrev_b32 v{20+t}, 16, v{20+t}")
    A(f"    v_mul_f32 v{20+t}, s3, v{20+t}")
    A(f"    v_cvt_pk_bf16_f32 v{20+t}, v{20+t}, v{20+t}")
A("    s_branch LS_wst")
A("LS_pf:")
if PFW:
    A(f"    s_cmp_ge_u32 s2, {G+GW+PFW}")
    A("    s_cbranch_scc1 LS_end")
    A("    s_load_dwordx2 s[4:5], s[0:1], 0      ; h")
    A("    s_load_dwordx2 s[6:7], s[0:1], 16     ; e_attr")
    A(f"    s_sub_u32 s3, s2, {G+GW}")
    A(f"    s_mul_i32 s3, s3, 640")
    A("    v_add_u32 v1, s3, v0")
    A("    v_lshlrev_b32 v2, 7, v1               ; h line")
    A("    v_lshrrev_b32 v3, 6, v1")
    A(f"    v_mul_u32_u24 v3, {PFI*64}, v3")
    A("    v_and_b32 v4, 63, v0")
    A("    v_add_u32 v3, v3, v4")
    A("    v_lshlrev_b32 v3, 7, v3")
    A("    s_waitcnt lgkmcnt(0)")
    srd(16, 4, 5, N * 128)
    srd(20, 6, 7, E * 32)
    for i in range(PFI):
        A(f"    s_mov_b32 s3, {i*8192}")
        A(f"    buffer_load_dword v{8+i}, v3, s[20:23], s3 offen")
    if PFH:
        A(f"    buffer_load_dword v7, v2, s[16:19], 0 offen")
A("LS_end:")
A("    s_endpgm")

S_H, S_EA, S_WS, S_P4, S_WE, S_WX, S_OUT = 8, 12, 16, 20, 24, 28, 32
sW, sT, sBASE, sCNT, sLB, sNT, sNODE, sSTG = 40, 41, 42, 43, 44, 45, 46, 47
sHIGH = 50
sM25 = 52
sHI = 54
sAM = 55
sLN2 = 56
sP4O = 57
sIDRS = 58
sPAB = 59
sONE2 = 60
sPGW, sPGR, sPGP = 62, 63, 76
sINC, sDEL, sTAIL, sTMP, sWH = 24, 25, 26, 27, 28
FT = int(os.environ.get("FT", "1"))

_next = [1]
def alloc(n, align=1):
    while _next[0] % align:
        _next[0] += 1
    r = _next[0]; _next[0] += n
    return r
WSF = alloc(32, 4)
WAE = alloc(8, 4)
ATF = alloc(16, 4)
WX = alloc(16, 4)
ACC = alloc(32, 4)
SEG = alloc(32, 4)
HB = alloc(16, 4)
EA = alloc(4, 4)
SO = alloc(8, 4)
PK = alloc(16, 4)
TRM = alloc(8, 4)
TRS = alloc(8, 4)
CS = alloc(4, 4)
TMP = alloc(8, 4)
W0D = alloc(4, 4)
PAC = alloc(4, 4)
PS0 = alloc(3, 2); vW0E = alloc(1)
PS1 = alloc(3, 2); vNB = alloc(1)
PD = alloc(3, 2); vSA = alloc(1)
PS = (PS0, PS1)
DX = (alloc(3), alloc(3))
vW1P = alloc(1); vW0E3 = alloc(1)
vSWZ = (alloc(1), alloc(1))
vEAO = alloc(1)
vHBA = [alloc(1) for _ in range(4)]
vEAR, vIDB, vSWL, vMWL, vTRL = [alloc(1) for _ in range(5)]
assert _next[0] <= 256, _next[0]
vTRP, vL0E, vL0D = 1, 2, 3
vL1P, vONE, vZERO, vMASK = [alloc(1) for _ in range(4)]
assert _next[0] <= 256, _next[0]
NVGPR = _next[0]
def wsf(s, t): return WSF + (2 * s + t) * 4
def atf(u, t): return ATF + (2 * u + t) * 4
X = PK
assert W0D + 4 - PK == 48

A(".globl egnn_main_kernel")
A(".p2align 8")
A(".type egnn_main_kernel,@function")
A("egnn_main_kernel:")
A(f"    s_cmp_ge_u32 s2, {os.environ.get('LIMWG', NBK)}")
A("    s_cbranch_scc1 LM_end")
STAMP(0)
if PALL:
    A("    s_memrealtime s[98:99]")
A("    s_load_dwordx2 s[80:81], s[0:1], 80    ; ws")
A("    s_load_dwordx2 s[64:65], s[0:1], 0     ; h")
A("    s_load_dwordx2 s[66:67], s[0:1], 16    ; e_attr")
A("    s_load_dwordx2 s[78:79], s[0:1], 64    ; out")
xLANE, xE32, xHH, xH16, xL16, xT4 = X + 40, X + 41, X + 42, X + 43, X + 44, X + 45
def lane_consts():
    A(f"    v_and_b32 v{xLANE}, 63, v0")
    A(f"    v_and_b32 v{xE32}, 31, v0")
    A(f"    v_bfe_u32 v{xHH}, v0, 5, 1")
    A(f"    v_lshlrev_b32 v{xH16}, 4, v{xHH}")
    A(f"    v_lshlrev_b32 v{xL16}, 4, v{xLANE}")
    A(f"    v_lshlrev_b32 v{xT4}, 2, v0")
lane_consts()
A(f"    v_lshrrev_b32 v{X}, 6, v0")
A(f"    s_mov_b32 s{sHIGH}, 0")
A(f"    v_readfirstlane_b32 s{sW}, v{X}")
A(f"    s_mov_b32 s{sHIGH+1}, -1")
A(f"    s_mov_b32 s{sM25}, 0x01ffffff")
A(f"    s_mov_b32 s{sM25+1}, 0x01ffffff")
A(f"    s_mov_b32 s{sHI}, 0xffff0000")
A(f"    s_mov_b32 s{sAM}, {os.environ.get('HOTH', '0x007fff80')}")
sHOT = 61
A(f"    s_mov_b32 s{sHOT}, {os.environ.get('HOTEA', '0')}")
A(f"    s_mov_b32 s{sLN2}, 0x{LN2:08x}")
A(f"    s_mov_b32 s{sP4O}, {P4_OFF}")
A(f"    s_mov_b32 s{sIDRS}, {ID_RS}")
A(f"    s_mov_b32 s{sONE2}, 0x3c003c00")
A(f"    s_lshl_b32 s{sPGW}, s{sW}, 2")
A(f"    s_add_u32 s{sPGW}, s{sPGW}, {L_PRG}")
A(f"    s_xor_b32 s{sPGR}, s{sPGW}, 16")
sBIAS, sPUB = 36, 37
if BAL >= 2:
    A(f"    s_cmp_lt_u32 s{sW}, 4")
    A(f"    s_cselect_b32 s{sBIAS}, {1 if BAL == 2 else 0}, {0 if BAL == 2 else 1}")
A(f"    s_lshl_b32 s3, s2, 13")
A(f"    s_add_u32 s3, s3, {TBL_OFF}")
A(f"    v_lshlrev_b32 v{X+1}, 4, v0")
A(f"    s_lshl_b32 s4, s{sW}, 10")
A(f"    s_add_u32 m0, s4, {L_TB}")
A(f"    s_mov_b32 s5, {WF_OFF}")
A(f"    s_mul_i32 s{sSTG}, s{sW}, {2*ST_SZ}")
A(f"    s_add_u32 s{sSTG}, s{sSTG}, {L_ST}")
A(f"    s_mul_i32 s6, s2, {BN}")
A(f"    s_mul_i32 s4, s{sW}, {FBN}")
A(f"    s_add_u32 s{sNODE}, s6, s4")
A("    s_waitcnt lgkmcnt(0)")
STAMP(2)
srd(S_WS, 80, 81, WS_USED)
A(f"    buffer_load_dwordx4 v{X+1}, s[{S_WS}:{S_WS+3}], s3 offen lds")
A(f"    s_lshl_b32 s4, s{sW}, 10")
A(f"    s_add_u32 s5, s5, s4")
for i in range(3):
    A(f"    s_add_u32 m0, s4, {L_WF + 8192*i}")
    A(f"    s_add_u32 s3, s5, {8192*i}")
    A(f"    buffer_load_dwordx4 v{xL16}, s[{S_WS}:{S_WS+3}], s3 offen lds")
srd(S_H, 64, 65, N * 128)
NPF = 0
if PF:
    per_wg = -(-PFN // PF)
    per_w = -(-per_wg // 8)
    NPF = -(-per_w // 64)
    A(f"    s_mul_i32 s3, s2, {(1 << 20) // PF + 1}")
    A(f"    s_lshr_b32 s3, s3, 20")
    A(f"    s_mul_i32 s3, s3, {PF}")
    A(f"    s_sub_u32 s3, s2, s3                  ; slice")
    A(f"    s_mul_i32 s3, s3, {per_wg}")
    A(f"    s_mul_i32 s4, s{sW}, {per_w}")
    A(f"    s_add_u32 s3, s3, s4")
    A(f"    v_add_u32 v{X+2}, s3, v{xLANE}")
    A(f"    v_lshlrev_b32 v{X+2}, 7, v{X+2}")
    A(f"    s_mov_b32 m0, {L_W0}")
    for i in range(NPF):
        A(f"    s_mov_b32 s3, {i * 64 * 128}")
        A(f"    buffer_load_dword v{X+2}, s[{S_H}:{S_H+3}], s3 offen lds")
srd(S_P4, 80, 81, N, stride=8)
srd(S_EA, 66, 67, E * 32)
srd(S_OUT, 78, 79, N * 128 + N * 6)
STAMP(2)
def own_loads(X=X):
    A(f"    v_add_u32 v{X}, s{sNODE}, v{xE32}")
    A(f"    v_lshl_add_u32 v{X+1}, v{X}, 7, v{xH16}")
    for s in range(4):
        A(f"    buffer_load_dwordx4 {vr(HB+4*s,4)}, v{X+1}, s[{S_H}:{S_H+3}], 0 offen offset:{32*s}")
    A(f"    buffer_load_dwordx2 {vr(PD,2)}, v{X}, s[{S_P4}:{S_P4+3}], s{sP4O} idxen")
NOWN = 4 + 1
STAMP(2)
A(f"    s_mul_i32 s4, s{sW}, {MS_W}")
A(f"    s_add_u32 s4, s4, {L_MS}")
A(f"    v_mul_u32_u24 v{X}, {MS_RS}, v{xE32}")
A(f"    v_add_u32 v{X}, s4, v{X}")
A(f"    v_lshl_add_u32 v{vMWL}, v{xHH}, 3, v{X}")
A(f"    v_add_u32 v{vSWL}, 64, v{X}")
A(f"    v_bfe_u32 v{X}, v{xLANE}, 2, 2")
A(f"    v_lshlrev_b32 v{X}, 2, v{X}")
A(f"    v_add_u32 v{X}, v{X}, v{xHH}")
A(f"    v_mul_u32_u24 v{X}, {2*MS_RS}, v{X}")
A(f"    v_bfe_u32 v{X+1}, v{xLANE}, 4, 1")
A(f"    v_lshl_add_u32 v{X}, v{X+1}, 5, v{X}")
A(f"    v_and_b32 v{X+1}, 3, v{xLANE}")
A(f"    v_lshl_add_u32 v{X}, v{X+1}, 3, v{X}")
A(f"    v_add_u32 v{vTRL}, s4, v{X}")
A(f"    v_bfe_u32 v{X}, v{xLANE}, 2, 2")
A(f"    v_lshlrev_b32 v{X}, 2, v{X}")
A(f"    v_add_u32 v{X}, v{X}, v{xHH}")
A(f"    v_mul_u32_u24 v{X}, {2*MS_RS}, v{X}")
A(f"    v_add_u32 v{X}, s4, v{X}")
A(f"    v_add_u32 v{X}, 128, v{X}")
A(f"    v_bfe_u32 v{X+1}, v{xLANE}, 4, 1")
A(f"    v_and_b32 v{X+2}, 3, v{xLANE}")
A(f"    v_cmp_eq_u32 vcc, v{X+1}, v{X+2}")
A(f"    v_mov_b32 v{vTRP}, {L_Z}")
A(f"    s_lshl_b32 s{sPAB}, s{sW}, 9")
A(f"    v_cndmask_b32 v{vTRP}, v{vTRP}, v{X}, vcc")
A(f"    s_add_u32 s{sPAB}, s{sPAB}, {L_PA}")
A(f"    v_add_u32 v{vIDB}, {L_ID}, v{xH16}")
A(f"    v_mov_b32 v{vONE}, 0x3f80")
A(f"    v_mov_b32 v{vZERO}, 0")
A(f"    v_mul_u32_u24 v{vMASK}, 0xffff, v{xHH}")
A(f"    v_lshlrev_b32 v{vMASK}, 16, v{vMASK}")
A(f"    v_lshrrev_b32 v{X}, 3, v{xLANE}")
A(f"    v_and_b32 v{X+1}, 7, v{xLANE}")
A(f"    v_xor_b32 v{X+1}, v{X+1}, v{X}")
A(f"    v_lshlrev_b32 v{vSWZ[0]}, 4, v{X+1}")
A(f"    v_xor_b32 v{vSWZ[1]}, 16, v{vSWZ[0]}")
A(f"    v_and_b32 v{vEAO}, 1, v{xLANE}")
A(f"    v_lshlrev_b32 v{vEAO}, 4, v{vEAO}")
A(f"    v_lshrrev_b32 v{X}, 3, v{xE32}          ; i")
A(f"    v_and_b32 v{X+1}, 7, v{xE32}            ; r")
A(f"    v_and_b32 v{X+2}, 1, v{X}")
A(f"    v_xor_b32 v{X+2}, v{X+2}, v{X+1}        ; x")
A(f"    v_xor_b32 v{X+2}, v{X+2}, v{xHH}        ; x ^ hh")
A(f"    v_lshlrev_b32 v{X+3}, 10, v{X}")
A(f"    v_lshl_add_u32 v{X+3}, v{X+1}, 7, v{X+3}")
A(f"    v_add_u32 v{X+3}, s{sSTG}, v{X+3}")
for s in range(4):
    A(f"    v_xor_b32 v{vHBA[s]}, {2*s}, v{X+2}")
    A(f"    v_lshl_add_u32 v{vHBA[s]}, v{vHBA[s]}, 4, v{X+3}")
A(f"    v_lshl_add_u32 v{vEAR}, v{xE32}, 5, v{xH16}")
A(f"    v_add_u32 v{vEAR}, s{sSTG}, v{vEAR}")
A(f"    v_add_u32 v{vEAR}, 4096, v{vEAR}")
for j in range(4):
    A(f"    v_mov_b32 v{X+8+j}, 0")
A(f"    ds_write_b128 v{xL16}, {vr(X+8,4)} offset:{L_Z}")
A("    v_cmp_gt_u32 vcc, 32, v0")
A("    s_and_saveexec_b64 s[48:49], vcc")
A(f"    v_mul_u32_u24 v{X}, {ID_RS}, v0")
for j in range(5):
    A(f"    ds_write_b128 v{X}, {vr(X+8,4)} offset:{L_ID + 16*j}")
A(f"    v_lshrrev_b32 v{X+1}, 4, v0")
A(f"    v_lshl_add_u32 v{X}, v{X+1}, 5, v{X}")
A(f"    v_bfe_u32 v{X+1}, v0, 2, 1")
A(f"    v_lshl_add_u32 v{X}, v{X+1}, 4, v{X}")
A(f"    v_bfe_u32 v{X+1}, v0, 3, 1")
A(f"    v_lshl_add_u32 v{X}, v{X+1}, 3, v{X}")
A(f"    v_and_b32 v{X+1}, 3, v0")
A(f"    v_lshl_add_u32 v{X}, v{X+1}, 1, v{X}")
A("    v_cmp_gt_u32 vcc, 31, v0")
A("    s_and_b64 exec, exec, vcc")
A(f"    ds_write_b16 v{X}, v{vONE} offset:{L_ID}")
A("    s_mov_b64 exec, s[48:49]")
OWNE = int(os.environ.get("OWNE", "0"))
if F16:
    A(f"    v_mov_b32 v{vONE}, 0x3c00")
if OWNE == 1:
    own_loads()
T_ = X + 4
A(f"    s_lshl_b32 s3, s{sW}, 2")
A(f"    s_add_u32 s3, s3, {L_TB}")
A(f"    v_lshl_add_u32 v{X}, v{xLANE}, 5, s3")
A(f"    s_lshl_b32 s{sLB}, s{sW}, 11")
A(f"    s_mov_b32 s{sBASE}, 0")
A("    s_mov_b32 s96, 0")
sFAST = 77
F_, L_, DF, BS = SEG, SEG + 4, SEG + 8, X + 36
A(f"    v_lshrrev_b32 v{X+3}, 4, v{xLANE}")
A(f"    s_lshl_b32 s3, s{sW}, 8")
A(f"    s_add_u32 s3, s3, {L_TB}")
A(f"    v_lshl_add_u32 v{X+1}, v{X+3}, 11, s3")
A(f"    v_mul_u32_u24 v{X+2}, {C*8}, v{X+3}")
A(f"    v_and_b32 v{X+3}, 15, v{xLANE}")
A(f"    v_lshl_add_u32 v{X+2}, v{X+3}, 4, v{X+2}")
A(f"    s_mul_i32 s3, s{sW}, {32*C*8}")
A(f"    v_add_u32 v{X+2}, s3, v{X+2}")
A(f"    v_lshlrev_b32 v{X+3}, 5, v{xLANE}")
A(f"    v_add_u32 v{X+3}, {L_TB}, v{X+3}")
A(f"    s_lshl_b32 s4, s{sW}, 13")
A(f"    s_add_u32 s4, s4, {L_RAW}")
STAMP(2)
A(f"    s_waitcnt vmcnt({NOWN if OWNE == 1 else 0}) lgkmcnt(0)")
STAMP(2)
A("    s_barrier")
STAMP(0)
RMASK = int(os.environ.get("RMASK", "1"))
if not RMASK:
    for i in range(8):
        A(f"    ds_read_b32 v{DF+i}, v{X+1} offset:{32*i}")
    for j in range(4):
        A(f"    ds_read_b32 v{T_+j}, v{X} offset:{2048*j}")
    for i in range(8):
        A(f"    s_add_u32 m0, s4, {1024*i}")
        A(f"    s_mov_b32 s3, {4*C*8*i}")
        A(f"    s_waitcnt lgkmcnt({11-i})")
        A(f"    v_and_b32 v{DF+i}, 0xfffe, v{DF+i}")
        A(f"    v_lshl_add_u32 v{DF+i}, v{DF+i}, 3, v{X+2}")
        A(f"    buffer_load_dwordx4 v{DF+i}, s[{S_WS}:{S_WS+3}], s3 offen lds")
else:
    for i in range(8):
        A(f"    ds_read2_b32 v[{DF+2*i}:{DF+2*i+1}], v{X+1} offset0:{8*i} offset1:{8*i+7}")
    for j in range(4):
        A(f"    ds_read_b32 v{T_+j}, v{X} offset:{2048*j}")
    A(f"    v_and_b32 v{BS}, 15, v{xLANE}")
    A(f"    v_lshlrev_b32 v{BS}, 1, v{BS}              ; 2p")
    A(f"    v_mov_b32 v{BS+1}, -16")
    for i in range(8):
        f, l = DF + 2 * i, DF + 2 * i + 1
        A(f"    s_add_u32 m0, s4, {1024*i}")
        A(f"    s_mov_b32 s3, {4*C*8*i}")
        A(f"    s_waitcnt lgkmcnt({11-i})")
        A(f"    v_and_b32 v{f}, 0xfffe, v{f}")
        A(f"    v_add_u32_sdwa v{l}, v{l}, v{l} dst_sel:DWORD dst_unused:UNUSED_PAD src0_sel:WORD_0 src1_sel:WORD_1")
        A(f"    v_sub_u32 v{l}, v{l}, v{f}")
        A(f"    v_cmp_lt_i32 vcc, v{BS}, v{l}")
        A(f"    v_lshl_add_u32 v{f}, v{f}, 3, v{X+2}")
        A(f"    s_nop 0")
        A(f"    v_cndmask_b32 v{f}, v{BS+1}, v{f}, vcc")
        A(f"    buffer_load_dwordx4 v{f}, s[{S_WS}:{S_WS+3}], s3 offen lds")
for j in range(4):
    A(f"    ds_read2_b32 v[{F_+2*j}:{F_+2*j+1}], v{X+3} offset0:0 offset1:7")
    if j < 3:
        A(f"    v_add_u32 v{X+3}, 2048, v{X+3}")
if not OWNE:
    own_loads()
STAMP(2)
A(f"    v_cmp_gt_u32 vcc, 62, v{xLANE}")
A(f"    v_cmp_gt_u32 s[48:49], 63, v{xLANE}")
A(f"    v_lshlrev_b32 v{X}, 7, v{xLANE}")
A("    s_waitcnt lgkmcnt(0)")
for j in range(4):
    f, l = F_ + 2 * j, F_ + 2 * j + 1
    A(f"    v_and_b32 v{f}, 0xfffe, v{f}")
    A(f"    v_lshrrev_b32 v{X+1}, 16, v{l}")
    A(f"    v_and_b32 v{l}, 0xffff, v{l}")
    A(f"    v_add_u32 v{l}, v{l}, v{X+1}")
    A(f"    v_sub_u32 v{l}, v{l}, v{f}")
    A(f"    v_cndmask_b32 v{l}, 0, v{l}, {'s[48:49]' if j < 2 else 'vcc'}")
    A(f"    v_sub_u32 v{BS+j}, v{X}, v{f}")
    A(f"    v_add_u32 v{BS+j}, {32*j + L_RAW//8}, v{BS+j}")
A(f"    v_max_u32 v{F_+1}, v{F_+1}, v{F_+3}")
A(f"    v_max3_u32 v{F_+1}, v{F_+1}, v{F_+5}, v{F_+7}")
A(f"    v_cmp_lt_u32 vcc, {int(os.environ.get('WIN', '32'))}, v{F_+1}")
A(f"    s_mov_b32 s{sFAST}, {L_Z}")
A("    s_cmp_eq_u64 vcc, 0")
A("    s_cbranch_scc1 LM_round")
A("LM_slowbase:")
A(f"    s_mov_b32 s{sFAST}, -128")
A(f"    v_mul_u32_u24 v{BS}, {4*C}, v{xLANE}")
for j in range(1, 4):
    A(f"    v_add_u32 v{BS+j}, {j*C}, v{BS}")
A("LM_round:")
CN, SM, PP, DL, MK = X + 8, X + 12, X + 16, X + 20, X + 24
xMKA, xI = X + 32, X + 33
A(f"    v_lshl_add_u32 v{xMKA}, v{xLANE}, 5, s{sLB}")
for j in range(4):
    A(f"    v_mov_b32 v{MK+j}, 0")
A(f"    ds_write_b128 v{xMKA}, {vr(MK,4)} offset:{L_W1}")
A(f"    ds_write_b128 v{xMKA}, {vr(MK,4)} offset:{L_W1+16}")
A(f"    v_cmp_gt_u32 vcc, 62, v{xLANE}")
A(f"    v_cmp_gt_u32 s[48:49], 63, v{xLANE}")
A("    s_nop 0")
A(f"    v_cndmask_b32 v{T_+2}, 0, v{T_+2}, vcc")
A(f"    v_cndmask_b32 v{T_+3}, 0, v{T_+3}, vcc")
A(f"    v_cndmask_b32 v{T_}, 0, v{T_}, s[48:49]")
A(f"    v_cndmask_b32 v{T_+1}, 0, v{T_+1}, s[48:49]")
for k in range(4):
    A(f"    v_lshrrev_b32 v{CN+k}, 16, v{T_+k}")
for k in range(4):
    A(f"    v_and_b32 v{T_+k}, 0xffff, v{T_+k}")
A(f"    v_add_u32 v{SM}, v{CN}, v{CN+1}")
A(f"    v_add_u32 v{SM+1}, v{SM}, v{CN+2}")
A(f"    v_add_u32 v{SM+2}, v{SM+1}, v{CN+3}")
A(f"    v_mov_b32 v{SM+3}, v{SM+2}")
wave_scan(SM + 3)
A(f"    v_readlane_b32 s{sT}, v{SM+3}, 63")
A(f"    v_sub_u32 v{PP}, v{SM+3}, v{SM+2}")
A(f"    v_add_u32 v{PP+1}, v{PP}, v{CN}")
A(f"    v_add_u32 v{PP+2}, v{PP}, v{SM}")
A(f"    v_add_u32 v{PP+3}, v{PP}, v{SM+1}")
for k in range(4):
    A(f"    v_add_u32 v{DL+k}, v{BS+k}, v{T_+k}")
    A(f"    v_sub_u32 v{DL+k}, v{DL+k}, v{PP+k}")
A(f"    s_add_u32 s3, s{sLB}, {L_W1}")
A(f"    s_add_u32 s4, s{sLB}, {L_W0}")
A(f"    v_mov_b32 v{SM+1}, s4")
for k in range(4):
    A(f"    v_subrev_u32 v{PP+k}, s{sBASE}, v{PP+k}     ; q")
    A(f"    v_add_u32 v{CN+k}, v{CN+k}, v{PP+k}         ; e")
    A(f"    v_max_i32 v{PP+k}, 0, v{PP+k}")
    A(f"    v_min_i32 v{CN+k}, {CAP}, v{CN+k}")
    A(f"    v_cmp_lt_i32 vcc, v{PP+k}, v{CN+k}")
    A(f"    v_lshl_add_u32 v{PP+k}, v{PP+k}, 2, s3")
    A("    s_nop 0")
    A(f"    v_cndmask_b32 v{PP+k}, v{SM+1}, v{PP+k}, vcc")
    A(f"    ds_write_b32 v{PP+k}, v{DL+k}")
A(f"    ds_read_b128 {vr(MK,4)}, v{xMKA} offset:{L_W1}")
A(f"    ds_read_b128 {vr(MK+4,4)}, v{xMKA} offset:{L_W1+16}")
xEM, xNEG = X + 34, X + 35
A(f"    v_lshl_add_u32 v{xI}, v{xLANE}, 3, s{sBASE}")
A(f"    v_mov_b32 v{xNEG}, s{sFAST}")
A(f"    v_mov_b32 v{xEM}, 0")
A("    s_waitcnt lgkmcnt(0)")
for k in range(1, 8):
    A(f"    v_max_u32 v{MK+k}, v{MK+k}, v{MK+k-1}")
A("    s_nop 1")
A(f"    v_mov_b32_dpp v{xEM}, v{MK+7} wave_shr:1 row_mask:0xf bank_mask:0xf")
for sh in (1, 2, 4, 8):
    A("    s_nop 1")
    A(f"    v_max_u32_dpp v{xEM}, v{xEM}, v{xEM} row_shr:{sh} row_mask:0xf bank_mask:0xf bound_ctrl:0")
A("    s_nop 1")
A(f"    v_max_u32_dpp v{xEM}, v{xEM}, v{xEM} row_bcast:15 row_mask:0xa bank_mask:0xf")
A("    s_nop 1")
A(f"    v_max_u32_dpp v{xEM}, v{xEM}, v{xEM} row_bcast:31 row_mask:0xc bank_mask:0xf")
RR, W0C, W1C = X, X + 16, X + 24
NS = 8
for k in range(NS):
    A(f"    s_sub_u32 s3, s{sT}, {k}")
    A(f"    v_max_u32 v{MK+k}, v{MK+k}, v{xEM}")
    A(f"    v_cmp_gt_i32 vcc, s3, v{xI}")
    A(f"    v_add_u32 v{MK+k}, v{MK+k}, v{xI}")
    A(f"    v_lshlrev_b32 v{MK+k}, 3, v{MK+k}")
    A(f"    v_cndmask_b32 v{MK+k}, v{xNEG}, v{MK+k}, vcc")
A(f"    s_cmp_ge_i32 s{sFAST}, 0")
A("    s_cbranch_scc1 LM_fast1")
for k in range(NS):
    A(f"    buffer_load_dwordx2 {vr(RR+2*k,2)}, v{MK+k}, s[{S_WS}:{S_WS+3}], 0 offen offset:{8*k}")
A("LM_fast1:")
A(f"    s_sub_u32 s{sCNT}, s{sT}, s{sBASE}")
A(f"    s_min_u32 s{sCNT}, s{sCNT}, {CAP}")
A(f"    s_add_u32 s3, s{sCNT}, 31")
A(f"    s_lshr_b32 s{sNT}, s3, 5               ; ntiles")
RG = W0C
A(f"    v_and_b32 v{RG}, 7, v{xE32}")
A(f"    v_lshrrev_b32 v{RG+1}, 3, v{xE32}")
A(f"    v_lshl_add_u32 v{RG}, v{RG}, 2, v{RG+1}     ; p(e)")
A(f"    v_lshl_add_u32 v{vL0E}, v{RG}, 2, s{sLB}")
A(f"    v_lshrrev_b32 v{RG}, 3, v{xLANE}")
A(f"    v_lshl_add_u32 v{vL0D}, v{RG}, 4, s{sLB}")
A(f"    v_bfe_u32 v{RG}, v{xLANE}, 1, 3            ; (l/2)%8")
A(f"    v_lshrrev_b32 v{RG+1}, 4, v{xLANE}         ; (l/2)/8")
A(f"    v_lshl_add_u32 v{RG}, v{RG}, 2, v{RG+1}")
A(f"    v_lshl_add_u32 v{vL1P}, v{RG}, 2, s{sLB}")
A(f"    s_lshl_b32 s3, s{sW}, 7")
A(f"    s_add_u32 s3, s3, {L_PS}")
A(f"    s_sub_u32 s3, s3, s{sLB}")
A(f"    v_add_u32 v{RG}, s3, v{vL0E}")
A(f"    v_add_u32 v{RG+1}, s{sNODE}, v{xE32}")
A(f"    v_lshlrev_b32 v{RG+1}, 7, v{RG+1}")
A(f"    ds_write_b32 v{RG}, v{RG+1}")
A(f"    s_lshl_b32 s4, s{sNT}, 7")
A(f"    s_sub_u32 s3, s3, s4")
A(f"    s_sub_u32 s{sDEL}, s3, {L_W0}")
A(f"    s_add_u32 s3, s{sBASE}, {CAP}")
A(f"    s_cmp_ge_u32 s3, s{sT}")
A(f"    s_cselect_b32 s{sTAIL}, {1 if FT else 0}, 0")
A(f"    s_cmp_ge_u32 s{sNT}, 2")
A(f"    s_cselect_b32 s{sTAIL}, s{sTAIL}, 0")
A(f"    s_cmp_lg_u32 s{sBASE}, 0")
A("    s_cbranch_scc1 LM_noat")
A(f"    v_add_u32 v{RG}, {L_WF}, v{xL16}")
for f in range(8):
    A(f"    ds_read_b128 {vr(ACC+4*f,4)}, v{RG} offset:{1024*f}")
for f in range(10):
    A(f"    ds_read_b128 {vr(WSF+4*f,4)}, v{RG} offset:{8192+1024*f}")
for f in range(4):
    A(f"    ds_read_b128 {vr(WX+4*f,4)}, v{RG} offset:{8192+1024*(10+f)}")
A(f"    ds_read_b64 {vr(EA,2)}, v{RG} offset:{8192+1024*14}")
A(f"    s_waitcnt vmcnt({0 if OWNE else NOWN}) lgkmcnt(0)")
A("    s_barrier")
STAMP()
if OWNE == 2:
    own_loads(SEG + 24)
A("LM_noat:")
A(f"    s_cmp_ge_i32 s{sFAST}, 0")
A("    s_cbranch_scc1 LM_fast2")
A("    s_waitcnt vmcnt(0)")
A("    s_branch LM_recs")
A("LM_fast2:")
for k in range(NS):
    A(f"    ds_read_b64 {vr(RR+2*k,2)}, v{MK+k} offset:{8*k}")
A("LM_recs:")
if not PH:
    A(f"    v_mov_b32 v{xNEG}, {PADNB}")
    for k in range(NS):
        A(f"    s_sub_u32 s3, s{sT}, {k}")
        A(f"    v_cmp_gt_i32 vcc, s3, v{xI}")
        A(f"    s_waitcnt lgkmcnt({NS-1-k})")
        A(f"    v_mov_b32 v{W1C+k}, v{RR+2*k+1}")
        A(f"    v_cndmask_b32 v{W0C+k}, v{xNEG}, v{RR+2*k}, vcc")
    A(f"    ds_write_b128 v{xMKA}, {vr(W0C,4)} offset:{L_W0}")
    A(f"    ds_write_b128 v{xMKA}, {vr(W0C+4,4)} offset:{L_W0+16}")
    A(f"    ds_write_b128 v{xMKA}, {vr(W1C,4)} offset:{L_W1}")
    A(f"    ds_write_b128 v{xMKA}, {vr(W1C+4,4)} offset:{L_W1+16}")
else:
    FS = (64, 66, 68, 70, 72, 74, 78, 80)
    RK = SO
    SC, BA, BB, TB = BS, BS + 1, BS + 2, BS + 3
    TA = W1C
    A(f"    v_mov_b32 v{xNEG}, 0x{0x007fff80 | PADNB:x}")
    A(f"    s_mov_b32 s4, {TH << 7}")
    A(f"    v_mov_b32 v{RK}, 0")
    for k in range(NS):
        A(f"    s_sub_u32 s3, s{sT}, {k}")
        A(f"    v_cmp_gt_i32 vcc, s3, v{xI}")
        A(f"    s_waitcnt lgkmcnt({NS-1-k})")
        A(f"    s_nop 0")
        A(f"    v_cndmask_b32 v{W0C+k}, v{xNEG}, v{RR+2*k}, vcc")
        A(f"    v_cmp_le_u32 s[{FS[k]}:{FS[k]+1}], s4, v{W0C+k}")
        A(f"    s_nop 1")
        A(f"    v_addc_co_u32 v{RK+k+1 if k < 7 else BA}, vcc, v{RK+k}, 0, s[{FS[k]}:{FS[k]+1}]")
    A(f"    v_mov_b32 v{SC}, v{BA}")
    wave_scan(SC)
    A(f"    v_readlane_b32 s3, v{SC}, 63")
    A(f"    v_sub_u32 v{SC}, v{SC}, v{BA}        ; P")
    A(f"    s_sub_u32 s3, {CAP}, s3               ; N0")
    A(f"    s_lshl_b32 s3, s3, 2")
    A(f"    s_add_u32 s5, s{sLB}, {L_W0}")
    A(f"    s_add_u32 s3, s3, s5")
    A(f"    v_lshl_add_u32 v{BA}, v{SC}, 2, s3")
    A(f"    v_lshlrev_b32 v{BB}, 3, v{xLANE}")
    A(f"    v_sub_u32 v{BB}, v{BB}, v{SC}")
    A(f"    v_lshl_add_u32 v{BB}, v{BB}, 2, s5")
    assert L_W1 - L_W0 == 64 * 256
    for k in range(NS):
        A(f"    v_lshl_add_u32 v{TA+k}, v{RK+k}, 2, v{BA}")
        A(f"    v_sub_u32 v{TB}, {k}, v{RK+k}")
        A(f"    v_lshl_add_u32 v{TB}, v{TB}, 2, v{BB}")
        A(f"    v_cndmask_b32 v{TA+k}, v{TB}, v{TA+k}, s[{FS[k]}:{FS[k]+1}]")
        A(f"    ds_write2st64_b32 v{TA+k}, v{W0C+k}, v{RR+2*k+1} offset0:0 offset1:64")
A(f"    s_cmp_lg_u32 s{sBASE}, 0")
A("    s_cbranch_scc1 LM_nob3")
A("    s_barrier")
A("LM_nob3:")
STAMP()
def at_block():
    A(f"    v_mov_b32 v{RG+2}, 0")
    A(f"    v_mov_b32 v{RG+3}, 0")
    A(f"    v_lshl_add_u32 v{RG}, v{xHH}, 5, v{vSWL}")
    for j in range(4):
        A(f"    ds_write_b64 v{RG}, {vr(RG+2,2)} offset:{8*j}")
    for t in range(2):
        for s_ in range(4):
            c = "0" if s_ == 0 else vr(SEG+16*t,16)
            A(f"    v_mfma_f32_32x32x16_bf16 {vr(SEG+16*t,16)}, {vr(HB+4*s_,4)}, {vr(ACC+4*(2*s_+t),4)}, {c}")
    A(f"    v_lshl_add_u32 v{RG}, v{xE32}, 4, s{sPAB}")
    A(f"    v_mov_b32 v{PD+2}, v{PD+1}")
    A(f"    v_and_b32 v{PD+1}, s{sHI}, v{PD}")
    A(f"    v_lshlrev_b32 v{PD}, 16, v{PD}")
    A(f"    ds_write_b96 v{RG}, {vr(PD,3)}")
    for j in range(4):
        A(f"    v_mov_b32 v{PAC+j}, 0")
    A(f"    s_mov_b32 s3, 0x{LOG2E:08x}")
    A("    s_nop 7")
    for r in range(32):
        A(f"    v_mul_f32 v{SEG+r}, s3, v{SEG+r}")
    for t in range(2):
        for u in range(2):
            for j in range(4):
                A(f"    v_cvt_pk_bf16_f32 v{atf(u,t)+j}, v{SEG+16*t+8*u+2*j}, v{SEG+16*t+8*u+2*j+1}")
        A(f"    v_bfi_b32 v{atf(1,t)+3}, v{vMASK}, v{EA+t}, v{atf(1,t)+3}")
    for r in range(32):
        A(f"    v_mov_b32 v{SEG+r}, 0")


def V(t): return ('v', t, None)
def M(t): return ('m', t, None)
def DS(t, tag=None): return ('ds', t, tag)
def VM(t): return ('vm', t, None)
def S(t): return ('s', t, None)
def WL(tag): return ('wl', None, tag)
def WV(n): return ('s', f"s_waitcnt vmcnt({n})", None)

def mf(d, a, b, c0=False, ty="bf16"):
    return M(f"v_mfma_f32_32x32x16_{ty} {vr(d,16)}, {vr(a,4)}, {vr(b,4)}, {'0' if c0 else vr(d,16)}")
def chain(t):
    d = ACC + 16 * t
    l = [mf(d, wsf(s, t), HB + 4 * s, s == 0) for s in range(4)]
    l.append(mf(d, WAE + 4 * t, EA))
    l += [mf(d, atf(u, t), SO + 4 * u) for u in range(2)]
    return l
def seg(t, s):
    return mf(SEG + 16 * t, TRM + 4 * s, TRS + 4 * s, ty=MT)
def csm(t, u):
    c = '0' if (t == 0 and u == 0) else vr(CS, 4)
    return M(f"v_mfma_f32_16x16x32_{MT} {vr(CS,4)}, {vr(WX+8*t+4*u,4)}, {vr(PK+8*t+4*u,4)}, {c}")
def list_reads(k):
    return [DS(f"ds_read_b128 {vr(W0D,4)}, v{vL0D} offset:{L_W0 + 128*k}"),
            DS(f"ds_read_b32 v{vW1P}, v{vL1P} offset:{L_W1 + 128*k}"),
            DS(f"ds_read_b32 v{vW0E3}, v{vL0E} offset:{L_W0 + 128*k}", 'L3')]
def list_reads_loop(par):
    k = par + 3
    return [S(f"s_cmp_eq_u32 s{sNT}, 2"), S(f"s_cselect_b32 s{sINC}, s{sDEL}, 128"),
            V(f"v_add_u32 v{vL0D}, s{sINC}, v{vL0D}"),
            DS(f"ds_read_b128 {vr(W0D,4)}, v{vL0D} offset:{L_W0 + 256}"),
            DS(f"ds_read_b32 v{vW1P}, v{vL1P} offset:{L_W1 + 128*k}"),
            DS(f"ds_read_b32 v{vW0E3}, v{vL0E} offset:{L_W0 + 128*k}", 'L3')]
def srd_ops():
    return [S(f"s_cmp_lt_u32 s{sNT}, 4"), S(f"s_cselect_b32 s{sTMP}, 0, {N*128}"),
            S(f"s_cselect_b32 s{S_EA+2}, 0, s{S_EA+2}"), S(f"s_cselect_b32 s{S_P4+2}, 0, s{S_P4+2}"),
            S(f"s_cmp_eq_u32 s{sNT}, 2"), S(f"s_cselect_b32 s{S_H+2}, {N*128}, s{sTMP}")]
def dma_addr():
    l = [V(f"v_and_or_b32 v{W0D+i}, v{W0D+i}, s{sAM}, v{vSWZ[i&1]}") for i in range(4)]
    if os.environ.get("HOTEA"):
        l.append(V(f"v_and_or_b32 v{vW1P}, v{vW1P}, s{sHOT}, v{vEAO}"))
    else:
        l.append(V(f"v_add_u32 v{vW1P}, v{vW1P}, v{vEAO}"))
    l.append(V(f"v_bfe_u32 v{vW0E3}, v{vW0E3}, 7, 16"))
    return l
def dma_pairs(q):
    l = []
    for i in range(4):
        l.append((S(f"s_add_u32 m0, s{sSTG}, {q*ST_SZ + i*1024}"),
                  VM(f"buffer_load_dwordx4 v{W0D+i}, s[{S_H}:{S_H+3}], 0 offen lds")))
    l.append((S(f"s_add_u32 m0, s{sSTG}, {q*ST_SZ + 4096}"),
              VM(f"buffer_load_dwordx4 v{vW1P}, s[{S_EA}:{S_EA+3}], 0 offen{EANT} lds")))
    pos = [S(f"s_mov_b64 exec, s[{sHIGH}:{sHIGH+1}]"),
           VM(f"buffer_load_dwordx2 {vr(PS[q],2)}, v{vW0E3}, s[{S_P4}:{S_P4+3}], s{sP4O} idxen"),
           S("s_mov_b64 exec, -1")]
    return l, pos
def stage_reads(q):
    l = [DS(f"ds_read_b128 {vr(HB+4*s,4)}, v{vHBA[s]} offset:{q*ST_SZ}") for s in range(4)]
    l.append(DS(f"ds_read_b128 {vr(EA,4)}, v{vEAR} offset:{q*ST_SZ}"))
    return l
def nb_ops(q):
    return [V(f"v_and_b32 v{vNB}, 31, v{vW0E}"),
            V(f"v_mad_u32_u24 v{vW0E}, v{vNB}, s{sIDRS}, v{vIDB}"),
            V(f"v_lshl_add_u32 v{PD}, v{vNB}, 4, s{sPAB}")]
def so_reads(q):
    return [DS(f"ds_read_b128 {vr(SO,4)}, v{vW0E}"),
            DS(f"ds_read_b128 {vr(SO+4,4)}, v{vW0E} offset:32"),
            DS(f"ds_read_b96 {vr(PD,3)}, v{PD}", 'PD')]
def pre_ops(q):
    d = DX[q]; p = PS[q]
    return [V(f"v_sub_f32 v{PD}, v{PD}, v{p+2}"),
            V(f"v_sub_f32 v{PD+1}, v{PD+1}, v{p}"),
            V(f"v_sub_f32 v{PD+2}, v{PD+2}, v{p+1}"),
            V(f"v_cvt_pk_bf16_f32 v{PD}, v{PD}, v{PD+1}"),
            V(f"v_cvt_pk_bf16_f32 v{PD+2}, v{PD+2}, v{PD+2}"),
            V(f"v_lshlrev_b32 v{d}, 16, v{PD}"),
            V(f"v_and_b32 v{d+1}, s{sHI}, v{PD}"),
            V(f"v_lshlrev_b32 v{d+2}, 16, v{PD+2}"),
            V(f"v_mul_f32 v{PD+1}, v{d}, v{d}"),
            V(f"v_fma_f32 v{PD+1}, v{d+1}, v{d+1}, v{PD+1}"),
            V(f"v_fma_f32 v{PD+1}, v{d+2}, v{d+2}, v{PD+1}"),
            V(f"v_cvt_pk_bf16_f32 v{PD+1}, v{PD+1}, v{PD+1}"),
            V(f"v_bfi_b32 v{SO+7}, v{vMASK}, v{PD+1}, v{SO+7}")]
def unp_ops(q):
    p = PS[q]
    return [V(f"v_lshlrev_b32 v{p+2}, 16, v{p}"),
            V(f"v_and_b32 v{p}, s{sHI}, v{p}")]
def post_ops(q):
    d = DX[q]
    va = [V(f"v_mul_f32 v{CS}, s{sLN2}, v{CS}"),
          V(f"v_cvt_pk_bf16_f32 v{CS}, v{CS}, v{CS}"),
          V(f"v_and_b32 v{CS}, s{sHI}, v{CS}"),
          V(f"v_mul_f32 v{d}, v{d}, v{CS}"),
          V(f"v_mul_f32 v{d+1}, v{d+1}, v{CS}"),
          V(f"v_mul_f32 v{d+2}, v{d+2}, v{CS}"),
          V(f"{CVT} v{CS+2}, v{d}, v{d+1}"),
          V(f"{CVT} v{CS+3}, v{d+2}, v{d+2}")]
    da = [S(f"s_mov_b64 exec, s[{sHIGH}:{sHIGH+1}]"),
          DS(f"ds_write_b64 v{vSWL}, {vr(CS+2,2)} offset:64"),
          S("s_mov_b64 exec, -1")]
    da += [DS(f"ds_read_b64_tr_b16 {vr(TRM+4*s+2*p,2)}, v{vTRP} offset:{(4*s+p)*MS_RS}", 'TRP' if (s, p) == (1, 1) else None)
           for s in range(2) for p in range(2)]
    pm = [M(f"v_mfma_f32_16x16x32_{MT} {vr(PAC,4)}, {vr(TRM+4*s,4)}, {vr(TRS+4*s,4)}, {vr(PAC,4)}") for s in range(2)]
    return va, da, pm
def m_write(t, qs):
    return [DS(f"ds_write_b64 v{vMWL}, {vr(PK+8*t+2*q,2)} offset:{16*q}") for q in qs]
def trm_reads(tag):
    l = [DS(f"ds_read_b64_tr_b16 {vr(TRM+4*s+2*p,2)}, v{vTRL} offset:{(4*s+p)*MS_RS}") for s in range(2) for p in range(2)]
    l[-1] = (l[-1][0], l[-1][1], tag)
    return l
def trs_reads():
    l = [DS(f"ds_read_b64_tr_b16 {vr(TRS+4*s+2*p,2)}, v{vTRL} offset:{(4*s+p)*MS_RS+64}") for s in range(2) for p in range(2)]
    l[-1] = (l[-1][0], l[-1][1], 'TRS')
    return l
SA_OP = V(f"v_lshl_add_u32 v{vSA}, v{vNB}, 1, v{vSWL}")

def silu_stream(t):
    a = ACC + 16 * t
    l = []
    if F16:
        LO = "dst_sel:WORD_0 dst_unused:UNUSED_PRESERVE src0_sel:WORD_0"
        HI = "dst_sel:WORD_1 dst_unused:UNUSED_PRESERVE src0_sel:WORD_1"
        for g in range(2):
            js = range(4)
            pk = lambda j: PK + 8 * t + 4 * g + j
            tm = lambda j: TMP + 4 * g + j
            l += [V(f"v_cvt_pk_f16_f32 v{pk(j)}, v{a+8*g+2*j}, v{a+8*g+2*j+1}") for j in js]
            l += [V(f"v_exp_f16 v{tm(j)}, v{pk(j)}") for j in js]
            l += [V(f"v_exp_f16_sdwa v{tm(j)}, v{pk(j)} {HI}") for j in js]
            l += [V(f"v_pk_add_f16 v{tm(j)}, v{tm(j)}, s{sONE2}") for j in js]
            l += [V(f"v_rcp_f16_sdwa v{tm(j)}, v{tm(j)} {LO}") for j in js]
            l += [V(f"v_rcp_f16_sdwa v{tm(j)}, v{tm(j)} {HI}") for j in js]
            l += [V(f"v_pk_mul_f16 v{pk(j)}, v{pk(j)}, v{tm(j)}") for j in js]
        return l
    for g in range(2):
        rs = range(8 * g, 8 * g + 8)
        l += [V(f"v_exp_f32 v{TMP+r%8}, v{a+r}") for r in rs]
        l += [V(f"v_add_f32 v{TMP+r%8}, 1.0, v{TMP+r%8}") for r in rs]
        l += [V(f"v_rcp_f32 v{TMP+r%8}, v{TMP+r%8}") for r in rs]
        l += [V(f"v_mul_f32 v{a+r}, v{a+r}, v{TMP+r%8}") for r in rs]
        l += [V(f"v_cvt_pk_bf16_f32 v{PK+8*t+4*g+j}, v{a+8*g+2*j}, v{a+8*g+2*j+1}") for j in range(4)]
    return l

def remap(p):
    g, r = divmod(p, 36)
    if r < 8: n = r
    elif r < 16: n = 8 + (r - 8) // 2
    elif r < 24: n = 12 + (r - 16)
    elif r < 32: n = 20 + (r - 24) // 2
    else: n = 24 + (r - 32)
    return 28 * g + n
def merge(main, side):
    res = []
    if F16:
        side = [((p * 28 + 35) // 36, o) for p, o in side]
    side = sorted(enumerate(side), key=lambda x: (x[1][0], x[0]))
    k = 0
    for i in range(len(main) + 1):
        while k < len(side) and side[k][1][0] <= i:
            ops = side[k][1][1]
            res += ops if isinstance(ops, list) else [ops]
            k += 1
        if i < len(main):
            res.append(main[i])
    assert k == len(side)
    return res

VMW = int(os.environ.get("VMW", "0"))
def wv6():
    if not VMW:
        return [WV(6)]
    l = [WV(6)] if VMW == 2 else []
    l += [S("s_memtime s[64:65]"), S("s_waitcnt lgkmcnt(0)"), WV(6), S("s_memtime s[66:67]"), S("s_waitcnt lgkmcnt(0)"),
          S("s_sub_u32 s64, s66, s64"), S("s_add_u32 s96, s96, s64")]
    return l
SPREAD = int(os.environ.get("SPREAD", "0"))
SPOS = [int(x) for x in os.environ.get("SPOS", "12,23,34,45,56,67").split(",")]
def phaseA(par):
    q = 1 - par
    ch = chain(1)
    pv, pd, pm = post_ops(q)
    nb = nb_ops(q)
    sd = [(0, DS(f"ds_read_b32 v{vW0E}, v{vL0E} offset:{L_W0 + 128*(par+1)}", 'W0E')),
          (0, ch[0]), (5, [WL('TRM1'), seg(1, 0)]), (8, ch[1]), (12, seg(1, 1)), (16, ch[2]),
          (20, csm(1, 0)), (24, ch[3]), (27, csm(1, 1)), (30, ch[4]),
          (36, m_write(0, (0, 1))), (36, ch[5]),
          (38, wv6() + stage_reads(q)), (42, ch[6]),
          (39, pv[0]), (40, pv[1]), (41, pv[2]), (43, pv[3]), (44, pv[4]), (45, pv[5]), (46, pv[6]), (47, [pv[7]] + pd),
          (48, [WL('W0E'), nb[0]]), (49, nb[1]), (50, nb[2]), (51, so_reads(q)),
          (53, unp_ops(q)[0]), (55, unp_ops(q)[1]),
          (64, [WL('TRP'), pm[0]]), (67, pm[1]),
          (60, DS(f"ds_write_b16 v{vSA}, v{vONE}")),
          (72, m_write(0, (2, 3)) + trm_reads('TRM0') + trs_reads() + [DS(f"ds_write_b16 v{vSA}, v{vZERO}")])]
    if SPREAD:
        sd += [(57, list_reads_loop(par))]
    if BAL:
        sd += [(2, V(f"v_mov_b32 v{W0D}, s{sNT}") if BAL == 1 else [S(f"s_sub_u32 s{sPUB}, s{sNT}, s{sBIAS}"), V(f"v_mov_b32 v{W0D}, s{sPUB}")]), (3, V(f"v_mov_b32 v{W0D+1}, s{sPGW}")),
               (4, V(f"v_mov_b32 v{W0D+2}, s{sPGR}")),
               (6, [DS(f"ds_write_b32 v{W0D+1}, v{W0D}"), DS(f"ds_read_b32 v{W0D+3}, v{W0D+2}", 'PG')]),
               (33, [WL('PG'), V(f"v_readfirstlane_b32 s{sPGP}, v{W0D+3}")]),
               (35, [S("s_setprio 0"), S(f"s_cmp_gt_u32 s{sNT}, s{sPGP}"), S(f"s_cbranch_scc0 LM_pg{par}"),
                     S("s_setprio 1"), S(f"LM_pg{par}:")])]
    return merge(silu_stream(0), sd)

def phaseB(par):
    q = 1 - par
    ch = chain(0)
    pr = pre_ops(q)
    da = dma_addr()
    dp, dpos = dma_pairs(q)
    sd = [(0, list_reads_loop(par)),
          (31, srd_ops()),
          (2, [WL('PD'), pr[0]]), (3, pr[1]), (4, pr[2]), (6, pr[3]), (7, pr[4]), (9, pr[5]), (10, pr[6]),
          (11, pr[7]), (13, pr[8]), (14, pr[9]), (15, pr[10]), (17, pr[11]), (18, pr[12]),
          (4, ch[0]), (8, [WL('TRS'), seg(0, 0)]), (12, ch[1]), (16, seg(0, 1)), (20, ch[2]),
          (23, csm(0, 0)), (27, ch[3]), (30, csm(0, 1)), (33, ch[4]),
          (36, m_write(1, (0, 1))), (19, SA_OP), (39, ch[5]), (46, ch[6]),
          (21, [WL('L3'), da[0]]), (22, da[1]), (24, da[2]), (25, da[3]), (26, da[4]), (28, da[5]),
          (39, dp[0][0]), (41, dp[0][1]), (43, dp[1][0]), (44, dp[1][1]), (47, dp[2][0]), (48, dp[2][1]),
          (49, dp[3][0]), (51, dp[3][1]), (52, dp[4][0]), (54, dp[4][1]), (56, dpos),
          (72, m_write(1, (2, 3)) + trm_reads('TRM1'))]
    if SPREAD:
        sd = [(0, srd_ops()),
          (2, [WL('L3'), pr[0]]), (3, pr[1]), (4, pr[2]), (6, pr[3]), (7, pr[4]), (13, pr[5]), (14, pr[6]),
          (15, pr[7]), (17, pr[8]), (18, pr[9]), (21, pr[10]), (22, pr[11]), (24, pr[12]),
          (4, ch[0]), (8, [WL('TRS'), seg(0, 0)]), (12, ch[1]), (16, seg(0, 1)), (20, ch[2]),
          (23, csm(0, 0)), (27, ch[3]), (30, csm(0, 1)), (33, ch[4]),
          (36, m_write(1, (0, 1))), (25, SA_OP), (39, ch[5]), (46, ch[6]),
          (5, da[0]), (9, da[1]), (10, da[2]), (11, da[3]), (26, da[4]), (28, da[5]),
          (72, m_write(1, (2, 3)) + trm_reads('TRM1'))]
        for i in range(5):
            sd += [(SPOS[i] - 2, dp[i][0]), (SPOS[i], dp[i][1])]
        sd += [(SPOS[5], dpos)]
    if par == 1 and not MB:
        sd += [(60, V(f"v_add_u32 v{vL0E}, 256, v{vL0E}")),
               (64, V(f"v_add_u32 v{vL1P}, 256, v{vL1P}"))]
    return merge(silu_stream(1), sd)

def resolve(body):
    n = len(body)
    res = []
    for i, op in enumerate(body):
        if op[0] != 'wl':
            res.append(op[1]); continue
        cnt = 0
        for d in range(1, n + 1):
            o = body[(i - d) % n]
            if o[0] == 'ds':
                if o[2] == op[2]:
                    break
                cnt += 1
        else:
            raise Exception("tag not found " + op[2])
        res.append(f"s_waitcnt lgkmcnt({min(cnt, 15)})")
    return res

def resolve_lin(body, start):
    res = []
    for i in range(start, len(body)):
        op = body[i]
        if op[0] != 'wl':
            res.append(op[1]); continue
        cnt = 0
        for d in range(1, i + 1):
            o = body[i - d]
            if o[0] == 'ds':
                if o[2] == op[2]:
                    break
                cnt += 1
        else:
            raise Exception("tag not found " + op[2])
        res.append(f"s_waitcnt lgkmcnt({min(cnt, 15)})")
    return res
eE32, eHH, eH16, eL16, eNODE, eSTO, ePOFF, eT = PS0, PS0 + 1, PS0 + 2, W0D, W0D + 1, W0D + 2, W0D + 3, PS1
def whreg(f):
    return WSF + 4 * f if f < 14 else SO + 4 * (f - 14)
WHORD = (8, 9, 10, 11, 12, 13, 14, 15, 0, 1, 2, 3, 4, 5, 6, 7)
def wh_pre():
    return [V(f"v_and_b32 v{eL16}, 63, v0"), V(f"v_lshlrev_b32 v{eL16}, 4, v{eL16}")] + \
           [S(f"s_mov_b32 s{sWH+j}, {WF_OFF + 24*1024 + 4096*j}") for j in range(4)]
def wh_load(f):
    return VM(f"buffer_load_dwordx4 {vr(whreg(f),4)}, v{eL16}, s[{S_WS}:{S_WS+3}], s{sWH + f//4} offen offset:{(f%4)*1024}")
def tailB(par):
    sd = [(0, wh_pre() + [S(f"s_mov_b32 s{sTMP}, {par*ST_SZ}")]),
          (8, [WL('TRS'), seg(0, 0)]), (16, seg(0, 1)), (23, csm(0, 0)), (30, csm(0, 1)),
          (36, m_write(1, (0, 1))),
          (52, [WV(16)] + stage_reads(par)[:4]),
          (72, m_write(1, (2, 3)) + trm_reads('TRM1'))]
    for i, f in enumerate(WHORD):
        sd.append((2 + 2 * i + (0 if i < 3 else 2), wh_load(f)))
    return merge(silu_stream(1), sd)
def emit(ops):
    for o in ops:
        assert o[0] != 'wl'
        A("    " + o[1])
def emit_dma(q):
    dp, dpos = dma_pairs(q)
    for a, b in dp:
        emit([a, S("s_nop 0"), b])
    emit(dpos)

fill_start = len(out)
A(f"    s_cmp_lg_u32 s{sNT}, 0")
A("    s_cbranch_scc1 LM_g01")
A("    s_waitcnt vmcnt(0)")
A("    s_branch LM_nog")
A("LM_g01:")
for k in range(2):
    emit(list_reads(k))
    A("    s_waitcnt lgkmcnt(0)")
    emit(dma_addr())
    emit_dma(k)
A("LM_nog:")
A(f"    s_cmp_lg_u32 s{sBASE}, 0")
A("    s_cbranch_scc1 LM_noat2")
A("    s_waitcnt vmcnt(12)")
at_block()
A("LM_noat2:")
A(f"    s_cmp_eq_u32 s{sNT}, 0")
A("    s_cbranch_scc1 LM_tiles_done")
A(f"    ds_read_b32 v{vW0E}, v{vL0E} offset:{L_W0}")
emit(list_reads(2))
for r in list(range(TRM, TRM + 16)) + list(range(PK + 8, PK + 16)) + list(range(CS, CS + 4)) + list(range(DX[1], DX[1] + 3)):
    A(f"    v_mov_b32 v{r}, 0")
A("    s_waitcnt lgkmcnt(0)")
emit(nb_ops(0))
emit([SA_OP])
emit(dma_addr())
A("    s_waitcnt vmcnt(6)")
emit(stage_reads(0))
emit(so_reads(0))
emit(unp_ops(0))
A("    s_waitcnt lgkmcnt(0)")
emit(pre_ops(0))
emit_dma(0)
emit(chain(0))
A("    s_nop 15")
if MB:
    A(f"    s_mov_b32 s{sNT}, 400")
    STAMP()
HALF = None
body = []
marks = []
for par in range(2):
    body += phaseA(par)
    body.append(('br', 2 + par, None))
    body += phaseB(par)
    body.append(('br', par, None))
XF = os.environ.get("XF", "").split(",")
def keep(o):
    if o[0] in ('br', 'wl'): return True
    t = o[1]
    if 'nodma' in XF and o[0] == 'vm': return False
    if 'noea' in XF and o[0] == 'vm' and f"s[{S_EA}:" in t: return False
    if 'noh' in XF and o[0] == 'vm' and f"s[{S_H}:" in t: return False
    if 'nopos' in XF and o[0] == 'vm' and f"s[{S_P4}:" in t: return False
    if 'noadd' in XF and t.startswith('ds_add'): return False
    if 'nomw' in XF and t.startswith('ds_write'): return False
    if 'notrans' in XF and (t.startswith('v_exp') or t.startswith('v_rcp')): return False
    if 'novalu' in XF and o[0] == 'v': return False
    if 'nomfma' in XF and o[0] == 'm': return False
    if 'nods' in XF and o[0] == 'ds' and o[2] is None: return False
    return True
body = [o for o in body if keep(o)]
flat = [o for o in body if o[0] != 'br']
txt = resolve(flat)
A("LM_loop:")
k = 0
loop_lines = []
for o in body:
    if o[0] == 'br':
        l = [f"s_sub_u32 s{sNT}, s{sNT}, 1"]
        if o[1] >= 2:
            l = [f"s_cmp_eq_u32 s{sNT}, s{sTAIL}", f"s_cbranch_scc1 LM_tail{o[1]-2}"]
        elif o[1] == 0:
            l += [f"s_cmp_eq_u32 s{sNT}, 0", "s_cbranch_scc1 LM_drain0"]
        else:
            l += [f"s_cmp_lg_u32 s{sNT}, 0", "s_cbranch_scc1 LM_loop"]
        for x in l:
            A("    " + x); loop_lines.append(x)
    else:
        A("    " + txt[k]); loop_lines.append(txt[k]); k += 1
def drain(par):
    l = [S("s_waitcnt lgkmcnt(0)"), seg(1, 0), seg(1, 1), csm(1, 0), csm(1, 1), S("s_nop 9")]
    pv, pd, pm = post_ops(par)
    return l + pv + pd + [S("s_waitcnt lgkmcnt(0)")] + pm
tail_txt = {}
for par in range(2):
    pre = phaseA(1 - par) + phaseB(1 - par) + phaseA(par)
    pre = [o for o in pre if keep(o)]
    tl = [o for o in tailB(par) if keep(o)]
    tail_txt[par] = resolve_lin(pre + tl, len(pre)) + [o[1] for o in drain(par)]
emit(drain(1))
A("    s_branch LM_tiles_done")
for par in range(2):
    A(f"LM_tail{par}:")
    for x in tail_txt[par]:
        A("    " + x)
    A("    s_branch LM_epif")
A("LM_drain0:")
emit(drain(0))
A("LM_tiles_done:")
A(f"    s_mov_b32 s{S_H+2}, {N*128}")
A(f"    s_mov_b32 s{S_EA+2}, {E*32}")
A(f"    s_mov_b32 s{S_P4+2}, {N}")
errs = lint(out[fill_start:out.index("LM_loop:")] + loop_lines + loop_lines + [o[1] for o in drain(1)], "loop")
half = loop_lines.index("s_cbranch_scc1 LM_drain0") + 1
errs += lint(loop_lines[:half] + [o[1] for o in drain(0)], "drain0")
for par in range(2):
    cut = loop_lines.index(f"s_cbranch_scc1 LM_tail{par}") + 1
    errs += lint(loop_lines + loop_lines[:cut] + tail_txt[par], f"tail{par}")
for e in errs:
    print("LINT", e)
nv = sum(1 for l in loop_lines if l.startswith("v_") and not l.startswith("v_mfma"))
print("loop: instrs", len(loop_lines), "valu", nv, "per tile", nv / 2)

A("    s_waitcnt vmcnt(0) lgkmcnt(0)")
A(f"    s_add_u32 s{sBASE}, s{sBASE}, {CAP}")
A(f"    s_cmp_ge_u32 s{sBASE}, s{sT}")
A("    s_cbranch_scc1 LM_epi")
lane_consts()
A(f"    s_lshl_b32 s3, s2, 13")
A(f"    s_lshl_b32 s4, s{sW}, 2")
A(f"    s_add_u32 s3, s3, s4")
A(f"    s_add_u32 s3, s3, {TBL_OFF}")
A(f"    v_lshlrev_b32 v{X}, 5, v{xLANE}")
A(f"    v_add_u32 v{X+1}, 4096, v{X}")
for j in range(4):
    A(f"    buffer_load_dword v{T_+j}, v{X+j//2}, s[{S_WS}:{S_WS+3}], s3 offen offset:{2048*(j%2)}")
A("    s_waitcnt vmcnt(0)")
A("    s_branch LM_slowbase")
HD = TRM
def whf(q, tp):
    return whreg(2 * q + tp)
def epilogue(fast):
    epi_start = len(out)
    A(f"    v_and_b32 v{eE32}, 31, v0")
    A(f"    v_bfe_u32 v{eHH}, v0, 5, 1")
    A(f"    v_add_u32 v{eNODE}, s{sNODE}, v{eE32}")
    A(f"    v_lshlrev_b32 v{eSTO}, 7, v{eNODE}")
    A(f"    v_lshl_add_u32 v{eSTO}, v{eHH}, 3, v{eSTO}")
    if not fast:
        A(f"    v_lshlrev_b32 v{eH16}, 4, v{eHH}")
        emit(wh_pre())
        for f in WHORD:
            emit([wh_load(f)])
        A(f"    v_lshl_add_u32 v{eT}, v{eNODE}, 7, v{eH16}")
        for s in range(4):
            A(f"    buffer_load_dwordx4 {vr(HB+4*s,4)}, v{eT}, s[{S_H}:{S_H+3}], 0 offen offset:{32*s}")
        for t in range(2):
            for q in range(4):
                A(f"    buffer_load_dwordx2 {vr(HD+8*t+2*q,2)}, v{eSTO}, s[{S_H}:{S_H+3}], 0 offen offset:{64*t+16*q}")
    else:
        A(f"    v_lshrrev_b32 v{eT}, 3, v{eE32}          ; i")
        A(f"    v_and_b32 v{eH16}, 7, v{eE32}            ; r")
        A(f"    s_add_u32 s{sTMP}, s{sTMP}, s{sSTG}")
        A(f"    v_lshl_add_u32 v{ePOFF}, v{eT}, 10, s{sTMP}")
        A(f"    v_lshl_add_u32 v{ePOFF}, v{eH16}, 7, v{ePOFF}")
        A(f"    v_lshl_add_u32 v{ePOFF}, v{eHH}, 3, v{ePOFF}")
        A(f"    v_and_b32 v{eT}, 1, v{eT}")
        A(f"    v_xor_b32 v{eT}, v{eT}, v{eH16}          ; x")
        A(f"    v_lshl_add_u32 v{ePOFF}, v{eT}, 4, v{ePOFF}")
        for c in range(8):
            A(f"    v_xor_b32 v{TMP+c}, {16*c}, v{ePOFF}")
        for c in range(8):
            A(f"    ds_read_b64 {vr(HD+2*c,2)}, v{TMP+c}")
    for r in range(32):
        A(f"    v_mul_f32 v{SEG+r}, s{sLN2}, v{SEG+r}")
    for j in range(16):
        A(f"    v_cvt_pk_bf16_f32 v{PK+j}, v{SEG+2*j}, v{SEG+2*j+1}")
    NL = 0 if fast else 12
    def mm():
        A(f"    s_waitcnt vmcnt({8 + NL + (0 if fast else 3)})")
        for tp in range(2):
            for i, q in enumerate((4, 5, 6, 7)):
                c = "0" if i == 0 else vr(ACC+16*tp,16)
                A(f"    v_mfma_f32_32x32x16_bf16 {vr(ACC+16*tp,16)}, {vr(whf(q,tp),4)}, {vr(PK+4*(q-4),4)}, {c}")
        A(f"    s_waitcnt vmcnt({0 if fast else 8 + 3})")
        for tp in range(2):
            for q in range(4):
                A(f"    v_mfma_f32_32x32x16_bf16 {vr(ACC+16*tp,16)}, {vr(whf(q,tp),4)}, {vr(HB+4*q,4)}, {vr(ACC+16*tp,16)}")
    if fast:
        A("    s_nop 0")
        mm()
    A("    s_mov_b64 exec, 0x01ffffff")
    A(f"    v_lshl_add_u32 v{eT}, v{eE32}, 4, s{sPAB}")
    A(f"    ds_read_b96 {vr(TMP+4,3)}, v{eT}")
    A(f"    v_mul_u32_u24 v{ePOFF}, 6, v{eNODE}")
    A(f"    v_add_u32 v{ePOFF}, {N*128}, v{ePOFF}")
    A(f"    v_cvt_pk_bf16_f32 v{CS}, v{PAC}, v{PAC+1}")
    A(f"    v_cvt_pk_bf16_f32 v{CS+1}, v{PAC+2}, v{PAC+2}")
    A(f"    v_lshlrev_b32 v{TMP}, 16, v{CS}")
    A(f"    v_and_b32 v{TMP+1}, s{sHI}, v{CS}")
    A(f"    v_lshlrev_b32 v{TMP+2}, 16, v{CS+1}")
    A("    s_waitcnt lgkmcnt(0)")
    for c in range(3):
        A(f"    v_add_f32 v{TMP+c}, v{TMP+c}, v{TMP+4+c}")
    for c in range(3):
        A(f"    v_cvt_pk_bf16_f32 v{CS+c}, v{TMP+c}, v{TMP+c}")
    for c in range(3):
        A(f"    buffer_store_short v{CS+c}, v{ePOFF}, s[{S_OUT}:{S_OUT+3}], 0 offen offset:{2*c}" + OST)
    A("    s_mov_b64 exec, -1")
    if not fast:
        mm()
        A("    s_nop 15")
    for j in range(16):
        a0, a1 = ACC + 2 * j, ACC + 2 * j + 1
        A(f"    v_cvt_pk_bf16_f32 v{TMP}, v{a0}, v{a1}")
        A(f"    v_lshlrev_b32 v{a0}, 16, v{TMP}")
        A(f"    v_and_b32 v{a1}, s{sHI}, v{TMP}")
    A(f"    s_mov_b32 s3, 0x{LOG2E:08x}")
    for g0 in range(0, 32, 8):
        rs = range(g0, g0 + 8)
        for r in rs: A(f"    v_mul_f32 v{TMP+r%8}, s3, v{ACC+r}")
        for r in rs: A(f"    v_exp_f32 v{TMP+r%8}, v{TMP+r%8}")
        for r in rs: A(f"    v_add_f32 v{TMP+r%8}, 1.0, v{TMP+r%8}")
        for r in rs: A(f"    v_rcp_f32 v{TMP+r%8}, v{TMP+r%8}")
        for r in rs: A(f"    v_mul_f32 v{ACC+r}, v{ACC+r}, v{TMP+r%8}")
    if not fast:
        A("    s_waitcnt vmcnt(3)")
    for j in range(16):
        a0, a1 = ACC + 2 * j, ACC + 2 * j + 1
        hv = HD + j
        A(f"    v_cvt_pk_bf16_f32 v{TMP}, v{a0}, v{a1}")
        A(f"    v_lshlrev_b32 v{a0}, 16, v{TMP}")
        A(f"    v_and_b32 v{a1}, s{sHI}, v{TMP}")
        A(f"    v_lshlrev_b32 v{TMP+1}, 16, v{hv}")
        A(f"    v_and_b32 v{TMP+2}, s{sHI}, v{hv}")
        A(f"    v_add_f32 v{a0}, v{a0}, v{TMP+1}")
        A(f"    v_add_f32 v{a1}, v{a1}, v{TMP+2}")
        A(f"    v_cvt_pk_bf16_f32 v{PK+j}, v{a0}, v{a1}")
    A(f"    s_mov_b64 exec, s[{sM25}:{sM25+1}]")
    for t in range(2):
        for q in range(4):
            A(f"    buffer_store_dwordx2 {vr(PK+8*t+2*q,2)}, v{eSTO}, s[{S_OUT}:{S_OUT+3}], 0 offen offset:{64*t+16*q}" + OST)
    pre = tail_txt[0][-30:] if fast else []
    for e in lint(pre + out[epi_start:], "epi"):
        print("LINT", e)
A("LM_epi:")
_sv = _stamp[0]
STAMP()
epilogue(0)
A("    s_branch LM_fin")
A("LM_epif:")
_stamp[0] = _sv
STAMP()
epilogue(1)
A("LM_fin:")
if PROF:
    A("    s_mov_b64 exec, -1")
    prof_dump("LP", "LM_end", sW, 82, _stamp[0])
A("LM_end:")
A("    s_endpgm")

A('.section .rodata,"a"')
for name, nv in (("egnn_sort_kernel", 88), ("egnn_main_kernel", 256)):
    A(".p2align 6")
    A(f".amdhsa_kernel {name}")
    A(f"  .amdhsa_next_free_vgpr {nv}")
    A("  .amdhsa_next_free_sgpr 100")
    A(f"  .amdhsa_accum_offset {nv}")
    A("  .amdhsa_group_segment_fixed_size 0")
    A("  .amdhsa_kernarg_size 88")
    A("  .amdhsa_user_sgpr_count 2")
    A("  .amdhsa_user_sgpr_kernarg_segment_ptr 1")
    A("  .amdhsa_system_sgpr_workgroup_id_x 1")
    A(".end_amdhsa_kernel")

path = sys.argv[1] if len(sys.argv) > 1 else f"cdna_kernels/{NAME}.s"
open(path, "w").write("\n".join(out) + "\n")
print("wrote", path, len(out), "lines; sort lds", SORT_LDS, "main lds", MAIN_LDS, "vgprs", NVGPR)
```

```python
import sys, os
sys.path.insert(0, os.path.dirname(os.path.abspath(__file__)))
from lint import lint
PROF = int(os.environ.get("PROF", "0"))
MB = int(os.environ.get("MB", "0"))
EANT = os.environ.get("EANT", "")
BAL = int(os.environ.get("BAL", "1"))
PH = int(os.environ.get("PH", "1"))
F16 = int(os.environ.get("F16", "1"))
MT = "f16" if F16 else "bf16"
CVT = "v_cvt_pk_f16_f32" if F16 else "v_cvt_pk_bf16_f32"
PF = int(os.environ.get("PF", "0"))
PFN = int(os.environ.get("PFN", "25000"))
TH = int(os.environ.get("TH", "25000"))

PFW = int(os.environ.get("PFW", "0"))
PFS = int(os.environ.get("PFS", "0"))
PFSH = int(os.environ.get("PFSH", "0"))
NPS = PFS + PFSH
PFI = int(os.environ.get("PFI", "2"))
PFH = int(os.environ.get("PFH", "1"))
SST = os.environ.get("SST", "sc1")
SST = (" " + SST.replace(",", " ")) if SST else ""
OST = os.environ.get("OST", "")
OST = (" " + OST.replace(",", " ")) if OST else ""
PST = os.environ.get("PST", "")
PST = (" " + PST.replace(",", " ")) if PST else ""
LOUT = int(os.environ.get("LOUT", "1"))
NAME = "gather_scatter__cheap_equivariant_egnn__graph"
N = 50000
E = 800000
G = 250
GW = 4
C = 3200
NBK = 250
BN = 200
FBN = 25
REC_OFF = 0
TBL_OFF = E * 8
WF_OFF = TBL_OFF + 256 * 8192
P4_OFF = WF_OFF + 40 * 1024
WS_USED = P4_OFF + N * 8
LOG2E = 0xbfb8aa3b
LN2 = 0xbf317218
PADNB = 30

out = []
def A(s=""):
    out.append(s)

_stamp = [0]
def STAMP(lvl=1):
    if PROF != lvl and lvl != 0:
        return
    if not PROF:
        return
    i = _stamp[0]; _stamp[0] += 1
    assert i < 7
    A(f"    s_memtime s[{82+2*i}:{83+2*i}]")
_sst = [0]
def SSTAMP():
    if not PROF:
        return
    i = _sst[0]; _sst[0] += 1
    assert i < 7
    A(f"    s_memtime s[{46+2*i}:{47+2*i}]")

def srd(base, lo, hi, nbytes, stride=0):
    A(f"    s_mov_b32 s{base}, s{lo}")
    A(f"    s_and_b32 s{base+1}, s{hi}, 0xffff")
    if stride:
        A(f"    s_or_b32 s{base+1}, s{base+1}, {stride << 16}")
    A(f"    s_mov_b32 s{base+2}, {nbytes}")
    A(f"    s_mov_b32 s{base+3}, 0x00020000")

def vr(a, n):
    return f"v[{a}:{a+n-1}]"

def wave_scan(x):
    for sh in (1, 2, 4, 8):
        A("    s_nop 1")
        A(f"    v_add_u32_dpp v{x}, v{x}, v{x} row_shr:{sh} row_mask:0xf bank_mask:0xf bound_ctrl:0")
    A("    s_nop 1")
    A(f"    v_add_u32_dpp v{x}, v{x}, v{x} row_bcast:15 row_mask:0xa bank_mask:0xf")
    A("    s_nop 1")
    A(f"    v_add_u32_dpp v{x}, v{x}, v{x} row_bcast:31 row_mask:0xc bank_mask:0xf")
    A("    s_nop 1")

PALL = int(os.environ.get("PALL", "0"))
def prof_all(wreg, base, n, off, rt0):
    A("    s_waitcnt vmcnt(0)")
    A(f"    s_memtime s[{base+2*n}:{base+2*n+1}]")
    A(f"    s_memrealtime s[66:67]")
    A("    s_load_dwordx2 s[64:65], s[0:1], 80")
    A("    s_getreg_b32 s75, hwreg(HW_REG_HW_ID)")
    A("    s_getreg_b32 s77, hwreg(HW_REG_XCC_ID)")
    A("    s_waitcnt lgkmcnt(0)")
    srd(68, 64, 65, 256 << 20)
    A("    s_lshl_b32 s72, s2, 4")
    A(f"    s_add_u32 s72, s72, s{wreg}")
    A("    s_lshl_b32 s72, s72, 6")
    A(f"    s_add_u32 s72, s72, {off}")
    A("    s_mov_b64 exec, 1")
    A("    v_mov_b32 v1, s72")
    for i in range(1, n + 1):
        A(f"    s_sub_u32 s73, s{base+2*i}, s{base}")
        A(f"    v_mov_b32 v2, s73")
        A(f"    buffer_store_dword v2, v1, s[68:71], 0 offen offset:{4*i}")
    for j, r in enumerate((rt0, 66, 75, 77, 96)):
        A(f"    v_mov_b32 v2, s{r}")
        A(f"    buffer_store_dword v2, v1, s[68:71], 0 offen offset:{32+4*j}")
def prof_dump(lbl, endlbl, wreg, base, n):
    if PALL:
        return prof_all(wreg, base, n, (200 << 20) + (0 if lbl == "LP" else 1 << 20), 98 if lbl == "LP" else 62)
    A("    s_waitcnt vmcnt(0)")
    A(f"    s_memtime s[{base+2*n}:{base+2*n+1}]")
    A("    s_load_dwordx2 s[64:65], s[0:1], 72")
    A("    s_waitcnt lgkmcnt(0)")
    srd(68, 64, 65, 256)
    A("    s_mov_b32 s72, 0")
    A("    s_cmp_eq_u32 s2, 0")
    A(f"    s_cbranch_scc1 {lbl}_a")
    A("    s_mov_b32 s72, 2")
    A("    s_cmp_eq_u32 s2, 137")
    A(f"    s_cbranch_scc0 {endlbl}")
    A(f"{lbl}_a:")
    A(f"    s_cmp_eq_u32 s{wreg}, 0")
    A(f"    s_cbranch_scc1 {lbl}_b")
    A("    s_add_u32 s72, s72, 1")
    A(f"    s_cmp_eq_u32 s{wreg}, 7")
    A(f"    s_cbranch_scc0 {endlbl}")
    A(f"{lbl}_b:")
    A("    s_lshl_b32 s72, s72, 5")
    A("    s_mov_b64 exec, 1")
    A("    v_mov_b32 v1, s72")
    for i in range(1, n + 1):
        A(f"    s_sub_u32 s73, s{base+2*i}, s{base}")
        A(f"    v_mov_b32 v2, s73")
        A(f"    buffer_store_dword v2, v1, s[68:71], 0 offen offset:{4*i}")

S_HIST = 0
S_OFF = 8192
S_WT = 16384
S_STAGE = 16384 + 64
SORT_LDS = S_STAGE + C * 8
CAP = 512
ST_SZ = 5120
L_ID = 0
ID_RS = 80
L_PA = L_ID + 32 * ID_RS
L_Z = L_PA + 8 * 512
L_PRG = L_Z + 1024
L_PS = L_PRG + 128
L_W0 = L_PS + 1024
L_W1 = L_W0 + 8 * CAP * 4
L_MS = L_W1 + 8 * CAP * 4
MS_RS = 136
MS_W = 32 * MS_RS
L_ST = L_MS + 8 * MS_W
assert L_PRG % 32 == 0
assert L_ST % 128 == 0 and L_PA % 16 == 0 and L_ID % 16 == 0
L_TB = L_MS
L_WF = L_MS + 8192
assert L_WF + 24576 <= L_ST
L_RAW = L_ST
MAIN_LDS = L_ST + 16 * ST_SZ
assert MAIN_LDS <= 163840, MAIN_LDS

A(f"; @launch kernel=egnn_sort_kernel grid=({G+GW+PFW},1,1) block=(640,1,1) lds={SORT_LDS}")
A(f"; @launch kernel=egnn_main_kernel grid=({NBK},1,1) block=(512,1,1) lds={MAIN_LDS}")
A('.amdgcn_target "amdgcn-amd-amdhsa--gfx950"')
A(".text")

A(".globl egnn_sort_kernel")
A(".p2align 8")
A(".type egnn_sort_kernel,@function")
A("egnn_sort_kernel:")
A(f"    s_cmp_ge_u32 s2, {G+GW}")
A("    s_cbranch_scc1 LS_pf")
A(f"    s_cmp_ge_u32 s2, {G}")
A("    s_cbranch_scc1 LS_weights")
SSTAMP()
if PALL:
    A("    s_memrealtime s[62:63]")
A("    s_load_dwordx2 s[4:5], s[0:1], 8      ; pos")
A("    s_load_dwordx4 s[8:11], s[0:1], 24    ; src, dst")
A("    s_load_dwordx2 s[12:13], s[0:1], 80   ; ws")
if NPS:
    A("    s_load_dwordx2 s[40:41], s[0:1], 0     ; h")
    A("    s_load_dwordx2 s[42:43], s[0:1], 16    ; e_attr")
A("    v_lshlrev_b32 v1, 4, v0")
if NPS:
    A("    v_mov_b32 v82, v1")
for j in range(4):
    A(f"    v_mov_b32 v{4+j}, 0")
A("    v_cmp_gt_u32 vcc, 512, v0")
A("    s_and_saveexec_b64 s[14:15], vcc")
A(f"    ds_write_b128 v1, v[4:7] offset:{S_HIST}")
A("    s_mov_b64 exec, s[14:15]")
A("    v_lshlrev_b32 v1, 2, v0")
A(f"    s_mul_i32 s3, s2, {C * 4}")
A("    v_add_u32 v1, s3, v1")
SL = 5
for k in range(1, SL):
    A(f"    s_mov_b32 s{35+k}, {k*2560}")
A(f"    s_mul_i32 s3, s2, {BN}")
A("    v_add_u32 v44, s3, v0                ; node")
A("    v_mul_u32_u24 v45, 6, v44")
A("    s_waitcnt lgkmcnt(0)")
SSTAMP()
srd(24, 10, 11, E * 4)
srd(20, 8, 9, E * 4)
for k in range(SL):
    so = "0" if k == 0 else f"s{35+k}"
    A(f"    buffer_load_dword v{10+k}, v1, s[24:27], {so} offen")
    A(f"    buffer_load_dword v{15+k}, v1, s[20:23], {so} offen")
srd(16, 4, 5, N * 6)
srd(28, 12, 13, WS_USED)
for c in range(3):
    A(f"    buffer_load_ushort v{40+c}, v45, s[16:19], 0 offen offset:{2*c}")
if NPS:
    srd(64, 40, 41, N * 128)
    srd(68, 42, 43, E * 32)
    A(f"    s_mul_i32 s40, s2, {BN*128}")
    A(f"    s_mul_i32 s41, s2, {PFS*10240}")
    for i in range(max(PFS, PFSH)):
        if i < PFSH:
            A(f"    buffer_load_dwordx4 v[84:87], v82, s[64:67], s40 offen")
            A(f"    s_add_u32 s40, s40, 10240")
        if i < PFS:
            A(f"    buffer_load_dwordx4 v[84:87], v82, s[68:71], s41 offen")
            A(f"    s_add_u32 s41, s41, 10240")
A("    s_barrier")
A("    s_mov_b32 s14, 83887")
A("    v_mov_b32 v3, 1")
A(f"    s_mul_i32 s3, s2, {C}")
A("    v_add_u32 v46, s3, v0")
for k in range(SL):
    A(f"    s_waitcnt vmcnt({NPS + 3 + 2*(SL-1-k)})")
    d, s = 10 + k, 15 + k
    A(f"    v_mul_u32_u24 v4, s14, v{d}")
    A(f"    v_lshrrev_b32 v4, 21, v4             ; key = dst/25")
    A(f"    v_lshlrev_b32 v{20+k}, 2, v4")
    A(f"    ds_add_rtn_u32 v{30+k}, v{20+k}, v3 offset:{S_HIST}")
    A(f"    v_mul_u32_u24 v5, {FBN}, v4")
    A(f"    v_sub_u32 v7, v{d}, v5               ; nb")
    A(f"    v_lshl_or_b32 v{50+2*k}, v{s}, 7, v7   ; w0")
    A(f"    v_add_u32 v8, {k*640}, v46")
    A(f"    v_lshlrev_b32 v{51+2*k}, 5, v8         ; w1")
A(f"    s_waitcnt vmcnt({NPS})")
A("    v_lshl_or_b32 v40, v41, 16, v40")
A("    v_lshlrev_b32 v41, 16, v42")
A("    v_lshlrev_b32 v44, 3, v44")
A(f"    v_add_u32 v44, {P4_OFF}, v44")
A(f"    v_cmp_gt_u32 vcc, {BN}, v0")
A("    s_and_saveexec_b64 s[44:45], vcc")
A("    s_cbranch_execz LS_nop4")
A("    buffer_store_dwordx2 v[40:41], v44, s[28:31], 0 offen" + SST)
A("LS_nop4:")
A("    s_mov_b64 exec, s[44:45]")
A("    s_waitcnt lgkmcnt(0)")
A("    s_barrier")
SSTAMP()
A("    v_lshrrev_b32 v81, 6, v0")
A("    v_lshlrev_b32 v2, 4, v0")
A("    v_readfirstlane_b32 s6, v81          ; wave")
A("    s_cmp_ge_u32 s6, 8")
A("    s_cbranch_scc1 LS_noscan1")
A(f"    ds_read_b128 v[4:7], v2 offset:{S_HIST}")
A("    s_waitcnt lgkmcnt(0)")
A("    v_add_u32 v8, v4, v5")
A("    v_add_u32 v9, v8, v6")
A("    v_add_u32 v70, v9, v7                ; total")
A("    v_mov_b32 v71, v70")
wave_scan(71)
A("    v_readlane_b32 s7, v71, 63")
A("    v_lshlrev_b32 v81, 2, v81")
A("    v_mov_b32 v72, s7")
A(f"    ds_write_b32 v81, v72 offset:{S_WT}")
A("    s_waitcnt lgkmcnt(0)")
A("LS_noscan1:")
A("    s_barrier")
A("    s_cmp_ge_u32 s6, 8")
A("    s_cbranch_scc1 LS_noscan")
A("    v_mov_b32 v81, 0")
A(f"    ds_read_b128 v[72:75], v81 offset:{S_WT}")
A(f"    ds_read_b128 v[76:79], v81 offset:{S_WT+16}")
A("    v_sub_u32 v71, v71, v70            ; exclusive")
A("    s_waitcnt lgkmcnt(0)")
for j in range(7):
    A(f"    s_cmp_gt_u32 s6, {j}")
    A(f"    s_cselect_b32 s7, -1, 0")
    A(f"    v_and_b32 v{72+j}, s7, v{72+j}")
    A(f"    v_add_u32 v71, v71, v{72+j}")
A("    v_mov_b32 v72, v71")
A("    v_add_u32 v73, v71, v4")
A("    v_add_u32 v74, v71, v8")
A("    v_add_u32 v75, v71, v9")
A(f"    ds_write_b128 v2, v[72:75] offset:{S_OFF}")
A("    v_lshl_or_b32 v76, v4, 16, v72")
A("    v_lshl_or_b32 v77, v5, 16, v73")
A("    v_lshl_or_b32 v78, v6, 16, v74")
A("    v_lshl_or_b32 v79, v7, 16, v75")
A("    s_and_b32 s3, s2, 3")
A("    s_lshl_b32 s3, s3, 6")
A("    s_lshr_b32 s7, s2, 2")
A("    s_add_u32 s3, s3, s7                 ; slot")
A("    s_lshl_b32 s3, s3, 5")
A(f"    s_add_u32 s3, s3, {TBL_OFF}")
A("    v_lshrrev_b32 v80, 1, v0")
A("    v_lshlrev_b32 v80, 13, v80")
A("    v_and_b32 v81, 1, v0")
A("    v_lshl_add_u32 v80, v81, 4, v80")
A("    buffer_store_dwordx4 v[76:79], v80, s[28:31], s3 offen" + SST)
A("    s_waitcnt lgkmcnt(0)")
A("LS_noscan:")
A("    s_barrier")
for k in range(SL):
    A(f"    ds_read_b32 v{35+k}, v{20+k} offset:{S_OFF}")
SSTAMP()
A("    s_waitcnt lgkmcnt(0)")
for k in range(SL):
    A(f"    v_add_u32 v2, v{35+k}, v{30+k}")
    A(f"    v_lshlrev_b32 v2, 3, v2")
    A(f"    ds_write_b64 v2, v[{50+2*k}:{51+2*k}] offset:{S_STAGE}")
A("    s_waitcnt lgkmcnt(0)")
A("    s_barrier")
SSTAMP()
A("    v_lshlrev_b32 v1, 3, v0")
for k in range(SL):
    A(f"    ds_read_b64 v[{50+2*k}:{51+2*k}], v1 offset:{S_STAGE + k*5120}")
A(f"    s_mul_i32 s3, s2, {C*8}")
A("    v_add_u32 v2, s3, v1")
for k in range(1, SL):
    A(f"    s_mov_b32 s{35+k}, {k*5120}")
for k in range(SL):
    A(f"    s_waitcnt lgkmcnt({SL-1-k})")
    so = "0" if k == 0 else f"s{35+k}"
    A(f"    buffer_store_dwordx2 v[{50+2*k}:{51+2*k}], v2, s[28:31], {so} offen" + SST)
if PROF:
    A("    v_lshrrev_b32 v1, 6, v0")
    A("    s_nop 0")
    A("    v_readfirstlane_b32 s74, v1")
    prof_dump("LQ", "LS_end", 74, 46, _sst[0])
A("    s_branch LS_end")
A("LS_weights:")
A("    s_load_dwordx2 s[4:5], s[0:1], 40     ; w_e")
A("    s_load_dwordx2 s[6:7], s[0:1], 56     ; w_h")
A("    s_load_dwordx2 s[26:27], s[0:1], 48   ; w_x")
A("    s_load_dwordx2 s[12:13], s[0:1], 80   ; ws")
A("    v_lshrrev_b32 v1, 6, v0")
A("    s_nop 0")
A("    v_readfirstlane_b32 s3, v1")
A(f"    s_sub_u32 s8, s2, {G}")
A("    s_mul_i32 s8, s8, 10")
A("    s_add_u32 s8, s8, s3")
A("    s_cmp_eq_u32 s8, 23")
A("    s_cbranch_scc1 LS_end")
A("    s_waitcnt lgkmcnt(0)")
srd(16, 4, 5, 145 * 128)
srd(20, 6, 7, 128 * 128)
srd(28, 12, 13, WS_USED)
A("    s_and_b32 s14, s8, 1")
A("    s_lshr_b32 s15, s8, 1                  ; ks / q")
A("    s_mov_b32 s10, 8")
A("    s_mov_b32 s11, 4")
A("    s_mov_b32 s24, 1.0")
A("    s_cmp_ge_u32 s8, 24")
A("    s_cbranch_scc1 LS_wh")
A("    s_cmp_eq_u32 s8, 22")
A("    s_cbranch_scc1 LS_wd")
A("    s_cmp_ge_u32 s8, 18")
A("    s_cbranch_scc1 LS_wx")
A("    s_lshl_b32 s9, s15, 4")
A("    s_cmp_ge_u32 s15, 8")
A("    s_cselect_b32 s9, 129, s9")
A("    s_cmp_ge_u32 s15, 4")
A(f"    s_cselect_b32 s24, 0x{LOG2E:08x}, s24")
A("    s_branch LS_wgo")
A("LS_wh:")
A("    s_sub_u32 s15, s15, 12")
A("    s_lshl_b32 s9, s15, 4")
A("    s_cmp_ge_u32 s15, 4")
A("    s_cselect_b32 s10, 4, 8")
A("    s_cselect_b32 s11, 8, 4")
A("    s_mov_b32 s16, s20")
A("    s_mov_b32 s17, s21")
A("    s_mov_b32 s18, s22")
A("LS_wgo:")
A("    v_and_b32 v1, 31, v0")
A("    v_bfe_u32 v2, v0, 5, 1")
A("    v_mul_u32_u24 v2, s10, v2")
A("    v_add_u32 v2, s9, v2")
A("    v_lshlrev_b32 v2, 7, v2")
A("    v_lshl_add_u32 v2, v1, 1, v2")
A("    s_lshl_b32 s3, s14, 6")
A("    v_add_u32 v2, s3, v2")
A("    s_lshl_b32 s3, s11, 7")
A("    v_add_u32 v3, s3, v2                   ; j=4")
for j in range(4):
    A(f"    buffer_load_ushort v{10+j}, v2, s[16:19], 0 offen offset:{128*j}")
for j in range(4):
    A(f"    buffer_load_ushort v{14+j}, v3, s[16:19], 0 offen offset:{128*j}")
A("    s_waitcnt vmcnt(0)")
for j in range(8):
    A(f"    v_lshlrev_b32 v{10+j}, 16, v{10+j}")
    A(f"    v_mul_f32 v{10+j}, s24, v{10+j}")
for j in range(4):
    A(f"    v_cvt_pk_bf16_f32 v{20+j}, v{10+2*j}, v{11+2*j}")
A("LS_wst:")
A("    v_and_b32 v1, 63, v0")
A("    v_lshlrev_b32 v1, 4, v1")
A("    s_lshl_b32 s3, s8, 10")
A(f"    s_add_u32 s3, s3, {WF_OFF}")
A("    v_add_u32 v1, s3, v1")
A("    buffer_store_dwordx4 v[20:23], v1, s[28:31], 0 offen" + SST)
A("    s_branch LS_end")
A("LS_wx:")
srd(16, 26, 27, 128)
A("    s_sub_u32 s3, s8, 18")
A("    s_lshl_b32 s3, s3, 5")
A("    v_bfe_u32 v2, v0, 5, 1")
A("    v_lshlrev_b32 v2, 3, v2")
A("    v_add_u32 v2, s3, v2")
A("    buffer_load_dwordx2 v[20:21], v2, s[16:19], 0 offen")
A("    buffer_load_dwordx2 v[22:23], v2, s[16:19], 0 offen offset:16")
A(f"    s_mov_b32 s14, {(1<<8)|(1<<28)}")
A(f"    s_mov_b32 s15, {(1<<8)|(1<<28)}")
A("    s_waitcnt vmcnt(0)")
for j in range(4):
    A(f"    v_cndmask_b32 v{20+j}, 0, v{20+j}, s[14:15]")
    if F16:
        A(f"    v_lshlrev_b32 v3, 16, v{20+j}")
        A(f"    v_and_b32 v{20+j}, 0xffff0000, v{20+j}")
        A(f"    v_cvt_pk_f16_f32 v{20+j}, v3, v{20+j}")
A("    s_branch LS_wst")
A("LS_wd:")
A("    v_and_b32 v1, 31, v0")
A("    v_lshlrev_b32 v1, 1, v1")
A(f"    v_add_u32 v1, {128*128}, v1")
A("    buffer_load_ushort v20, v1, s[16:19], 0 offen")
A("    buffer_load_ushort v21, v1, s[16:19], 0 offen offset:64")
A(f"    s_mov_b32 s3, 0x{LOG2E:08x}")
A("    v_mov_b32 v22, 0")
A("    v_mov_b32 v23, 0")
A("    s_waitcnt vmcnt(0)")
for t in range(2):
    A(f"    v_lshlrev_b32 v{20+t}, 16, v{20+t}")
    A(f"    v_mul_f32 v{20+t}, s3, v{20+t}")
    A(f"    v_cvt_pk_bf16_f32 v{20+t}, v{20+t}, v{20+t}")
A("    s_branch LS_wst")
A("LS_pf:")
if PFW:
    A(f"    s_cmp_ge_u32 s2, {G+GW+PFW}")
    A("    s_cbranch_scc1 LS_end")
    A("    s_load_dwordx2 s[4:5], s[0:1], 0      ; h")
    A("    s_load_dwordx2 s[6:7], s[0:1], 16     ; e_attr")
    A(f"    s_sub_u32 s3, s2, {G+GW}")
    A(f"    s_mul_i32 s3, s3, 640")
    A("    v_add_u32 v1, s3, v0")
    A("    v_lshlrev_b32 v2, 7, v1               ; h line")
    A("    v_lshrrev_b32 v3, 6, v1")
    A(f"    v_mul_u32_u24 v3, {PFI*64}, v3")
    A("    v_and_b32 v4, 63, v0")
    A("    v_add_u32 v3, v3, v4")
    A("    v_lshlrev_b32 v3, 7, v3")
    A("    s_waitcnt lgkmcnt(0)")
    srd(16, 4, 5, N * 128)
    srd(20, 6, 7, E * 32)
    for i in range(PFI):
        A(f"    s_mov_b32 s3, {i*8192}")
        A(f"    buffer_load_dword v{8+i}, v3, s[20:23], s3 offen")
    if PFH:
        A(f"    buffer_load_dword v7, v2, s[16:19], 0 offen")
A("LS_end:")
A("    s_endpgm")

S_H, S_EA, S_WS, S_P4, S_WE, S_WX, S_OUT = 8, 12, 16, 20, 24, 28, 32
sW, sT, sBASE, sCNT, sLB, sNT, sNODE, sSTG = 40, 41, 42, 43, 44, 45, 46, 47
sHIGH = 50
sM25 = 52
sHI = 54
sAM = 55
sLN2 = 56
sP4O = 57
sIDRS = 58
sPAB = 59
sONE2 = 60
sPGW, sPGR, sPGP = 62, 63, 76
sINC, sDEL, sTAIL, sTMP, sWH = 24, 25, 26, 27, 28
FT = int(os.environ.get("FT", "1"))

_next = [1]
def alloc(n, align=1):
    while _next[0] % align:
        _next[0] += 1
    r = _next[0]; _next[0] += n
    return r
WSF = alloc(32, 4)
WAE = alloc(8, 4)
ATF = alloc(16, 4)
WX = alloc(16, 4)
ACC = alloc(32, 4)
SEG = alloc(32, 4)
HB = alloc(16, 4)
EA = alloc(4, 4)
SO = alloc(8, 4)
PK = alloc(16, 4)
TRM = alloc(8, 4)
TRS = alloc(8, 4)
CS = alloc(4, 4)
TMP = alloc(8, 4)
W0D = alloc(4, 4)
PAC = alloc(4, 4)
PS0 = alloc(3, 2); vW0E = alloc(1)
PS1 = alloc(3, 2); vNB = alloc(1)
PD = alloc(3, 2); vSA = alloc(1)
PS = (PS0, PS1)
DX = (alloc(3), alloc(3))
vW1P = alloc(1); vW0E3 = alloc(1)
vSWZ = (alloc(1), alloc(1))
vEAO = alloc(1)
vHBA = [alloc(1) for _ in range(4)]
vEAR, vIDB, vSWL, vMWL, vTRL = [alloc(1) for _ in range(5)]
assert _next[0] <= 256, _next[0]
vTRP, vL0E, vL0D = 1, 2, 3
vL1P, vONE, vZERO, vMASK = [alloc(1) for _ in range(4)]
assert _next[0] <= 256, _next[0]
NVGPR = _next[0]
def wsf(s, t): return WSF + (2 * s + t) * 4
def atf(u, t): return ATF + (2 * u + t) * 4
X = PK
assert W0D + 4 - PK == 48

A(".globl egnn_main_kernel")
A(".p2align 8")
A(".type egnn_main_kernel,@function")
A("egnn_main_kernel:")
A(f"    s_cmp_ge_u32 s2, {os.environ.get('LIMWG', NBK)}")
A("    s_cbranch_scc1 LM_end")
STAMP(0)
if PALL:
    A("    s_memrealtime s[98:99]")
A("    s_load_dwordx2 s[80:81], s[0:1], 80    ; ws")
A("    s_load_dwordx2 s[64:65], s[0:1], 0     ; h")
A("    s_load_dwordx2 s[66:67], s[0:1], 16    ; e_attr")
A("    s_load_dwordx2 s[78:79], s[0:1], 64    ; out")
xLANE, xE32, xHH, xH16, xL16, xT4 = X + 40, X + 41, X + 42, X + 43, X + 44, X + 45
def lane_consts():
    A(f"    v_and_b32 v{xLANE}, 63, v0")
    A(f"    v_and_b32 v{xE32}, 31, v0")
    A(f"    v_bfe_u32 v{xHH}, v0, 5, 1")
    A(f"    v_lshlrev_b32 v{xH16}, 4, v{xHH}")
    A(f"    v_lshlrev_b32 v{xL16}, 4, v{xLANE}")
    A(f"    v_lshlrev_b32 v{xT4}, 2, v0")
lane_consts()
A(f"    v_lshrrev_b32 v{X}, 6, v0")
A(f"    s_mov_b32 s{sHIGH}, 0")
A(f"    v_readfirstlane_b32 s{sW}, v{X}")
A(f"    s_mov_b32 s{sHIGH+1}, -1")
A(f"    s_mov_b32 s{sM25}, 0x01ffffff")
A(f"    s_mov_b32 s{sM25+1}, 0x01ffffff")
A(f"    s_mov_b32 s{sHI}, 0xffff0000")
A(f"    s_mov_b32 s{sAM}, {os.environ.get('HOTH', '0x007fff80')}")
sHOT = 61
A(f"    s_mov_b32 s{sHOT}, {os.environ.get('HOTEA', '0')}")
A(f"    s_mov_b32 s{sLN2}, 0x{LN2:08x}")
A(f"    s_mov_b32 s{sP4O}, {P4_OFF}")
A(f"    s_mov_b32 s{sIDRS}, {ID_RS}")
A(f"    s_mov_b32 s{sONE2}, 0x3c003c00")
A(f"    s_lshl_b32 s{sPGW}, s{sW}, 2")
A(f"    s_add_u32 s{sPGW}, s{sPGW}, {L_PRG}")
A(f"    s_xor_b32 s{sPGR}, s{sPGW}, 16")
sBIAS, sPUB = 36, 37
if BAL >= 2:
    A(f"    s_cmp_lt_u32 s{sW}, 4")
    A(f"    s_cselect_b32 s{sBIAS}, {1 if BAL == 2 else 0}, {0 if BAL == 2 else 1}")
A(f"    s_lshl_b32 s3, s2, 13")
A(f"    s_add_u32 s3, s3, {TBL_OFF}")
A(f"    v_lshlrev_b32 v{X+1}, 4, v0")
A(f"    s_lshl_b32 s4, s{sW}, 10")
A(f"    s_add_u32 m0, s4, {L_TB}")
A(f"    s_mov_b32 s5, {WF_OFF}")
A(f"    s_mul_i32 s{sSTG}, s{sW}, {2*ST_SZ}")
A(f"    s_add_u32 s{sSTG}, s{sSTG}, {L_ST}")
A(f"    s_mul_i32 s6, s2, {BN}")
A(f"    s_mul_i32 s4, s{sW}, {FBN}")
A(f"    s_add_u32 s{sNODE}, s6, s4")
A("    s_waitcnt lgkmcnt(0)")
STAMP(2)
srd(S_WS, 80, 81, WS_USED)
A(f"    buffer_load_dwordx4 v{X+1}, s[{S_WS}:{S_WS+3}], s3 offen lds")
A(f"    s_lshl_b32 s4, s{sW}, 10")
A(f"    s_add_u32 s5, s5, s4")
for i in range(3):
    A(f"    s_add_u32 m0, s4, {L_WF + 8192*i}")
    A(f"    s_add_u32 s3, s5, {8192*i}")
    A(f"    buffer_load_dwordx4 v{xL16}, s[{S_WS}:{S_WS+3}], s3 offen lds")
srd(S_H, 64, 65, N * 128)
NPF = 0
if PF:
    per_wg = -(-PFN // PF)
    per_w = -(-per_wg // 8)
    NPF = -(-per_w // 64)
    A(f"    s_mul_i32 s3, s2, {(1 << 20) // PF + 1}")
    A(f"    s_lshr_b32 s3, s3, 20")
    A(f"    s_mul_i32 s3, s3, {PF}")
    A(f"    s_sub_u32 s3, s2, s3                  ; slice")
    A(f"    s_mul_i32 s3, s3, {per_wg}")
    A(f"    s_mul_i32 s4, s{sW}, {per_w}")
    A(f"    s_add_u32 s3, s3, s4")
    A(f"    v_add_u32 v{X+2}, s3, v{xLANE}")
    A(f"    v_lshlrev_b32 v{X+2}, 7, v{X+2}")
    A(f"    s_mov_b32 m0, {L_W0}")
    for i in range(NPF):
        A(f"    s_mov_b32 s3, {i * 64 * 128}")
        A(f"    buffer_load_dword v{X+2}, s[{S_H}:{S_H+3}], s3 offen lds")
srd(S_P4, 80, 81, N, stride=8)
srd(S_EA, 66, 67, E * 32)
srd(S_OUT, 78, 79, N * 128 + N * 6)
STAMP(2)
def own_loads(X=X):
    A(f"    v_add_u32 v{X}, s{sNODE}, v{xE32}")
    A(f"    v_lshl_add_u32 v{X+1}, v{X}, 7, v{xH16}")
    for s in range(4):
        A(f"    buffer_load_dwordx4 {vr(HB+4*s,4)}, v{X+1}, s[{S_H}:{S_H+3}], 0 offen offset:{32*s}")
    A(f"    buffer_load_dwordx2 {vr(PD,2)}, v{X}, s[{S_P4}:{S_P4+3}], s{sP4O} idxen")
NOWN = 4 + 1
STAMP(2)
A(f"    s_mul_i32 s4, s{sW}, {MS_W}")
A(f"    s_add_u32 s4, s4, {L_MS}")
A(f"    v_mul_u32_u24 v{X}, {MS_RS}, v{xE32}")
A(f"    v_add_u32 v{X}, s4, v{X}")
A(f"    v_lshl_add_u32 v{vMWL}, v{xHH}, 3, v{X}")
A(f"    v_add_u32 v{vSWL}, 64, v{X}")
A(f"    v_bfe_u32 v{X}, v{xLANE}, 2, 2")
A(f"    v_lshlrev_b32 v{X}, 2, v{X}")
A(f"    v_add_u32 v{X}, v{X}, v{xHH}")
A(f"    v_mul_u32_u24 v{X}, {2*MS_RS}, v{X}")
A(f"    v_bfe_u32 v{X+1}, v{xLANE}, 4, 1")
A(f"    v_lshl_add_u32 v{X}, v{X+1}, 5, v{X}")
A(f"    v_and_b32 v{X+1}, 3, v{xLANE}")
A(f"    v_lshl_add_u32 v{X}, v{X+1}, 3, v{X}")
A(f"    v_add_u32 v{vTRL}, s4, v{X}")
A(f"    v_bfe_u32 v{X}, v{xLANE}, 2, 2")
A(f"    v_lshlrev_b32 v{X}, 2, v{X}")
A(f"    v_add_u32 v{X}, v{X}, v{xHH}")
A(f"    v_mul_u32_u24 v{X}, {2*MS_RS}, v{X}")
A(f"    v_add_u32 v{X}, s4, v{X}")
A(f"    v_add_u32 v{X}, 128, v{X}")
A(f"    v_bfe_u32 v{X+1}, v{xLANE}, 4, 1")
A(f"    v_and_b32 v{X+2}, 3, v{xLANE}")
A(f"    v_cmp_eq_u32 vcc, v{X+1}, v{X+2}")
A(f"    v_mov_b32 v{vTRP}, {L_Z}")
A(f"    s_lshl_b32 s{sPAB}, s{sW}, 9")
A(f"    v_cndmask_b32 v{vTRP}, v{vTRP}, v{X}, vcc")
A(f"    s_add_u32 s{sPAB}, s{sPAB}, {L_PA}")
A(f"    v_add_u32 v{vIDB}, {L_ID}, v{xH16}")
A(f"    v_mov_b32 v{vONE}, 0x3f80")
A(f"    v_mov_b32 v{vZERO}, 0")
A(f"    v_mul_u32_u24 v{vMASK}, 0xffff, v{xHH}")
A(f"    v_lshlrev_b32 v{vMASK}, 16, v{vMASK}")
A(f"    v_lshrrev_b32 v{X}, 3, v{xLANE}")
A(f"    v_and_b32 v{X+1}, 7, v{xLANE}")
A(f"    v_xor_b32 v{X+1}, v{X+1}, v{X}")
A(f"    v_lshlrev_b32 v{vSWZ[0]}, 4, v{X+1}")
A(f"    v_xor_b32 v{vSWZ[1]}, 16, v{vSWZ[0]}")
A(f"    v_and_b32 v{vEAO}, 1, v{xLANE}")
A(f"    v_lshlrev_b32 v{vEAO}, 4, v{vEAO}")
A(f"    v_lshrrev_b32 v{X}, 3, v{xE32}          ; i")
A(f"    v_and_b32 v{X+1}, 7, v{xE32}            ; r")
A(f"    v_and_b32 v{X+2}, 1, v{X}")
A(f"    v_xor_b32 v{X+2}, v{X+2}, v{X+1}        ; x")
A(f"    v_xor_b32 v{X+2}, v{X+2}, v{xHH}        ; x ^ hh")
A(f"    v_lshlrev_b32 v{X+3}, 10, v{X}")
A(f"    v_lshl_add_u32 v{X+3}, v{X+1}, 7, v{X+3}")
A(f"    v_add_u32 v{X+3}, s{sSTG}, v{X+3}")
for s in range(4):
    A(f"    v_xor_b32 v{vHBA[s]}, {2*s}, v{X+2}")
    A(f"    v_lshl_add_u32 v{vHBA[s]}, v{vHBA[s]}, 4, v{X+3}")
A(f"    v_lshl_add_u32 v{vEAR}, v{xE32}, 5, v{xH16}")
A(f"    v_add_u32 v{vEAR}, s{sSTG}, v{vEAR}")
A(f"    v_add_u32 v{vEAR}, 4096, v{vEAR}")
for j in range(4):
    A(f"    v_mov_b32 v{X+8+j}, 0")
A(f"    ds_write_b128 v{xL16}, {vr(X+8,4)} offset:{L_Z}")
A("    v_cmp_gt_u32 vcc, 32, v0")
A("    s_and_saveexec_b64 s[48:49], vcc")
A(f"    v_mul_u32_u24 v{X}, {ID_RS}, v0")
for j in range(5):
    A(f"    ds_write_b128 v{X}, {vr(X+8,4)} offset:{L_ID + 16*j}")
A(f"    v_lshrrev_b32 v{X+1}, 4, v0")
A(f"    v_lshl_add_u32 v{X}, v{X+1}, 5, v{X}")
A(f"    v_bfe_u32 v{X+1}, v0, 2, 1")
A(f"    v_lshl_add_u32 v{X}, v{X+1}, 4, v{X}")
A(f"    v_bfe_u32 v{X+1}, v0, 3, 1")
A(f"    v_lshl_add_u32 v{X}, v{X+1}, 3, v{X}")
A(f"    v_and_b32 v{X+1}, 3, v0")
A(f"    v_lshl_add_u32 v{X}, v{X+1}, 1, v{X}")
A("    v_cmp_gt_u32 vcc, 31, v0")
A("    s_and_b64 exec, exec, vcc")
A(f"    ds_write_b16 v{X}, v{vONE} offset:{L_ID}")
A("    s_mov_b64 exec, s[48:49]")
OWNE = int(os.environ.get("OWNE", "0"))
if F16:
    A(f"    v_mov_b32 v{vONE}, 0x3c00")
if OWNE == 1:
    own_loads()
T_ = X + 4
A(f"    s_lshl_b32 s3, s{sW}, 2")
A(f"    s_add_u32 s3, s3, {L_TB}")
A(f"    v_lshl_add_u32 v{X}, v{xLANE}, 5, s3")
A(f"    s_lshl_b32 s{sLB}, s{sW}, 11")
A(f"    s_mov_b32 s{sBASE}, 0")
A("    s_mov_b32 s96, 0")
sFAST = 77
F_, L_, DF, BS = SEG, SEG + 4, SEG + 8, X + 36
A(f"    v_lshrrev_b32 v{X+3}, 4, v{xLANE}")
A(f"    s_lshl_b32 s3, s{sW}, 8")
A(f"    s_add_u32 s3, s3, {L_TB}")
A(f"    v_lshl_add_u32 v{X+1}, v{X+3}, 11, s3")
A(f"    v_mul_u32_u24 v{X+2}, {C*8}, v{X+3}")
A(f"    v_and_b32 v{X+3}, 15, v{xLANE}")
A(f"    v_lshl_add_u32 v{X+2}, v{X+3}, 4, v{X+2}")
A(f"    s_mul_i32 s3, s{sW}, {32*C*8}")
A(f"    v_add_u32 v{X+2}, s3, v{X+2}")
A(f"    v_lshlrev_b32 v{X+3}, 5, v{xLANE}")
A(f"    v_add_u32 v{X+3}, {L_TB}, v{X+3}")
A(f"    s_lshl_b32 s4, s{sW}, 13")
A(f"    s_add_u32 s4, s4, {L_RAW}")
STAMP(2)
A(f"    s_waitcnt vmcnt({NOWN if OWNE == 1 else 0}) lgkmcnt(0)")
STAMP(2)
A("    s_barrier")
STAMP(0)
RMASK = int(os.environ.get("RMASK", "1"))
if not RMASK:
    for i in range(8):
        A(f"    ds_read_b32 v{DF+i}, v{X+1} offset:{32*i}")
    for j in range(4):
        A(f"    ds_read_b32 v{T_+j}, v{X} offset:{2048*j}")
    for i in range(8):
        A(f"    s_add_u32 m0, s4, {1024*i}")
        A(f"    s_mov_b32 s3, {4*C*8*i}")
        A(f"    s_waitcnt lgkmcnt({11-i})")
        A(f"    v_and_b32 v{DF+i}, 0xfffe, v{DF+i}")
        A(f"    v_lshl_add_u32 v{DF+i}, v{DF+i}, 3, v{X+2}")
        A(f"    buffer_load_dwordx4 v{DF+i}, s[{S_WS}:{S_WS+3}], s3 offen lds")
else:
    for i in range(8):
        A(f"    ds_read2_b32 v[{DF+2*i}:{DF+2*i+1}], v{X+1} offset0:{8*i} offset1:{8*i+7}")
    for j in range(4):
        A(f"    ds_read_b32 v{T_+j}, v{X} offset:{2048*j}")
    A(f"    v_and_b32 v{BS}, 15, v{xLANE}")
    A(f"    v_lshlrev_b32 v{BS}, 1, v{BS}              ; 2p")
    A(f"    v_mov_b32 v{BS+1}, -16")
    for i in range(8):
        f, l = DF + 2 * i, DF + 2 * i + 1
        A(f"    s_add_u32 m0, s4, {1024*i}")
        A(f"    s_mov_b32 s3, {4*C*8*i}")
        A(f"    s_waitcnt lgkmcnt({11-i})")
        A(f"    v_and_b32 v{f}, 0xfffe, v{f}")
        A(f"    v_add_u32_sdwa v{l}, v{l}, v{l} dst_sel:DWORD dst_unused:UNUSED_PAD src0_sel:WORD_0 src1_sel:WORD_1")
        A(f"    v_sub_u32 v{l}, v{l}, v{f}")
        A(f"    v_cmp_lt_i32 vcc, v{BS}, v{l}")
        A(f"    v_lshl_add_u32 v{f}, v{f}, 3, v{X+2}")
        A(f"    s_nop 0")
        A(f"    v_cndmask_b32 v{f}, v{BS+1}, v{f}, vcc")
        A(f"    buffer_load_dwordx4 v{f}, s[{S_WS}:{S_WS+3}], s3 offen lds")
for j in range(4):
    A(f"    ds_read2_b32 v[{F_+2*j}:{F_+2*j+1}], v{X+3} offset0:0 offset1:7")
    if j < 3:
        A(f"    v_add_u32 v{X+3}, 2048, v{X+3}")
if not OWNE:
    own_loads()
STAMP(2)
A(f"    v_cmp_gt_u32 vcc, 62, v{xLANE}")
A(f"    v_cmp_gt_u32 s[48:49], 63, v{xLANE}")
A(f"    v_lshlrev_b32 v{X}, 7, v{xLANE}")
A("    s_waitcnt lgkmcnt(0)")
for j in range(4):
    f, l = F_ + 2 * j, F_ + 2 * j + 1
    A(f"    v_and_b32 v{f}, 0xfffe, v{f}")
    A(f"    v_lshrrev_b32 v{X+1}, 16, v{l}")
    A(f"    v_and_b32 v{l}, 0xffff, v{l}")
    A(f"    v_add_u32 v{l}, v{l}, v{X+1}")
    A(f"    v_sub_u32 v{l}, v{l}, v{f}")
    A(f"    v_cndmask_b32 v{l}, 0, v{l}, {'s[48:49]' if j < 2 else 'vcc'}")
    A(f"    v_sub_u32 v{BS+j}, v{X}, v{f}")
    A(f"    v_add_u32 v{BS+j}, {32*j + L_RAW//8}, v{BS+j}")
A(f"    v_max_u32 v{F_+1}, v{F_+1}, v{F_+3}")
A(f"    v_max3_u32 v{F_+1}, v{F_+1}, v{F_+5}, v{F_+7}")
A(f"    v_cmp_lt_u32 vcc, {int(os.environ.get('WIN', '32'))}, v{F_+1}")
A(f"    s_mov_b32 s{sFAST}, {L_Z}")
A("    s_cmp_eq_u64 vcc, 0")
A("    s_cbranch_scc1 LM_round")
A("LM_slowbase:")
A(f"    s_mov_b32 s{sFAST}, -128")
A(f"    v_mul_u32_u24 v{BS}, {4*C}, v{xLANE}")
for j in range(1, 4):
    A(f"    v_add_u32 v{BS+j}, {j*C}, v{BS}")
A("LM_round:")
CN, SM, PP, DL, MK = X + 8, X + 12, X + 16, X + 20, X + 24
xMKA, xI = X + 32, X + 33
A(f"    v_lshl_add_u32 v{xMKA}, v{xLANE}, 5, s{sLB}")
for j in range(4):
    A(f"    v_mov_b32 v{MK+j}, 0")
A(f"    ds_write_b128 v{xMKA}, {vr(MK,4)} offset:{L_W1}")
A(f"    ds_write_b128 v{xMKA}, {vr(MK,4)} offset:{L_W1+16}")
A(f"    v_cmp_gt_u32 vcc, 62, v{xLANE}")
A(f"    v_cmp_gt_u32 s[48:49], 63, v{xLANE}")
A("    s_nop 0")
A(f"    v_cndmask_b32 v{T_+2}, 0, v{T_+2}, vcc")
A(f"    v_cndmask_b32 v{T_+3}, 0, v{T_+3}, vcc")
A(f"    v_cndmask_b32 v{T_}, 0, v{T_}, s[48:49]")
A(f"    v_cndmask_b32 v{T_+1}, 0, v{T_+1}, s[48:49]")
for k in range(4):
    A(f"    v_lshrrev_b32 v{CN+k}, 16, v{T_+k}")
for k in range(4):
    A(f"    v_and_b32 v{T_+k}, 0xffff, v{T_+k}")
A(f"    v_add_u32 v{SM}, v{CN}, v{CN+1}")
A(f"    v_add_u32 v{SM+1}, v{SM}, v{CN+2}")
A(f"    v_add_u32 v{SM+2}, v{SM+1}, v{CN+3}")
A(f"    v_mov_b32 v{SM+3}, v{SM+2}")
wave_scan(SM + 3)
A(f"    v_readlane_b32 s{sT}, v{SM+3}, 63")
A(f"    v_sub_u32 v{PP}, v{SM+3}, v{SM+2}")
A(f"    v_add_u32 v{PP+1}, v{PP}, v{CN}")
A(f"    v_add_u32 v{PP+2}, v{PP}, v{SM}")
A(f"    v_add_u32 v{PP+3}, v{PP}, v{SM+1}")
for k in range(4):
    A(f"    v_add_u32 v{DL+k}, v{BS+k}, v{T_+k}")
    A(f"    v_sub_u32 v{DL+k}, v{DL+k}, v{PP+k}")
A(f"    s_add_u32 s3, s{sLB}, {L_W1}")
A(f"    s_add_u32 s4, s{sLB}, {L_W0}")
A(f"    v_mov_b32 v{SM+1}, s4")
for k in range(4):
    A(f"    v_subrev_u32 v{PP+k}, s{sBASE}, v{PP+k}     ; q")
    A(f"    v_add_u32 v{CN+k}, v{CN+k}, v{PP+k}         ; e")
    A(f"    v_max_i32 v{PP+k}, 0, v{PP+k}")
    A(f"    v_min_i32 v{CN+k}, {CAP}, v{CN+k}")
    A(f"    v_cmp_lt_i32 vcc, v{PP+k}, v{CN+k}")
    A(f"    v_lshl_add_u32 v{PP+k}, v{PP+k}, 2, s3")
    A("    s_nop 0")
    A(f"    v_cndmask_b32 v{PP+k}, v{SM+1}, v{PP+k}, vcc")
    A(f"    ds_write_b32 v{PP+k}, v{DL+k}")
A(f"    ds_read_b128 {vr(MK,4)}, v{xMKA} offset:{L_W1}")
A(f"    ds_read_b128 {vr(MK+4,4)}, v{xMKA} offset:{L_W1+16}")
xEM, xNEG = X + 34, X + 35
A(f"    v_lshl_add_u32 v{xI}, v{xLANE}, 3, s{sBASE}")
A(f"    v_mov_b32 v{xNEG}, s{sFAST}")
A(f"    v_mov_b32 v{xEM}, 0")
A("    s_waitcnt lgkmcnt(0)")
for k in range(1, 8):
    A(f"    v_max_u32 v{MK+k}, v{MK+k}, v{MK+k-1}")
A("    s_nop 1")
A(f"    v_mov_b32_dpp v{xEM}, v{MK+7} wave_shr:1 row_mask:0xf bank_mask:0xf")
for sh in (1, 2, 4, 8):
    A("    s_nop 1")
    A(f"    v_max_u32_dpp v{xEM}, v{xEM}, v{xEM} row_shr:{sh} row_mask:0xf bank_mask:0xf bound_ctrl:0")
A("    s_nop 1")
A(f"    v_max_u32_dpp v{xEM}, v{xEM}, v{xEM} row_bcast:15 row_mask:0xa bank_mask:0xf")
A("    s_nop 1")
A(f"    v_max_u32_dpp v{xEM}, v{xEM}, v{xEM} row_bcast:31 row_mask:0xc bank_mask:0xf")
RR, W0C, W1C = X, X + 16, X + 24
NS = 8
for k in range(NS):
    A(f"    s_sub_u32 s3, s{sT}, {k}")
    A(f"    v_max_u32 v{MK+k}, v{MK+k}, v{xEM}")
    A(f"    v_cmp_gt_i32 vcc, s3, v{xI}")
    A(f"    v_add_u32 v{MK+k}, v{MK+k}, v{xI}")
    A(f"    v_lshlrev_b32 v{MK+k}, 3, v{MK+k}")
    A(f"    v_cndmask_b32 v{MK+k}, v{xNEG}, v{MK+k}, vcc")
A(f"    s_cmp_ge_i32 s{sFAST}, 0")
A("    s_cbranch_scc1 LM_fast1")
for k in range(NS):
    A(f"    buffer_load_dwordx2 {vr(RR+2*k,2)}, v{MK+k}, s[{S_WS}:{S_WS+3}], 0 offen offset:{8*k}")
A("LM_fast1:")
A(f"    s_sub_u32 s{sCNT}, s{sT}, s{sBASE}")
A(f"    s_min_u32 s{sCNT}, s{sCNT}, {CAP}")
A(f"    s_add_u32 s3, s{sCNT}, 31")
A(f"    s_lshr_b32 s{sNT}, s3, 5               ; ntiles")
RG = W0C
A(f"    v_and_b32 v{RG}, 7, v{xE32}")
A(f"    v_lshrrev_b32 v{RG+1}, 3, v{xE32}")
A(f"    v_lshl_add_u32 v{RG}, v{RG}, 2, v{RG+1}     ; p(e)")
A(f"    v_lshl_add_u32 v{vL0E}, v{RG}, 2, s{sLB}")
A(f"    v_lshrrev_b32 v{RG}, 3, v{xLANE}")
A(f"    v_lshl_add_u32 v{vL0D}, v{RG}, 4, s{sLB}")
A(f"    v_bfe_u32 v{RG}, v{xLANE}, 1, 3            ; (l/2)%8")
A(f"    v_lshrrev_b32 v{RG+1}, 4, v{xLANE}         ; (l/2)/8")
A(f"    v_lshl_add_u32 v{RG}, v{RG}, 2, v{RG+1}")
A(f"    v_lshl_add_u32 v{vL1P}, v{RG}, 2, s{sLB}")
A(f"    s_lshl_b32 s3, s{sW}, 7")
A(f"    s_add_u32 s3, s3, {L_PS}")
A(f"    s_sub_u32 s3, s3, s{sLB}")
A(f"    v_add_u32 v{RG}, s3, v{vL0E}")
A(f"    v_add_u32 v{RG+1}, s{sNODE}, v{xE32}")
A(f"    v_lshlrev_b32 v{RG+1}, 7, v{RG+1}")
A(f"    ds_write_b32 v{RG}, v{RG+1}")
A(f"    s_lshl_b32 s4, s{sNT}, 7")
A(f"    s_sub_u32 s3, s3, s4")
A(f"    s_sub_u32 s{sDEL}, s3, {L_W0}")
A(f"    s_add_u32 s3, s{sBASE}, {CAP}")
A(f"    s_cmp_ge_u32 s3, s{sT}")
A(f"    s_cselect_b32 s{sTAIL}, {1 if FT else 0}, 0")
A(f"    s_cmp_ge_u32 s{sNT}, 2")
A(f"    s_cselect_b32 s{sTAIL}, s{sTAIL}, 0")
A(f"    s_cmp_lg_u32 s{sBASE}, 0")
A("    s_cbranch_scc1 LM_noat")
A(f"    v_add_u32 v{RG}, {L_WF}, v{xL16}")
for f in range(8):
    A(f"    ds_read_b128 {vr(ACC+4*f,4)}, v{RG} offset:{1024*f}")
for f in range(10):
    A(f"    ds_read_b128 {vr(WSF+4*f,4)}, v{RG} offset:{8192+1024*f}")
for f in range(4):
    A(f"    ds_read_b128 {vr(WX+4*f,4)}, v{RG} offset:{8192+1024*(10+f)}")
A(f"    ds_read_b64 {vr(EA,2)}, v{RG} offset:{8192+1024*14}")
A(f"    s_waitcnt vmcnt({0 if OWNE else NOWN}) lgkmcnt(0)")
A("    s_barrier")
STAMP()
if OWNE == 2:
    own_loads(SEG + 24)
A("LM_noat:")
A(f"    s_cmp_ge_i32 s{sFAST}, 0")
A("    s_cbranch_scc1 LM_fast2")
A("    s_waitcnt vmcnt(0)")
A("    s_branch LM_recs")
A("LM_fast2:")
for k in range(NS):
    A(f"    ds_read_b64 {vr(RR+2*k,2)}, v{MK+k} offset:{8*k}")
A("LM_recs:")
if not PH:
    A(f"    v_mov_b32 v{xNEG}, {PADNB}")
    for k in range(NS):
        A(f"    s_sub_u32 s3, s{sT}, {k}")
        A(f"    v_cmp_gt_i32 vcc, s3, v{xI}")
        A(f"    s_waitcnt lgkmcnt({NS-1-k})")
        A(f"    v_mov_b32 v{W1C+k}, v{RR+2*k+1}")
        A(f"    v_cndmask_b32 v{W0C+k}, v{xNEG}, v{RR+2*k}, vcc")
    A(f"    ds_write_b128 v{xMKA}, {vr(W0C,4)} offset:{L_W0}")
    A(f"    ds_write_b128 v{xMKA}, {vr(W0C+4,4)} offset:{L_W0+16}")
    A(f"    ds_write_b128 v{xMKA}, {vr(W1C,4)} offset:{L_W1}")
    A(f"    ds_write_b128 v{xMKA}, {vr(W1C+4,4)} offset:{L_W1+16}")
else:
    FS = (64, 66, 68, 70, 72, 74, 78, 80)
    RK = SO
    SC, BA, BB, TB = BS, BS + 1, BS + 2, BS + 3
    TA = W1C
    A(f"    v_mov_b32 v{xNEG}, 0x{0x007fff80 | PADNB:x}")
    A(f"    s_mov_b32 s4, {TH << 7}")
    A(f"    v_mov_b32 v{RK}, 0")
    for k in range(NS):
        A(f"    s_sub_u32 s3, s{sT}, {k}")
        A(f"    v_cmp_gt_i32 vcc, s3, v{xI}")
        A(f"    s_waitcnt lgkmcnt({NS-1-k})")
        A(f"    s_nop 0")
        A(f"    v_cndmask_b32 v{W0C+k}, v{xNEG}, v{RR+2*k}, vcc")
        A(f"    v_cmp_le_u32 s[{FS[k]}:{FS[k]+1}], s4, v{W0C+k}")
        A(f"    s_nop 1")
        A(f"    v_addc_co_u32 v{RK+k+1 if k < 7 else BA}, vcc, v{RK+k}, 0, s[{FS[k]}:{FS[k]+1}]")
    A(f"    v_mov_b32 v{SC}, v{BA}")
    wave_scan(SC)
    A(f"    v_readlane_b32 s3, v{SC}, 63")
    A(f"    v_sub_u32 v{SC}, v{SC}, v{BA}        ; P")
    A(f"    s_sub_u32 s3, {CAP}, s3               ; N0")
    A(f"    s_lshl_b32 s3, s3, 2")
    A(f"    s_add_u32 s5, s{sLB}, {L_W0}")
    A(f"    s_add_u32 s3, s3, s5")
    A(f"    v_lshl_add_u32 v{BA}, v{SC}, 2, s3")
    A(f"    v_lshlrev_b32 v{BB}, 3, v{xLANE}")
    A(f"    v_sub_u32 v{BB}, v{BB}, v{SC}")
    A(f"    v_lshl_add_u32 v{BB}, v{BB}, 2, s5")
    assert L_W1 - L_W0 == 64 * 256
    for k in range(NS):
        A(f"    v_lshl_add_u32 v{TA+k}, v{RK+k}, 2, v{BA}")
        A(f"    v_sub_u32 v{TB}, {k}, v{RK+k}")
        A(f"    v_lshl_add_u32 v{TB}, v{TB}, 2, v{BB}")
        A(f"    v_cndmask_b32 v{TA+k}, v{TB}, v{TA+k}, s[{FS[k]}:{FS[k]+1}]")
        A(f"    ds_write2st64_b32 v{TA+k}, v{W0C+k}, v{RR+2*k+1} offset0:0 offset1:64")
A(f"    s_cmp_lg_u32 s{sBASE}, 0")
A("    s_cbranch_scc1 LM_nob3")
A("    s_barrier")
A("LM_nob3:")
STAMP()
def at_block():
    A(f"    v_mov_b32 v{RG+2}, 0")
    A(f"    v_mov_b32 v{RG+3}, 0")
    A(f"    v_lshl_add_u32 v{RG}, v{xHH}, 5, v{vSWL}")
    for j in range(4):
        A(f"    ds_write_b64 v{RG}, {vr(RG+2,2)} offset:{8*j}")
    for t in range(2):
        for s_ in range(4):
            c = "0" if s_ == 0 else vr(SEG+16*t,16)
            A(f"    v_mfma_f32_32x32x16_bf16 {vr(SEG+16*t,16)}, {vr(HB+4*s_,4)}, {vr(ACC+4*(2*s_+t),4)}, {c}")
    A(f"    v_lshl_add_u32 v{RG}, v{xE32}, 4, s{sPAB}")
    A(f"    v_mov_b32 v{PD+2}, v{PD+1}")
    A(f"    v_and_b32 v{PD+1}, s{sHI}, v{PD}")
    A(f"    v_lshlrev_b32 v{PD}, 16, v{PD}")
    A(f"    ds_write_b96 v{RG}, {vr(PD,3)}")
    for j in range(4):
        A(f"    v_mov_b32 v{PAC+j}, 0")
    A(f"    s_mov_b32 s3, 0x{LOG2E:08x}")
    A("    s_nop 7")
    for r in range(32):
        A(f"    v_mul_f32 v{SEG+r}, s3, v{SEG+r}")
    for t in range(2):
        for u in range(2):
            for j in range(4):
                A(f"    v_cvt_pk_bf16_f32 v{atf(u,t)+j}, v{SEG+16*t+8*u+2*j}, v{SEG+16*t+8*u+2*j+1}")
        A(f"    v_bfi_b32 v{atf(1,t)+3}, v{vMASK}, v{EA+t}, v{atf(1,t)+3}")
    for r in range(32):
        A(f"    v_mov_b32 v{SEG+r}, 0")


def V(t): return ('v', t, None)
def M(t): return ('m', t, None)
def DS(t, tag=None): return ('ds', t, tag)
def VM(t): return ('vm', t, None)
def S(t): return ('s', t, None)
def WL(tag): return ('wl', None, tag)
def WV(n): return ('s', f"s_waitcnt vmcnt({n})", None)

def mf(d, a, b, c0=False, ty="bf16"):
    return M(f"v_mfma_f32_32x32x16_{ty} {vr(d,16)}, {vr(a,4)}, {vr(b,4)}, {'0' if c0 else vr(d,16)}")
def chain(t):
    d = ACC + 16 * t
    l = [mf(d, wsf(s, t), HB + 4 * s, s == 0) for s in range(4)]
    l.append(mf(d, WAE + 4 * t, EA))
    l += [mf(d, atf(u, t), SO + 4 * u) for u in range(2)]
    return l
def seg(t, s):
    return mf(SEG + 16 * t, TRM + 4 * s, TRS + 4 * s, ty=MT)
def csm(t, u):
    c = '0' if (t == 0 and u == 0) else vr(CS, 4)
    return M(f"v_mfma_f32_16x16x32_{MT} {vr(CS,4)}, {vr(WX+8*t+4*u,4)}, {vr(PK+8*t+4*u,4)}, {c}")
def list_reads(k):
    return [DS(f"ds_read_b128 {vr(W0D,4)}, v{vL0D} offset:{L_W0 + 128*k}"),
            DS(f"ds_read_b32 v{vW1P}, v{vL1P} offset:{L_W1 + 128*k}"),
            DS(f"ds_read_b32 v{vW0E3}, v{vL0E} offset:{L_W0 + 128*k}", 'L3')]
def list_reads_loop(par):
    k = par + 3
    return [S(f"s_cmp_eq_u32 s{sNT}, 2"), S(f"s_cselect_b32 s{sINC}, s{sDEL}, 128"),
            V(f"v_add_u32 v{vL0D}, s{sINC}, v{vL0D}"),
            DS(f"ds_read_b128 {vr(W0D,4)}, v{vL0D} offset:{L_W0 + 256}"),
            DS(f"ds_read_b32 v{vW1P}, v{vL1P} offset:{L_W1 + 128*k}"),
            DS(f"ds_read_b32 v{vW0E3}, v{vL0E} offset:{L_W0 + 128*k}", 'L3')]
def srd_ops():
    return [S(f"s_cmp_lt_u32 s{sNT}, 4"), S(f"s_cselect_b32 s{sTMP}, 0, {N*128}"),
            S(f"s_cselect_b32 s{S_EA+2}, 0, s{S_EA+2}"), S(f"s_cselect_b32 s{S_P4+2}, 0, s{S_P4+2}"),
            S(f"s_cmp_eq_u32 s{sNT}, 2"), S(f"s_cselect_b32 s{S_H+2}, {N*128}, s{sTMP}")]
def dma_addr():
    l = [V(f"v_and_or_b32 v{W0D+i}, v{W0D+i}, s{sAM}, v{vSWZ[i&1]}") for i in range(4)]
    if os.environ.get("HOTEA"):
        l.append(V(f"v_and_or_b32 v{vW1P}, v{vW1P}, s{sHOT}, v{vEAO}"))
    else:
        l.append(V(f"v_add_u32 v{vW1P}, v{vW1P}, v{vEAO}"))
    l.append(V(f"v_bfe_u32 v{vW0E3}, v{vW0E3}, 7, 16"))
    return l
def dma_pairs(q):
    l = []
    for i in range(4):
        l.append((S(f"s_add_u32 m0, s{sSTG}, {q*ST_SZ + i*1024}"),
                  VM(f"buffer_load_dwordx4 v{W0D+i}, s[{S_H}:{S_H+3}], 0 offen lds")))
    l.append((S(f"s_add_u32 m0, s{sSTG}, {q*ST_SZ + 4096}"),
              VM(f"buffer_load_dwordx4 v{vW1P}, s[{S_EA}:{S_EA+3}], 0 offen{EANT} lds")))
    pos = [S(f"s_mov_b64 exec, s[{sHIGH}:{sHIGH+1}]"),
           VM(f"buffer_load_dwordx2 {vr(PS[q],2)}, v{vW0E3}, s[{S_P4}:{S_P4+3}], s{sP4O} idxen"),
           S("s_mov_b64 exec, -1")]
    return l, pos
def stage_reads(q):
    l = [DS(f"ds_read_b128 {vr(HB+4*s,4)}, v{vHBA[s]} offset:{q*ST_SZ}") for s in range(4)]
    l.append(DS(f"ds_read_b128 {vr(EA,4)}, v{vEAR} offset:{q*ST_SZ}"))
    return l
def nb_ops(q):
    return [V(f"v_and_b32 v{vNB}, 31, v{vW0E}"),
            V(f"v_mad_u32_u24 v{vW0E}, v{vNB}, s{sIDRS}, v{vIDB}"),
            V(f"v_lshl_add_u32 v{PD}, v{vNB}, 4, s{sPAB}")]
def so_reads(q):
    return [DS(f"ds_read_b128 {vr(SO,4)}, v{vW0E}"),
            DS(f"ds_read_b128 {vr(SO+4,4)}, v{vW0E} offset:32"),
            DS(f"ds_read_b96 {vr(PD,3)}, v{PD}", 'PD')]
def pre_ops(q):
    d = DX[q]; p = PS[q]
    return [V(f"v_sub_f32 v{PD}, v{PD}, v{p+2}"),
            V(f"v_sub_f32 v{PD+1}, v{PD+1}, v{p}"),
            V(f"v_sub_f32 v{PD+2}, v{PD+2}, v{p+1}"),
            V(f"v_cvt_pk_bf16_f32 v{PD}, v{PD}, v{PD+1}"),
            V(f"v_cvt_pk_bf16_f32 v{PD+2}, v{PD+2}, v{PD+2}"),
            V(f"v_lshlrev_b32 v{d}, 16, v{PD}"),
            V(f"v_and_b32 v{d+1}, s{sHI}, v{PD}"),
            V(f"v_lshlrev_b32 v{d+2}, 16, v{PD+2}"),
            V(f"v_mul_f32 v{PD+1}, v{d}, v{d}"),
            V(f"v_fma_f32 v{PD+1}, v{d+1}, v{d+1}, v{PD+1}"),
            V(f"v_fma_f32 v{PD+1}, v{d+2}, v{d+2}, v{PD+1}"),
            V(f"v_cvt_pk_bf16_f32 v{PD+1}, v{PD+1}, v{PD+1}"),
            V(f"v_bfi_b32 v{SO+7}, v{vMASK}, v{PD+1}, v{SO+7}")]
def unp_ops(q):
    p = PS[q]
    return [V(f"v_lshlrev_b32 v{p+2}, 16, v{p}"),
            V(f"v_and_b32 v{p}, s{sHI}, v{p}")]
def post_ops(q):
    d = DX[q]
    va = [V(f"v_mul_f32 v{CS}, s{sLN2}, v{CS}"),
          V(f"v_cvt_pk_bf16_f32 v{CS}, v{CS}, v{CS}"),
          V(f"v_and_b32 v{CS}, s{sHI}, v{CS}"),
          V(f"v_mul_f32 v{d}, v{d}, v{CS}"),
          V(f"v_mul_f32 v{d+1}, v{d+1}, v{CS}"),
          V(f"v_mul_f32 v{d+2}, v{d+2}, v{CS}"),
          V(f"{CVT} v{CS+2}, v{d}, v{d+1}"),
          V(f"{CVT} v{CS+3}, v{d+2}, v{d+2}")]
    da = [S(f"s_mov_b64 exec, s[{sHIGH}:{sHIGH+1}]"),
          DS(f"ds_write_b64 v{vSWL}, {vr(CS+2,2)} offset:64"),
          S("s_mov_b64 exec, -1")]
    da += [DS(f"ds_read_b64_tr_b16 {vr(TRM+4*s+2*p,2)}, v{vTRP} offset:{(4*s+p)*MS_RS}", 'TRP' if (s, p) == (1, 1) else None)
           for s in range(2) for p in range(2)]
    pm = [M(f"v_mfma_f32_16x16x32_{MT} {vr(PAC,4)}, {vr(TRM+4*s,4)}, {vr(TRS+4*s,4)}, {vr(PAC,4)}") for s in range(2)]
    return va, da, pm
def m_write(t, qs):
    return [DS(f"ds_write_b64 v{vMWL}, {vr(PK+8*t+2*q,2)} offset:{16*q}") for q in qs]
def trm_reads(tag):
    l = [DS(f"ds_read_b64_tr_b16 {vr(TRM+4*s+2*p,2)}, v{vTRL} offset:{(4*s+p)*MS_RS}") for s in range(2) for p in range(2)]
    l[-1] = (l[-1][0], l[-1][1], tag)
    return l
def trs_reads():
    l = [DS(f"ds_read_b64_tr_b16 {vr(TRS+4*s+2*p,2)}, v{vTRL} offset:{(4*s+p)*MS_RS+64}") for s in range(2) for p in range(2)]
    l[-1] = (l[-1][0], l[-1][1], 'TRS')
    return l
SA_OP = V(f"v_lshl_add_u32 v{vSA}, v{vNB}, 1, v{vSWL}")

def silu_stream(t):
    a = ACC + 16 * t
    l = []
    if F16:
        LO = "dst_sel:WORD_0 dst_unused:UNUSED_PRESERVE src0_sel:WORD_0"
        HI = "dst_sel:WORD_1 dst_unused:UNUSED_PRESERVE src0_sel:WORD_1"
        for g in range(2):
            js = range(4)
            pk = lambda j: PK + 8 * t + 4 * g + j
            tm = lambda j: TMP + 4 * g + j
            l += [V(f"v_cvt_pk_f16_f32 v{pk(j)}, v{a+8*g+2*j}, v{a+8*g+2*j+1}") for j in js]
            l += [V(f"v_exp_f16 v{tm(j)}, v{pk(j)}") for j in js]
            l += [V(f"v_exp_f16_sdwa v{tm(j)}, v{pk(j)} {HI}") for j in js]
            l += [V(f"v_pk_add_f16 v{tm(j)}, v{tm(j)}, s{sONE2}") for j in js]
            l += [V(f"v_rcp_f16_sdwa v{tm(j)}, v{tm(j)} {LO}") for j in js]
            l += [V(f"v_rcp_f16_sdwa v{tm(j)}, v{tm(j)} {HI}") for j in js]
            l += [V(f"v_pk_mul_f16 v{pk(j)}, v{pk(j)}, v{tm(j)}") for j in js]
        return l
    for g in range(2):
        rs = range(8 * g, 8 * g + 8)
        l += [V(f"v_exp_f32 v{TMP+r%8}, v{a+r}") for r in rs]
        l += [V(f"v_add_f32 v{TMP+r%8}, 1.0, v{TMP+r%8}") for r in rs]
        l += [V(f"v_rcp_f32 v{TMP+r%8}, v{TMP+r%8}") for r in rs]
        l += [V(f"v_mul_f32 v{a+r}, v{a+r}, v{TMP+r%8}") for r in rs]
        l += [V(f"v_cvt_pk_bf16_f32 v{PK+8*t+4*g+j}, v{a+8*g+2*j}, v{a+8*g+2*j+1}") for j in range(4)]
    return l

def remap(p):
    g, r = divmod(p, 36)
    if r < 8: n = r
    elif r < 16: n = 8 + (r - 8) // 2
    elif r < 24: n = 12 + (r - 16)
    elif r < 32: n = 20 + (r - 24) // 2
    else: n = 24 + (r - 32)
    return 28 * g + n
def merge(main, side):
    res = []
    if F16:
        side = [((p * 28 + 35) // 36, o) for p, o in side]
    side = sorted(enumerate(side), key=lambda x: (x[1][0], x[0]))
    k = 0
    for i in range(len(main) + 1):
        while k < len(side) and side[k][1][0] <= i:
            ops = side[k][1][1]
            res += ops if isinstance(ops, list) else [ops]
            k += 1
        if i < len(main):
            res.append(main[i])
    assert k == len(side)
    return res

VMW = int(os.environ.get("VMW", "0"))
def wv6():
    if not VMW:
        return [WV(6)]
    l = [WV(6)] if VMW == 2 else []
    l += [S("s_memtime s[64:65]"), S("s_waitcnt lgkmcnt(0)"), WV(6), S("s_memtime s[66:67]"), S("s_waitcnt lgkmcnt(0)"),
          S("s_sub_u32 s64, s66, s64"), S("s_add_u32 s96, s96, s64")]
    return l
SPREAD = int(os.environ.get("SPREAD", "0"))
SPOS = [int(x) for x in os.environ.get("SPOS", "12,23,34,45,56,67").split(",")]
def phaseA(par):
    q = 1 - par
    ch = chain(1)
    pv, pd, pm = post_ops(q)
    nb = nb_ops(q)
    sd = [(0, DS(f"ds_read_b32 v{vW0E}, v{vL0E} offset:{L_W0 + 128*(par+1)}", 'W0E')),
          (0, ch[0]), (5, [WL('TRM1'), seg(1, 0)]), (8, ch[1]), (12, seg(1, 1)), (16, ch[2]),
          (20, csm(1, 0)), (24, ch[3]), (27, csm(1, 1)), (30, ch[4]),
          (36, m_write(0, (0, 1))), (36, ch[5]),
          (38, wv6() + stage_reads(q)), (42, ch[6]),
          (39, pv[0]), (40, pv[1]), (41, pv[2]), (43, pv[3]), (44, pv[4]), (45, pv[5]), (46, pv[6]), (47, [pv[7]] + pd),
          (48, [WL('W0E'), nb[0]]), (49, nb[1]), (50, nb[2]), (51, so_reads(q)),
          (53, unp_ops(q)[0]), (55, unp_ops(q)[1]),
          (64, [WL('TRP'), pm[0]]), (67, pm[1]),
          (60, DS(f"ds_write_b16 v{vSA}, v{vONE}")),
          (72, m_write(0, (2, 3)) + trm_reads('TRM0') + trs_reads() + [DS(f"ds_write_b16 v{vSA}, v{vZERO}")])]
    if SPREAD:
        sd += [(57, list_reads_loop(par))]
    if BAL:
        sd += [(2, V(f"v_mov_b32 v{W0D}, s{sNT}") if BAL == 1 else [S(f"s_sub_u32 s{sPUB}, s{sNT}, s{sBIAS}"), V(f"v_mov_b32 v{W0D}, s{sPUB}")]), (3, V(f"v_mov_b32 v{W0D+1}, s{sPGW}")),
               (4, V(f"v_mov_b32 v{W0D+2}, s{sPGR}")),
               (6, [DS(f"ds_write_b32 v{W0D+1}, v{W0D}"), DS(f"ds_read_b32 v{W0D+3}, v{W0D+2}", 'PG')]),
               (33, [WL('PG'), V(f"v_readfirstlane_b32 s{sPGP}, v{W0D+3}")]),
               (35, [S("s_setprio 0"), S(f"s_cmp_gt_u32 s{sNT}, s{sPGP}"), S(f"s_cbranch_scc0 LM_pg{par}"),
                     S("s_setprio 1"), S(f"LM_pg{par}:")])]
    return merge(silu_stream(0), sd)

def phaseB(par):
    q = 1 - par
    ch = chain(0)
    pr = pre_ops(q)
    da = dma_addr()
    dp, dpos = dma_pairs(q)
    sd = [(0, list_reads_loop(par)),
          (31, srd_ops()),
          (2, [WL('PD'), pr[0]]), (3, pr[1]), (4, pr[2]), (6, pr[3]), (7, pr[4]), (9, pr[5]), (10, pr[6]),
          (11, pr[7]), (13, pr[8]), (14, pr[9]), (15, pr[10]), (17, pr[11]), (18, pr[12]),
          (4, ch[0]), (8, [WL('TRS'), seg(0, 0)]), (12, ch[1]), (16, seg(0, 1)), (20, ch[2]),
          (23, csm(0, 0)), (27, ch[3]), (30, csm(0, 1)), (33, ch[4]),
          (36, m_write(1, (0, 1))), (19, SA_OP), (39, ch[5]), (46, ch[6]),
          (21, [WL('L3'), da[0]]), (22, da[1]), (24, da[2]), (25, da[3]), (26, da[4]), (28, da[5]),
          (39, dp[0][0]), (41, dp[0][1]), (43, dp[1][0]), (44, dp[1][1]), (47, dp[2][0]), (48, dp[2][1]),
          (49, dp[3][0]), (51, dp[3][1]), (52, dp[4][0]), (54, dp[4][1]), (56, dpos),
          (72, m_write(1, (2, 3)) + trm_reads('TRM1'))]
    if SPREAD:
        sd = [(0, srd_ops()),
          (2, [WL('L3'), pr[0]]), (3, pr[1]), (4, pr[2]), (6, pr[3]), (7, pr[4]), (13, pr[5]), (14, pr[6]),
          (15, pr[7]), (17, pr[8]), (18, pr[9]), (21, pr[10]), (22, pr[11]), (24, pr[12]),
          (4, ch[0]), (8, [WL('TRS'), seg(0, 0)]), (12, ch[1]), (16, seg(0, 1)), (20, ch[2]),
          (23, csm(0, 0)), (27, ch[3]), (30, csm(0, 1)), (33, ch[4]),
          (36, m_write(1, (0, 1))), (25, SA_OP), (39, ch[5]), (46, ch[6]),
          (5, da[0]), (9, da[1]), (10, da[2]), (11, da[3]), (26, da[4]), (28, da[5]),
          (72, m_write(1, (2, 3)) + trm_reads('TRM1'))]
        for i in range(5):
            sd += [(SPOS[i] - 2, dp[i][0]), (SPOS[i], dp[i][1])]
        sd += [(SPOS[5], dpos)]
    if par == 1 and not MB:
        sd += [(60, V(f"v_add_u32 v{vL0E}, 256, v{vL0E}")),
               (64, V(f"v_add_u32 v{vL1P}, 256, v{vL1P}"))]
    return merge(silu_stream(1), sd)

def resolve(body):
    n = len(body)
    res = []
    for i, op in enumerate(body):
        if op[0] != 'wl':
            res.append(op[1]); continue
        cnt = 0
        for d in range(1, n + 1):
            o = body[(i - d) % n]
            if o[0] == 'ds':
                if o[2] == op[2]:
                    break
                cnt += 1
        else:
            raise Exception("tag not found " + op[2])
        res.append(f"s_waitcnt lgkmcnt({min(cnt, 15)})")
    return res

def resolve_lin(body, start):
    res = []
    for i in range(start, len(body)):
        op = body[i]
        if op[0] != 'wl':
            res.append(op[1]); continue
        cnt = 0
        for d in range(1, i + 1):
            o = body[i - d]
            if o[0] == 'ds':
                if o[2] == op[2]:
                    break
                cnt += 1
        else:
            raise Exception("tag not found " + op[2])
        res.append(f"s_waitcnt lgkmcnt({min(cnt, 15)})")
    return res
eE32, eHH, eH16, eL16, eNODE, eSTO, ePOFF, eT = PS0, PS0 + 1, PS0 + 2, W0D, W0D + 1, W0D + 2, W0D + 3, PS1
def whreg(f):
    return WSF + 4 * f if f < 14 else SO + 4 * (f - 14)
WHORD = (8, 9, 10, 11, 12, 13, 14, 15, 0, 1, 2, 3, 4, 5, 6, 7)
def wh_pre():
    return [V(f"v_and_b32 v{eL16}, 63, v0"), V(f"v_lshlrev_b32 v{eL16}, 4, v{eL16}")] + \
           [S(f"s_mov_b32 s{sWH+j}, {WF_OFF + 24*1024 + 4096*j}") for j in range(4)]
def wh_load(f):
    return VM(f"buffer_load_dwordx4 {vr(whreg(f),4)}, v{eL16}, s[{S_WS}:{S_WS+3}], s{sWH + f//4} offen offset:{(f%4)*1024}")
def tailB(par):
    sd = [(0, wh_pre() + [S(f"s_mov_b32 s{sTMP}, {par*ST_SZ}")]),
          (8, [WL('TRS'), seg(0, 0)]), (16, seg(0, 1)), (23, csm(0, 0)), (30, csm(0, 1)),
          (36, m_write(1, (0, 1))),
          (52, [WV(16)] + stage_reads(par)[:4]),
          (72, m_write(1, (2, 3)) + trm_reads('TRM1'))]
    for i, f in enumerate(WHORD):
        sd.append((2 + 2 * i + (0 if i < 3 else 2), wh_load(f)))
    return merge(silu_stream(1), sd)
def emit(ops):
    for o in ops:
        assert o[0] != 'wl'
        A("    " + o[1])
def emit_dma(q):
    dp, dpos = dma_pairs(q)
    for a, b in dp:
        emit([a, S("s_nop 0"), b])
    emit(dpos)

fill_start = len(out)
A(f"    s_cmp_lg_u32 s{sNT}, 0")
A("    s_cbranch_scc1 LM_g01")
A("    s_waitcnt vmcnt(0)")
A("    s_branch LM_nog")
A("LM_g01:")
for k in range(2):
    emit(list_reads(k))
    A("    s_waitcnt lgkmcnt(0)")
    emit(dma_addr())
    emit_dma(k)
A("LM_nog:")
A(f"    s_cmp_lg_u32 s{sBASE}, 0")
A("    s_cbranch_scc1 LM_noat2")
A("    s_waitcnt vmcnt(12)")
at_block()
A("LM_noat2:")
A(f"    s_cmp_eq_u32 s{sNT}, 0")
A("    s_cbranch_scc1 LM_tiles_done")
A(f"    ds_read_b32 v{vW0E}, v{vL0E} offset:{L_W0}")
emit(list_reads(2))
for r in list(range(TRM, TRM + 16)) + list(range(PK + 8, PK + 16)) + list(range(CS, CS + 4)) + list(range(DX[1], DX[1] + 3)):
    A(f"    v_mov_b32 v{r}, 0")
A("    s_waitcnt lgkmcnt(0)")
emit(nb_ops(0))
emit([SA_OP])
emit(dma_addr())
A("    s_waitcnt vmcnt(6)")
emit(stage_reads(0))
emit(so_reads(0))
emit(unp_ops(0))
A("    s_waitcnt lgkmcnt(0)")
emit(pre_ops(0))
emit_dma(0)
emit(chain(0))
A("    s_nop 15")
if MB:
    A(f"    s_mov_b32 s{sNT}, 400")
    STAMP()
HALF = None
body = []
marks = []
for par in range(2):
    body += phaseA(par)
    body.append(('br', 2 + par, None))
    body += phaseB(par)
    body.append(('br', par, None))
XF = os.environ.get("XF", "").split(",")
def keep(o):
    if o[0] in ('br', 'wl'): return True
    t = o[1]
    if 'nodma' in XF and o[0] == 'vm': return False
    if 'noea' in XF and o[0] == 'vm' and f"s[{S_EA}:" in t: return False
    if 'noh' in XF and o[0] == 'vm' and f"s[{S_H}:" in t: return False
    if 'nopos' in XF and o[0] == 'vm' and f"s[{S_P4}:" in t: return False
    if 'noadd' in XF and t.startswith('ds_add'): return False
    if 'nomw' in XF and t.startswith('ds_write'): return False
    if 'notrans' in XF and (t.startswith('v_exp') or t.startswith('v_rcp')): return False
    if 'novalu' in XF and o[0] == 'v': return False
    if 'nomfma' in XF and o[0] == 'm': return False
    if 'nods' in XF and o[0] == 'ds' and o[2] is None: return False
    return True
body = [o for o in body if keep(o)]
flat = [o for o in body if o[0] != 'br']
txt = resolve(flat)
A("LM_loop:")
k = 0
loop_lines = []
for o in body:
    if o[0] == 'br':
        l = [f"s_sub_u32 s{sNT}, s{sNT}, 1"]
        if o[1] >= 2:
            l = [f"s_cmp_eq_u32 s{sNT}, s{sTAIL}", f"s_cbranch_scc1 LM_tail{o[1]-2}"]
        elif o[1] == 0:
            l += [f"s_cmp_eq_u32 s{sNT}, 0", "s_cbranch_scc1 LM_drain0"]
        else:
            l += [f"s_cmp_lg_u32 s{sNT}, 0", "s_cbranch_scc1 LM_loop"]
        for x in l:
            A("    " + x); loop_lines.append(x)
    else:
        A("    " + txt[k]); loop_lines.append(txt[k]); k += 1
def drain(par):
    l = [S("s_waitcnt lgkmcnt(0)"), seg(1, 0), seg(1, 1), csm(1, 0), csm(1, 1), S("s_nop 9")]
    pv, pd, pm = post_ops(par)
    return l + pv + pd + [S("s_waitcnt lgkmcnt(0)")] + pm
tail_txt = {}
for par in range(2):
    pre = phaseA(1 - par) + phaseB(1 - par) + phaseA(par)
    pre = [o for o in pre if keep(o)]
    tl = [o for o in tailB(par) if keep(o)]
    tail_txt[par] = resolve_lin(pre + tl, len(pre)) + [o[1] for o in drain(par)]
emit(drain(1))
A("    s_branch LM_tiles_done")
for par in range(2):
    A(f"LM_tail{par}:")
    for x in tail_txt[par]:
        A("    " + x)
    A("    s_branch LM_epif")
A("LM_drain0:")
emit(drain(0))
A("LM_tiles_done:")
A(f"    s_mov_b32 s{S_H+2}, {N*128}")
A(f"    s_mov_b32 s{S_EA+2}, {E*32}")
A(f"    s_mov_b32 s{S_P4+2}, {N}")
errs = lint(out[fill_start:out.index("LM_loop:")] + loop_lines + loop_lines + [o[1] for o in drain(1)], "loop")
half = loop_lines.index("s_cbranch_scc1 LM_drain0") + 1
errs += lint(loop_lines[:half] + [o[1] for o in drain(0)], "drain0")
for par in range(2):
    cut = loop_lines.index(f"s_cbranch_scc1 LM_tail{par}") + 1
    errs += lint(loop_lines + loop_lines[:cut] + tail_txt[par], f"tail{par}")
for e in errs:
    print("LINT", e)
nv = sum(1 for l in loop_lines if l.startswith("v_") and not l.startswith("v_mfma"))
print("loop: instrs", len(loop_lines), "valu", nv, "per tile", nv / 2)

A("    s_waitcnt vmcnt(0) lgkmcnt(0)")
A(f"    s_add_u32 s{sBASE}, s{sBASE}, {CAP}")
A(f"    s_cmp_ge_u32 s{sBASE}, s{sT}")
A("    s_cbranch_scc1 LM_epi")
lane_consts()
A(f"    s_lshl_b32 s3, s2, 13")
A(f"    s_lshl_b32 s4, s{sW}, 2")
A(f"    s_add_u32 s3, s3, s4")
A(f"    s_add_u32 s3, s3, {TBL_OFF}")
A(f"    v_lshlrev_b32 v{X}, 5, v{xLANE}")
A(f"    v_add_u32 v{X+1}, 4096, v{X}")
for j in range(4):
    A(f"    buffer_load_dword v{T_+j}, v{X+j//2}, s[{S_WS}:{S_WS+3}], s3 offen offset:{2048*(j%2)}")
A("    s_waitcnt vmcnt(0)")
A("    s_branch LM_slowbase")
HD = TRM
def whf(q, tp):
    return whreg(2 * q + tp)
def epilogue(fast):
    epi_start = len(out)
    A(f"    v_and_b32 v{eE32}, 31, v0")
    A(f"    v_bfe_u32 v{eHH}, v0, 5, 1")
    A(f"    v_add_u32 v{eNODE}, s{sNODE}, v{eE32}")
    A(f"    v_lshlrev_b32 v{eSTO}, 7, v{eNODE}")
    A(f"    v_lshl_add_u32 v{eSTO}, v{eHH}, 3, v{eSTO}")
    if not fast:
        A(f"    v_lshlrev_b32 v{eH16}, 4, v{eHH}")
        emit(wh_pre())
        for f in WHORD:
            emit([wh_load(f)])
        A(f"    v_lshl_add_u32 v{eT}, v{eNODE}, 7, v{eH16}")
        for s in range(4):
            A(f"    buffer_load_dwordx4 {vr(HB+4*s,4)}, v{eT}, s[{S_H}:{S_H+3}], 0 offen offset:{32*s}")
        for t in range(2):
            for q in range(4):
                A(f"    buffer_load_dwordx2 {vr(HD+8*t+2*q,2)}, v{eSTO}, s[{S_H}:{S_H+3}], 0 offen offset:{64*t+16*q}")
    else:
        A(f"    s_add_u32 s{sTMP}, s{sTMP}, s{sSTG}")
    if fast or LOUT:
        if not fast:
            A(f"    s_mov_b32 s{sTMP}, s{sSTG}")
        A(f"    v_lshrrev_b32 v{eT}, 3, v{eE32}          ; i")
        A(f"    v_and_b32 v{eH16}, 7, v{eE32}            ; r")
        A(f"    v_lshl_add_u32 v{ePOFF}, v{eT}, 10, s{sTMP}")
        A(f"    v_lshl_add_u32 v{ePOFF}, v{eH16}, 7, v{ePOFF}")
        A(f"    v_lshl_add_u32 v{ePOFF}, v{eHH}, 3, v{ePOFF}")
        A(f"    v_and_b32 v{eT}, 1, v{eT}")
        A(f"    v_xor_b32 v{eT}, v{eT}, v{eH16}          ; x")
        A(f"    v_lshl_add_u32 v{ePOFF}, v{eT}, 4, v{ePOFF}")
        for c in range(8):
            A(f"    v_xor_b32 v{WX+c}, {16*c}, v{ePOFF}")
    if fast:
        for c in range(8):
            A(f"    ds_read_b64 {vr(HD+2*c,2)}, v{WX+c}")
    if LOUT:
        A(f"    v_and_b32 v{WX+8}, 63, v0")
        A(f"    v_lshl_add_u32 v{WX+9}, v{WX+8}, 4, s{sTMP}      ; lds read addr")
        A(f"    v_lshrrev_b32 v{WX+8}, 3, v{WX+8}")
        A(f"    v_add_u32 v{WX+8}, s{sNODE}, v{WX+8}")
        A(f"    v_lshl_add_u32 v{WX+10}, v{WX+8}, 7, v{vSWZ[0]}")
        A(f"    v_lshl_add_u32 v{WX+11}, v{WX+8}, 7, v{vSWZ[1]}")
    for r in range(32):
        A(f"    v_mul_f32 v{SEG+r}, s{sLN2}, v{SEG+r}")
    for j in range(16):
        A(f"    v_cvt_pk_bf16_f32 v{PK+j}, v{SEG+2*j}, v{SEG+2*j+1}")
    NL = 0 if fast else 12
    def mm():
        A(f"    s_waitcnt vmcnt({8 + NL + (0 if fast else 3)})")
        for tp in range(2):
            for i, q in enumerate((4, 5, 6, 7)):
                c = "0" if i == 0 else vr(ACC+16*tp,16)
                A(f"    v_mfma_f32_32x32x16_bf16 {vr(ACC+16*tp,16)}, {vr(whf(q,tp),4)}, {vr(PK+4*(q-4),4)}, {c}")
        A(f"    s_waitcnt vmcnt({0 if fast else 8 + 3})")
        for tp in range(2):
            for q in range(4):
                A(f"    v_mfma_f32_32x32x16_bf16 {vr(ACC+16*tp,16)}, {vr(whf(q,tp),4)}, {vr(HB+4*q,4)}, {vr(ACC+16*tp,16)}")
    if fast:
        A("    s_nop 0")
        mm()
    A("    s_mov_b64 exec, 0x01ffffff")
    A(f"    v_lshl_add_u32 v{eT}, v{eE32}, 4, s{sPAB}")
    A(f"    ds_read_b96 {vr(TMP+4,3)}, v{eT}")
    A(f"    v_mul_u32_u24 v{ePOFF}, 6, v{eNODE}")
    A(f"    v_add_u32 v{ePOFF}, {N*128}, v{ePOFF}")
    A(f"    v_cvt_pk_bf16_f32 v{CS}, v{PAC}, v{PAC+1}")
    A(f"    v_cvt_pk_bf16_f32 v{CS+1}, v{PAC+2}, v{PAC+2}")
    A(f"    v_lshlrev_b32 v{TMP}, 16, v{CS}")
    A(f"    v_and_b32 v{TMP+1}, s{sHI}, v{CS}")
    A(f"    v_lshlrev_b32 v{TMP+2}, 16, v{CS+1}")
    A("    s_waitcnt lgkmcnt(0)")
    for c in range(3):
        A(f"    v_add_f32 v{TMP+c}, v{TMP+c}, v{TMP+4+c}")
    for c in range(3):
        A(f"    v_cvt_pk_bf16_f32 v{CS+c}, v{TMP+c}, v{TMP+c}")
    for c in range(3):
        A(f"    buffer_store_short v{CS+c}, v{ePOFF}, s[{S_OUT}:{S_OUT+3}], 0 offen offset:{2*c}" + PST)
    A("    s_mov_b64 exec, -1")
    if not fast:
        mm()
        A("    s_nop 15")
    for j in range(16):
        a0, a1 = ACC + 2 * j, ACC + 2 * j + 1
        A(f"    v_cvt_pk_bf16_f32 v{TMP}, v{a0}, v{a1}")
        A(f"    v_lshlrev_b32 v{a0}, 16, v{TMP}")
        A(f"    v_and_b32 v{a1}, s{sHI}, v{TMP}")
    A(f"    s_mov_b32 s3, 0x{LOG2E:08x}")
    for g0 in range(0, 32, 8):
        rs = range(g0, g0 + 8)
        for r in rs: A(f"    v_mul_f32 v{TMP+r%8}, s3, v{ACC+r}")
        for r in rs: A(f"    v_exp_f32 v{TMP+r%8}, v{TMP+r%8}")
        for r in rs: A(f"    v_add_f32 v{TMP+r%8}, 1.0, v{TMP+r%8}")
        for r in rs: A(f"    v_rcp_f32 v{TMP+r%8}, v{TMP+r%8}")
        for r in rs: A(f"    v_mul_f32 v{ACC+r}, v{ACC+r}, v{TMP+r%8}")
    if not fast:
        A("    s_waitcnt vmcnt(3)")
    for j in range(16):
        a0, a1 = ACC + 2 * j, ACC + 2 * j + 1
        hv = HD + j
        A(f"    v_cvt_pk_bf16_f32 v{TMP}, v{a0}, v{a1}")
        A(f"    v_lshlrev_b32 v{a0}, 16, v{TMP}")
        A(f"    v_and_b32 v{a1}, s{sHI}, v{TMP}")
        A(f"    v_lshlrev_b32 v{TMP+1}, 16, v{hv}")
        A(f"    v_and_b32 v{TMP+2}, s{sHI}, v{hv}")
        A(f"    v_add_f32 v{a0}, v{a0}, v{TMP+1}")
        A(f"    v_add_f32 v{a1}, v{a1}, v{TMP+2}")
        A(f"    v_cvt_pk_bf16_f32 v{PK+j}, v{a0}, v{a1}")
        if LOUT and j % 2 == 1:
            A(f"    ds_write_b64 v{WX+j//2}, {vr(PK+j-1,2)}")
    if LOUT:
        for i in range(4):
            A(f"    ds_read_b128 {vr(SEG+4*i,4)}, v{WX+9} offset:{1024*i}")
        for i in range(4):
            if i == 3:
                A("    s_mov_b64 exec, 0xff")
            A(f"    s_waitcnt lgkmcnt({3-i})")
            A(f"    buffer_store_dwordx4 {vr(SEG+4*i,4)}, v{WX+10+(i&1)}, s[{S_OUT}:{S_OUT+3}], 0 offen offset:{1024*i}" + OST)
    else:
        A(f"    s_mov_b64 exec, s[{sM25}:{sM25+1}]")
        for t in range(2):
            for q in range(4):
                A(f"    buffer_store_dwordx2 {vr(PK+8*t+2*q,2)}, v{eSTO}, s[{S_OUT}:{S_OUT+3}], 0 offen offset:{64*t+16*q}" + OST)
    pre = tail_txt[0][-30:] if fast else []
    for e in lint(pre + out[epi_start:], "epi"):
        print("LINT", e)
A("LM_epi:")
_sv = _stamp[0]
STAMP()
epilogue(0)
A("    s_branch LM_fin")
A("LM_epif:")
_stamp[0] = _sv
STAMP()
epilogue(1)
A("LM_fin:")
if PROF:
    A("    s_mov_b64 exec, -1")
    prof_dump("LP", "LM_end", sW, 82, _stamp[0])
A("LM_end:")
A("    s_endpgm")

A('.section .rodata,"a"')
for name, nv in (("egnn_sort_kernel", 88), ("egnn_main_kernel", 256)):
    A(".p2align 6")
    A(f".amdhsa_kernel {name}")
    A(f"  .amdhsa_next_free_vgpr {nv}")
    A("  .amdhsa_next_free_sgpr 100")
    A(f"  .amdhsa_accum_offset {nv}")
    A("  .amdhsa_group_segment_fixed_size 0")
    A("  .amdhsa_kernarg_size 88")
    A("  .amdhsa_user_sgpr_count 2")
    A("  .amdhsa_user_sgpr_kernarg_segment_ptr 1")
    A("  .amdhsa_system_sgpr_workgroup_id_x 1")
    A(".end_amdhsa_kernel")

path = sys.argv[1] if len(sys.argv) > 1 else f"cdna_kernels/{NAME}.s"
open(path, "w").write("\n".join(out) + "\n")
print("wrote", path, len(out), "lines; sort lds", SORT_LDS, "main lds", MAIN_LDS, "vgprs", NVGPR)
```

```python
import sys, os
sys.path.insert(0, os.path.dirname(os.path.abspath(__file__)))
from lint import lint
PROF = int(os.environ.get("PROF", "0"))
MB = int(os.environ.get("MB", "0"))
EANT = os.environ.get("EANT", "")
BAL = int(os.environ.get("BAL", "1"))
PH = int(os.environ.get("PH", "1"))
F16 = int(os.environ.get("F16", "1"))
MT = "f16" if F16 else "bf16"
CVT = "v_cvt_pk_f16_f32" if F16 else "v_cvt_pk_bf16_f32"
PF = int(os.environ.get("PF", "0"))
PFN = int(os.environ.get("PFN", "25000"))
TH = int(os.environ.get("TH", "25000"))

PFW = int(os.environ.get("PFW", "0"))
PFS = int(os.environ.get("PFS", "0"))
PFSH = int(os.environ.get("PFSH", "0"))
L2P = int(os.environ.get("L2P", "0"))
L2C = int(os.environ.get("L2C", "2"))
L2R = -(-L2P // 40)
L2I = -(-L2R // 640)
TLBW = int(os.environ.get("TLBW", "0"))
NPS = PFS + PFSH + (L2C * L2I if L2P else 0) + (3 if TLBW else 0)
RNT = os.environ.get("RNT", "")
RNT = (" " + RNT.replace(",", " ")) if RNT else ""
PFI = int(os.environ.get("PFI", "2"))
PFH = int(os.environ.get("PFH", "1"))
SST = os.environ.get("SST", "sc1")
SST = (" " + SST.replace(",", " ")) if SST else ""
OST = os.environ.get("OST", "sc1")
OST = (" " + OST.replace(",", " ")) if OST else ""
PST = os.environ.get("PST", "sc1")
PST = (" " + PST.replace(",", " ")) if PST else ""
LOUT = int(os.environ.get("LOUT", "1"))
TST = os.environ.get("TST", "sc1")
TST = (" " + TST.replace(",", " ")) if TST else ""
TROW = int(os.environ.get("TROW", "0"))
NAME = "gather_scatter__cheap_equivariant_egnn__graph"
N = 50000
E = 800000
G = 250
GW = 4
C = 3200
NBK = 250
BN = 200
FBN = 25
REC_OFF = 0
TBL_OFF = E * 8
TRS_ = int(os.environ.get("TRS", "8320"))
WF_OFF = TBL_OFF + 256 * 8704
P4_OFF = WF_OFF + 40 * 1024
WS_USED = P4_OFF + N * 8
LOG2E = 0xbfb8aa3b
LN2 = 0xbf317218
PADNB = 30

out = []
def A(s=""):
    out.append(s)

_stamp = [0]
def STAMP(lvl=1):
    if PROF != lvl and lvl != 0:
        return
    if not PROF:
        return
    i = _stamp[0]; _stamp[0] += 1
    assert i < 7
    A(f"    s_memtime s[{82+2*i}:{83+2*i}]")
_sst = [0]
def SSTAMP():
    if not PROF:
        return
    i = _sst[0]; _sst[0] += 1
    assert i < 7
    A(f"    s_memtime s[{46+2*i}:{47+2*i}]")

def srd(base, lo, hi, nbytes, stride=0):
    A(f"    s_mov_b32 s{base}, s{lo}")
    A(f"    s_and_b32 s{base+1}, s{hi}, 0xffff")
    if stride:
        A(f"    s_or_b32 s{base+1}, s{base+1}, {stride << 16}")
    A(f"    s_mov_b32 s{base+2}, {nbytes}")
    A(f"    s_mov_b32 s{base+3}, 0x00020000")

def vr(a, n):
    return f"v[{a}:{a+n-1}]"

def wave_scan(x):
    for sh in (1, 2, 4, 8):
        A("    s_nop 1")
        A(f"    v_add_u32_dpp v{x}, v{x}, v{x} row_shr:{sh} row_mask:0xf bank_mask:0xf bound_ctrl:0")
    A("    s_nop 1")
    A(f"    v_add_u32_dpp v{x}, v{x}, v{x} row_bcast:15 row_mask:0xa bank_mask:0xf")
    A("    s_nop 1")
    A(f"    v_add_u32_dpp v{x}, v{x}, v{x} row_bcast:31 row_mask:0xc bank_mask:0xf")
    A("    s_nop 1")

PALL = int(os.environ.get("PALL", "0"))
def prof_all(wreg, base, n, off, rt0):
    A("    s_waitcnt vmcnt(0)")
    A(f"    s_memtime s[{base+2*n}:{base+2*n+1}]")
    A(f"    s_memrealtime s[66:67]")
    A("    s_load_dwordx2 s[64:65], s[0:1], 80")
    A("    s_getreg_b32 s75, hwreg(HW_REG_HW_ID)")
    A("    s_getreg_b32 s77, hwreg(HW_REG_XCC_ID)")
    A("    s_waitcnt lgkmcnt(0)")
    srd(68, 64, 65, 256 << 20)
    A("    s_lshl_b32 s72, s2, 4")
    A(f"    s_add_u32 s72, s72, s{wreg}")
    A("    s_lshl_b32 s72, s72, 6")
    A(f"    s_add_u32 s72, s72, {off}")
    A("    s_mov_b64 exec, 1")
    A("    v_mov_b32 v1, s72")
    for i in range(1, n + 1):
        A(f"    s_sub_u32 s73, s{base+2*i}, s{base}")
        A(f"    v_mov_b32 v2, s73")
        A(f"    buffer_store_dword v2, v1, s[68:71], 0 offen offset:{4*i}")
    for j, r in enumerate((rt0, 66, 75, 77, 96)):
        A(f"    v_mov_b32 v2, s{r}")
        A(f"    buffer_store_dword v2, v1, s[68:71], 0 offen offset:{32+4*j}")
def prof_dump(lbl, endlbl, wreg, base, n):
    if PALL:
        return prof_all(wreg, base, n, (200 << 20) + (0 if lbl == "LP" else 1 << 20), 98 if lbl == "LP" else 62)
    A("    s_waitcnt vmcnt(0)")
    A(f"    s_memtime s[{base+2*n}:{base+2*n+1}]")
    A("    s_load_dwordx2 s[64:65], s[0:1], 72")
    A("    s_waitcnt lgkmcnt(0)")
    srd(68, 64, 65, 256)
    A("    s_mov_b32 s72, 0")
    A("    s_cmp_eq_u32 s2, 0")
    A(f"    s_cbranch_scc1 {lbl}_a")
    A("    s_mov_b32 s72, 2")
    A("    s_cmp_eq_u32 s2, 137")
    A(f"    s_cbranch_scc0 {endlbl}")
    A(f"{lbl}_a:")
    A(f"    s_cmp_eq_u32 s{wreg}, 0")
    A(f"    s_cbranch_scc1 {lbl}_b")
    A("    s_add_u32 s72, s72, 1")
    A(f"    s_cmp_eq_u32 s{wreg}, 7")
    A(f"    s_cbranch_scc0 {endlbl}")
    A(f"{lbl}_b:")
    A("    s_lshl_b32 s72, s72, 5")
    A("    s_mov_b64 exec, 1")
    A("    v_mov_b32 v1, s72")
    for i in range(1, n + 1):
        A(f"    s_sub_u32 s73, s{base+2*i}, s{base}")
        A(f"    v_mov_b32 v2, s73")
        A(f"    buffer_store_dword v2, v1, s[68:71], 0 offen offset:{4*i}")

S_HIST = 0
S_OFF = 8192
S_WT = 16384
S_STAGE = 16384 + 64
SORT_LDS = S_STAGE + C * 8
CAP = 512
ST_SZ = 5120
L_ID = 0
ID_RS = 80
L_PA = L_ID + 32 * ID_RS
L_Z = L_PA + 8 * 512
L_PRG = L_Z + 1024
L_PS = L_PRG + 128
L_W0 = L_PS + 1024
L_W1 = L_W0 + 8 * CAP * 4
L_MS = L_W1 + 8 * CAP * 4
MS_RS = 136
MS_W = 32 * MS_RS
L_ST = L_MS + 8 * MS_W
assert L_PRG % 32 == 0
assert L_ST % 128 == 0 and L_PA % 16 == 0 and L_ID % 16 == 0
L_TB = L_MS
L_WF = L_MS + 8192
assert L_WF + 24576 <= L_ST
L_RAW = L_ST
MAIN_LDS = L_ST + 16 * ST_SZ
assert MAIN_LDS <= 163840, MAIN_LDS

A(f"; @launch kernel=egnn_sort_kernel grid=({G+GW+PFW},1,1) block=(640,1,1) lds={SORT_LDS}")
A(f"; @launch kernel=egnn_main_kernel grid=({NBK},1,1) block=(512,1,1) lds={MAIN_LDS}")
A('.amdgcn_target "amdgcn-amd-amdhsa--gfx950"')
A(".text")

A(".globl egnn_sort_kernel")
A(".p2align 8")
A(".type egnn_sort_kernel,@function")
A("egnn_sort_kernel:")
A(f"    s_cmp_ge_u32 s2, {G+GW}")
A("    s_cbranch_scc1 LS_pf")
A(f"    s_cmp_ge_u32 s2, {G}")
A("    s_cbranch_scc1 LS_weights")
SSTAMP()
if PALL:
    A("    s_memrealtime s[62:63]")
A("    s_load_dwordx2 s[4:5], s[0:1], 8      ; pos")
A("    s_load_dwordx4 s[8:11], s[0:1], 24    ; src, dst")
A("    s_load_dwordx2 s[12:13], s[0:1], 80   ; ws")
if NPS:
    A("    s_load_dwordx2 s[40:41], s[0:1], 0     ; h")
    A("    s_load_dwordx2 s[42:43], s[0:1], 16    ; e_attr")
    A("    s_load_dwordx2 s[76:77], s[0:1], 64    ; out")
A("    v_lshlrev_b32 v1, 4, v0")
if NPS:
    A("    v_mov_b32 v82, v1")
for j in range(4):
    A(f"    v_mov_b32 v{4+j}, 0")
A("    v_cmp_gt_u32 vcc, 512, v0")
A("    s_and_saveexec_b64 s[14:15], vcc")
A(f"    ds_write_b128 v1, v[4:7] offset:{S_HIST}")
A("    s_mov_b64 exec, s[14:15]")
A("    v_lshlrev_b32 v1, 2, v0")
A(f"    s_mul_i32 s3, s2, {C * 4}")
A("    v_add_u32 v1, s3, v1")
SL = 5
for k in range(1, SL):
    A(f"    s_mov_b32 s{35+k}, {k*2560}")
A(f"    s_mul_i32 s3, s2, {BN}")
A("    v_add_u32 v44, s3, v0                ; node")
A("    v_mul_u32_u24 v45, 6, v44")
A("    s_waitcnt lgkmcnt(0)")
SSTAMP()
srd(24, 10, 11, E * 4)
srd(20, 8, 9, E * 4)
for k in range(SL):
    so = "0" if k == 0 else f"s{35+k}"
    A(f"    buffer_load_dword v{10+k}, v1, s[24:27], {so} offen")
    A(f"    buffer_load_dword v{15+k}, v1, s[20:23], {so} offen")
srd(16, 4, 5, N * 6)
srd(28, 12, 13, WS_USED)
for c in range(3):
    A(f"    buffer_load_ushort v{40+c}, v45, s[16:19], 0 offen offset:{2*c}")
if TLBW:
    srd(64, 40, 41, N * 128)
    srd(68, 42, 43, E * 32)
    srd(72, 76, 77, N * 134)
    A(f"    v_mul_u32_u24 v82, {TLBW * 1024}, v0")
    A(f"    v_mul_u32_u24 v83, {TLBW * 256}, v0")
    A("    s_barrier")
    A("    buffer_load_dword v84, v82, s[68:71], 0 offen")
    A("    buffer_load_dword v84, v83, s[64:67], 0 offen")
    A("    buffer_load_dword v84, v83, s[72:75], 0 offen")
elif L2P:
    srd(64, 40, 41, L2P * 128)
    A("    s_getreg_b32 s42, hwreg(HW_REG_HW_ID)")
    A("    s_bfe_u32 s43, s42, 0x40008          ; cu")
    A("    s_bfe_u32 s42, s42, 0x2000d          ; se")
    A("    s_mul_i32 s42, s42, 10")
    A("    s_add_u32 s42, s42, s43              ; slot")
    A("    v_lshlrev_b32 v82, 7, v0")
    for i in range(L2I):
        if (i + 1) * 640 > L2R:
            A(f"    v_cmp_gt_u32 vcc, {L2R - i*640}, v0")
            A("    v_mov_b32 v83, -1")
            A("    s_nop 0")
            A("    v_cndmask_b32 v83, v83, v82, vcc")
    A("    s_barrier")
    for c in range(L2C):
        if c:
            A(f"    s_add_u32 s42, s42, {(17, 0, 17, 13)[L2C] if L2C < 4 else 11}")
            A("    s_cmp_ge_u32 s42, 40")
            A("    s_cselect_b32 s43, 40, 0")
            A("    s_sub_u32 s42, s42, s43")
        A(f"    s_mul_i32 s43, s42, {L2R*128}")
        for i in range(L2I):
            A(f"    buffer_load_dword v84, v{83 if (i + 1) * 640 > L2R else 82}, s[64:67], s43 offen")
            if i + 1 < L2I:
                A(f"    s_add_u32 s43, s43, {640*128}")
elif NPS:
    srd(64, 40, 41, N * 128)
    srd(68, 42, 43, E * 32)
    A(f"    s_mul_i32 s40, s2, {BN*128}")
    A(f"    s_mul_i32 s41, s2, {PFS*10240}")
    for i in range(max(PFS, PFSH)):
        if i < PFSH:
            A(f"    buffer_load_dwordx4 v[84:87], v82, s[64:67], s40 offen")
            A(f"    s_add_u32 s40, s40, 10240")
        if i < PFS:
            A(f"    buffer_load_dwordx4 v[84:87], v82, s[68:71], s41 offen")
            A(f"    s_add_u32 s41, s41, 10240")
if not L2P and not TLBW:
    A("    s_barrier")
A("    s_mov_b32 s14, 83887")
A("    v_mov_b32 v3, 1")
A(f"    s_mul_i32 s3, s2, {C}")
A("    v_add_u32 v46, s3, v0")
for k in range(SL):
    A(f"    s_waitcnt vmcnt({NPS + 3 + 2*(SL-1-k)})")
    d, s = 10 + k, 15 + k
    A(f"    v_mul_u32_u24 v4, s14, v{d}")
    A(f"    v_lshrrev_b32 v4, 21, v4             ; key = dst/25")
    A(f"    v_lshlrev_b32 v{20+k}, 2, v4")
    A(f"    ds_add_rtn_u32 v{30+k}, v{20+k}, v3 offset:{S_HIST}")
    A(f"    v_mul_u32_u24 v5, {FBN}, v4")
    A(f"    v_sub_u32 v7, v{d}, v5               ; nb")
    A(f"    v_lshl_or_b32 v{50+2*k}, v{s}, 7, v7   ; w0")
    A(f"    v_add_u32 v8, {k*640}, v46")
    A(f"    v_lshlrev_b32 v{51+2*k}, 5, v8         ; w1")
A(f"    s_waitcnt vmcnt({NPS})")
A("    v_lshl_or_b32 v40, v41, 16, v40")
A("    v_lshlrev_b32 v41, 16, v42")
A("    v_lshlrev_b32 v44, 3, v44")
A(f"    v_add_u32 v44, {P4_OFF}, v44")
A(f"    v_cmp_gt_u32 vcc, {BN}, v0")
A("    s_and_saveexec_b64 s[44:45], vcc")
A("    s_cbranch_execz LS_nop4")
A("    buffer_store_dwordx2 v[40:41], v44, s[28:31], 0 offen" + SST)
A("LS_nop4:")
A("    s_mov_b64 exec, s[44:45]")
A("    s_waitcnt lgkmcnt(0)")
A("    s_barrier")
SSTAMP()
A("    v_lshrrev_b32 v81, 6, v0")
A("    v_lshlrev_b32 v2, 4, v0")
A("    v_readfirstlane_b32 s6, v81          ; wave")
A("    s_cmp_ge_u32 s6, 8")
A("    s_cbranch_scc1 LS_noscan1")
A(f"    ds_read_b128 v[4:7], v2 offset:{S_HIST}")
A("    s_waitcnt lgkmcnt(0)")
A("    v_add_u32 v8, v4, v5")
A("    v_add_u32 v9, v8, v6")
A("    v_add_u32 v70, v9, v7                ; total")
A("    v_mov_b32 v71, v70")
wave_scan(71)
A("    v_readlane_b32 s7, v71, 63")
A("    v_lshlrev_b32 v81, 2, v81")
A("    v_mov_b32 v72, s7")
A(f"    ds_write_b32 v81, v72 offset:{S_WT}")
A("    s_waitcnt lgkmcnt(0)")
A("LS_noscan1:")
A("    s_barrier")
A("    s_cmp_ge_u32 s6, 8")
A("    s_cbranch_scc1 LS_noscan")
A("    v_mov_b32 v81, 0")
A(f"    ds_read_b128 v[72:75], v81 offset:{S_WT}")
A(f"    ds_read_b128 v[76:79], v81 offset:{S_WT+16}")
A("    v_sub_u32 v71, v71, v70            ; exclusive")
A("    s_waitcnt lgkmcnt(0)")
for j in range(7):
    A(f"    s_cmp_gt_u32 s6, {j}")
    A(f"    s_cselect_b32 s7, -1, 0")
    A(f"    v_and_b32 v{72+j}, s7, v{72+j}")
    A(f"    v_add_u32 v71, v71, v{72+j}")
A("    v_mov_b32 v72, v71")
A("    v_add_u32 v73, v71, v4")
A("    v_add_u32 v74, v71, v8")
A("    v_add_u32 v75, v71, v9")
A(f"    ds_write_b128 v2, v[72:75] offset:{S_OFF}")
A("    v_lshl_or_b32 v76, v4, 16, v72")
A("    v_lshl_or_b32 v77, v5, 16, v73")
A("    v_lshl_or_b32 v78, v6, 16, v74")
A("    v_lshl_or_b32 v79, v7, 16, v75")
if TROW:
    A(f"    s_mul_i32 s3, s2, {TRS_}")
    A(f"    s_add_u32 s3, s3, {TBL_OFF}")
    A("    v_mov_b32 v80, v2")
else:
    A("    s_and_b32 s3, s2, 3")
    A("    s_lshl_b32 s3, s3, 6")
    A("    s_lshr_b32 s7, s2, 2")
    A("    s_add_u32 s3, s3, s7                 ; slot")
    A("    s_lshl_b32 s3, s3, 5")
    A(f"    s_add_u32 s3, s3, {TBL_OFF}")
    A("    v_lshrrev_b32 v80, 1, v0")
    A("    v_lshlrev_b32 v80, 13, v80")
    A("    v_and_b32 v81, 1, v0")
    A("    v_lshl_add_u32 v80, v81, 4, v80")
A("    buffer_store_dwordx4 v[76:79], v80, s[28:31], s3 offen" + TST)
A("    s_waitcnt lgkmcnt(0)")
A("LS_noscan:")
A("    s_barrier")
for k in range(SL):
    A(f"    ds_read_b32 v{35+k}, v{20+k} offset:{S_OFF}")
SSTAMP()
A("    s_waitcnt lgkmcnt(0)")
for k in range(SL):
    A(f"    v_add_u32 v2, v{35+k}, v{30+k}")
    A(f"    v_lshlrev_b32 v2, 3, v2")
    A(f"    ds_write_b64 v2, v[{50+2*k}:{51+2*k}] offset:{S_STAGE}")
A("    s_waitcnt lgkmcnt(0)")
A("    s_barrier")
SSTAMP()
A("    v_lshlrev_b32 v1, 3, v0")
for k in range(SL):
    A(f"    ds_read_b64 v[{50+2*k}:{51+2*k}], v1 offset:{S_STAGE + k*5120}")
A(f"    s_mul_i32 s3, s2, {C*8}")
A("    v_add_u32 v2, s3, v1")
for k in range(1, SL):
    A(f"    s_mov_b32 s{35+k}, {k*5120}")
for k in range(SL):
    A(f"    s_waitcnt lgkmcnt({SL-1-k})")
    so = "0" if k == 0 else f"s{35+k}"
    A(f"    buffer_store_dwordx2 v[{50+2*k}:{51+2*k}], v2, s[28:31], {so} offen" + SST)
if PROF:
    A("    v_lshrrev_b32 v1, 6, v0")
    A("    s_nop 0")
    A("    v_readfirstlane_b32 s74, v1")
    prof_dump("LQ", "LS_end", 74, 46, _sst[0])
A("    s_branch LS_end")
A("LS_weights:")
A("    s_load_dwordx2 s[4:5], s[0:1], 40     ; w_e")
A("    s_load_dwordx2 s[6:7], s[0:1], 56     ; w_h")
A("    s_load_dwordx2 s[26:27], s[0:1], 48   ; w_x")
A("    s_load_dwordx2 s[12:13], s[0:1], 80   ; ws")
A("    v_lshrrev_b32 v1, 6, v0")
A("    s_nop 0")
A("    v_readfirstlane_b32 s3, v1")
A(f"    s_sub_u32 s8, s2, {G}")
A("    s_mul_i32 s8, s8, 10")
A("    s_add_u32 s8, s8, s3")
A("    s_cmp_eq_u32 s8, 23")
A("    s_cbranch_scc1 LS_end")
A("    s_waitcnt lgkmcnt(0)")
srd(16, 4, 5, 145 * 128)
srd(20, 6, 7, 128 * 128)
srd(28, 12, 13, WS_USED)
A("    s_and_b32 s14, s8, 1")
A("    s_lshr_b32 s15, s8, 1                  ; ks / q")
A("    s_mov_b32 s10, 8")
A("    s_mov_b32 s11, 4")
A("    s_mov_b32 s24, 1.0")
A("    s_cmp_ge_u32 s8, 24")
A("    s_cbranch_scc1 LS_wh")
A("    s_cmp_eq_u32 s8, 22")
A("    s_cbranch_scc1 LS_wd")
A("    s_cmp_ge_u32 s8, 18")
A("    s_cbranch_scc1 LS_wx")
A("    s_lshl_b32 s9, s15, 4")
A("    s_cmp_ge_u32 s15, 8")
A("    s_cselect_b32 s9, 129, s9")
A("    s_cmp_ge_u32 s15, 4")
A(f"    s_cselect_b32 s24, 0x{LOG2E:08x}, s24")
A("    s_branch LS_wgo")
A("LS_wh:")
A("    s_sub_u32 s15, s15, 12")
A("    s_lshl_b32 s9, s15, 4")
A("    s_cmp_ge_u32 s15, 4")
A("    s_cselect_b32 s10, 4, 8")
A("    s_cselect_b32 s11, 8, 4")
A("    s_mov_b32 s16, s20")
A("    s_mov_b32 s17, s21")
A("    s_mov_b32 s18, s22")
A("LS_wgo:")
A("    v_and_b32 v1, 31, v0")
A("    v_bfe_u32 v2, v0, 5, 1")
A("    v_mul_u32_u24 v2, s10, v2")
A("    v_add_u32 v2, s9, v2")
A("    v_lshlrev_b32 v2, 7, v2")
A("    v_lshl_add_u32 v2, v1, 1, v2")
A("    s_lshl_b32 s3, s14, 6")
A("    v_add_u32 v2, s3, v2")
A("    s_lshl_b32 s3, s11, 7")
A("    v_add_u32 v3, s3, v2                   ; j=4")
for j in range(4):
    A(f"    buffer_load_ushort v{10+j}, v2, s[16:19], 0 offen offset:{128*j}")
for j in range(4):
    A(f"    buffer_load_ushort v{14+j}, v3, s[16:19], 0 offen offset:{128*j}")
A("    s_waitcnt vmcnt(0)")
for j in range(8):
    A(f"    v_lshlrev_b32 v{10+j}, 16, v{10+j}")
    A(f"    v_mul_f32 v{10+j}, s24, v{10+j}")
for j in range(4):
    A(f"    v_cvt_pk_bf16_f32 v{20+j}, v{10+2*j}, v{11+2*j}")
A("LS_wst:")
A("    v_and_b32 v1, 63, v0")
A("    v_lshlrev_b32 v1, 4, v1")
A("    s_lshl_b32 s3, s8, 10")
A(f"    s_add_u32 s3, s3, {WF_OFF}")
A("    v_add_u32 v1, s3, v1")
A("    buffer_store_dwordx4 v[20:23], v1, s[28:31], 0 offen" + SST)
A("    s_branch LS_end")
A("LS_wx:")
srd(16, 26, 27, 128)
A("    s_sub_u32 s3, s8, 18")
A("    s_lshl_b32 s3, s3, 5")
A("    v_bfe_u32 v2, v0, 5, 1")
A("    v_lshlrev_b32 v2, 3, v2")
A("    v_add_u32 v2, s3, v2")
A("    buffer_load_dwordx2 v[20:21], v2, s[16:19], 0 offen")
A("    buffer_load_dwordx2 v[22:23], v2, s[16:19], 0 offen offset:16")
A(f"    s_mov_b32 s14, {(1<<8)|(1<<28)}")
A(f"    s_mov_b32 s15, {(1<<8)|(1<<28)}")
A("    s_waitcnt vmcnt(0)")
for j in range(4):
    A(f"    v_cndmask_b32 v{20+j}, 0, v{20+j}, s[14:15]")
    if F16:
        A(f"    v_lshlrev_b32 v3, 16, v{20+j}")
        A(f"    v_and_b32 v{20+j}, 0xffff0000, v{20+j}")
        A(f"    v_cvt_pk_f16_f32 v{20+j}, v3, v{20+j}")
A("    s_branch LS_wst")
A("LS_wd:")
A("    v_and_b32 v1, 31, v0")
A("    v_lshlrev_b32 v1, 1, v1")
A(f"    v_add_u32 v1, {128*128}, v1")
A("    buffer_load_ushort v20, v1, s[16:19], 0 offen")
A("    buffer_load_ushort v21, v1, s[16:19], 0 offen offset:64")
A(f"    s_mov_b32 s3, 0x{LOG2E:08x}")
A("    v_mov_b32 v22, 0")
A("    v_mov_b32 v23, 0")
A("    s_waitcnt vmcnt(0)")
for t in range(2):
    A(f"    v_lshlrev_b32 v{20+t}, 16, v{20+t}")
    A(f"    v_mul_f32 v{20+t}, s3, v{20+t}")
    A(f"    v_cvt_pk_bf16_f32 v{20+t}, v{20+t}, v{20+t}")
A("    s_branch LS_wst")
A("LS_pf:")
if PFW:
    A(f"    s_cmp_ge_u32 s2, {G+GW+PFW}")
    A("    s_cbranch_scc1 LS_end")
    A("    s_load_dwordx2 s[4:5], s[0:1], 0      ; h")
    A("    s_load_dwordx2 s[6:7], s[0:1], 16     ; e_attr")
    A(f"    s_sub_u32 s3, s2, {G+GW}")
    A(f"    s_mul_i32 s3, s3, 640")
    A("    v_add_u32 v1, s3, v0")
    A("    v_lshlrev_b32 v2, 7, v1               ; h line")
    A("    v_lshrrev_b32 v3, 6, v1")
    A(f"    v_mul_u32_u24 v3, {PFI*64}, v3")
    A("    v_and_b32 v4, 63, v0")
    A("    v_add_u32 v3, v3, v4")
    A("    v_lshlrev_b32 v3, 7, v3")
    A("    s_waitcnt lgkmcnt(0)")
    srd(16, 4, 5, N * 128)
    srd(20, 6, 7, E * 32)
    for i in range(PFI):
        A(f"    s_mov_b32 s3, {i*8192}")
        A(f"    buffer_load_dword v{8+i}, v3, s[20:23], s3 offen")
    if PFH:
        A(f"    buffer_load_dword v7, v2, s[16:19], 0 offen")
A("LS_end:")
A("    s_endpgm")

S_H, S_EA, S_WS, S_P4, S_WE, S_WX, S_OUT = 8, 12, 16, 20, 24, 28, 32
sW, sT, sBASE, sCNT, sLB, sNT, sNODE, sSTG = 40, 41, 42, 43, 44, 45, 46, 47
sHIGH = 50
sM25 = 52
sHI = 54
sAM = 55
sLN2 = 56
sP4O = 57
sIDRS = 58
sPAB = 59
sONE2 = 60
sPGW, sPGR, sPGP = 62, 63, 76
sINC, sDEL, sTAIL, sTMP, sWH = 24, 25, 26, 27, 28
FT = int(os.environ.get("FT", "1"))

_next = [1]
def alloc(n, align=1):
    while _next[0] % align:
        _next[0] += 1
    r = _next[0]; _next[0] += n
    return r
WSF = alloc(32, 4)
WAE = alloc(8, 4)
ATF = alloc(16, 4)
WX = alloc(16, 4)
ACC = alloc(32, 4)
SEG = alloc(32, 4)
HB = alloc(16, 4)
EA = alloc(4, 4)
SO = alloc(8, 4)
PK = alloc(16, 4)
TRM = alloc(8, 4)
TRS = alloc(8, 4)
CS = alloc(4, 4)
TMP = alloc(8, 4)
W0D = alloc(4, 4)
PAC = alloc(4, 4)
PS0 = alloc(3, 2); vW0E = alloc(1)
PS1 = alloc(3, 2); vNB = alloc(1)
PD = alloc(3, 2); vSA = alloc(1)
PS = (PS0, PS1)
DX = (alloc(3), alloc(3))
vW1P = alloc(1); vW0E3 = alloc(1)
vSWZ = (alloc(1), alloc(1))
vEAO = alloc(1)
vHBA = [alloc(1) for _ in range(4)]
vEAR, vIDB, vSWL, vMWL, vTRL = [alloc(1) for _ in range(5)]
assert _next[0] <= 256, _next[0]
vTRP, vL0E, vL0D = 1, 2, 3
vL1P, vONE, vZERO, vMASK = [alloc(1) for _ in range(4)]
assert _next[0] <= 256, _next[0]
NVGPR = _next[0]
def wsf(s, t): return WSF + (2 * s + t) * 4
def atf(u, t): return ATF + (2 * u + t) * 4
X = PK
assert W0D + 4 - PK == 48

A(".globl egnn_main_kernel")
A(".p2align 8")
A(".type egnn_main_kernel,@function")
A("egnn_main_kernel:")
A(f"    s_cmp_ge_u32 s2, {os.environ.get('LIMWG', NBK)}")
A("    s_cbranch_scc1 LM_end")
STAMP(0)
if PALL:
    A("    s_memrealtime s[98:99]")
A("    s_load_dwordx2 s[80:81], s[0:1], 80    ; ws")
A("    s_load_dwordx2 s[64:65], s[0:1], 0     ; h")
A("    s_load_dwordx2 s[66:67], s[0:1], 16    ; e_attr")
A("    s_load_dwordx2 s[78:79], s[0:1], 64    ; out")
xLANE, xE32, xHH, xH16, xL16, xT4 = X + 40, X + 41, X + 42, X + 43, X + 44, X + 45
def lane_consts():
    A(f"    v_and_b32 v{xLANE}, 63, v0")
    A(f"    v_and_b32 v{xE32}, 31, v0")
    A(f"    v_bfe_u32 v{xHH}, v0, 5, 1")
    A(f"    v_lshlrev_b32 v{xH16}, 4, v{xHH}")
    A(f"    v_lshlrev_b32 v{xL16}, 4, v{xLANE}")
    A(f"    v_lshlrev_b32 v{xT4}, 2, v0")
lane_consts()
A(f"    v_lshrrev_b32 v{X}, 6, v0")
A(f"    s_mov_b32 s{sHIGH}, 0")
A(f"    v_readfirstlane_b32 s{sW}, v{X}")
A(f"    s_mov_b32 s{sHIGH+1}, -1")
A(f"    s_mov_b32 s{sM25}, 0x01ffffff")
A(f"    s_mov_b32 s{sM25+1}, 0x01ffffff")
A(f"    s_mov_b32 s{sHI}, 0xffff0000")
A(f"    s_mov_b32 s{sAM}, {os.environ.get('HOTH', '0x007fff80')}")
sHOT = 61
A(f"    s_mov_b32 s{sHOT}, {os.environ.get('HOTEA', '0')}")
A(f"    s_mov_b32 s{sLN2}, 0x{LN2:08x}")
A(f"    s_mov_b32 s{sP4O}, {P4_OFF}")
A(f"    s_mov_b32 s{sIDRS}, {ID_RS}")
A(f"    s_mov_b32 s{sONE2}, 0x3c003c00")
A(f"    s_lshl_b32 s{sPGW}, s{sW}, 2")
A(f"    s_add_u32 s{sPGW}, s{sPGW}, {L_PRG}")
A(f"    s_xor_b32 s{sPGR}, s{sPGW}, 16")
sBIAS, sPUB = 36, 37
if BAL >= 2:
    A(f"    s_cmp_lt_u32 s{sW}, 4")
    A(f"    s_cselect_b32 s{sBIAS}, {1 if BAL == 2 else 0}, {0 if BAL == 2 else 1}")
if TROW:
    A(f"    s_lshl_b32 s3, s2, 5")
    A(f"    s_add_u32 s3, s3, {TBL_OFF}")
    A(f"    v_bfe_u32 v{X+1}, v0, 1, 6              ; slot & 63")
    A(f"    v_lshrrev_b32 v{X+2}, 7, v0             ; slot >> 6")
    A(f"    v_lshl_add_u32 v{X+1}, v{X+1}, 2, v{X+2}   ; chunk")
    A(f"    v_and_b32 v{X+2}, 1, v0")
    A(f"    v_lshlrev_b32 v{X+2}, 4, v{X+2}")
    A(f"    v_mul_u32_u24 v{X+1}, {TRS_}, v{X+1}")
    A(f"    v_add_u32 v{X+1}, v{X+1}, v{X+2}")
else:
    A(f"    s_lshl_b32 s3, s2, 13")
    A(f"    s_add_u32 s3, s3, {TBL_OFF}")
    A(f"    v_lshlrev_b32 v{X+1}, 4, v0")
A(f"    s_lshl_b32 s4, s{sW}, 10")
A(f"    s_add_u32 m0, s4, {L_TB}")
A(f"    s_mov_b32 s5, {WF_OFF}")
A(f"    s_mul_i32 s{sSTG}, s{sW}, {2*ST_SZ}")
A(f"    s_add_u32 s{sSTG}, s{sSTG}, {L_ST}")
A(f"    s_mul_i32 s6, s2, {BN}")
A(f"    s_mul_i32 s4, s{sW}, {FBN}")
A(f"    s_add_u32 s{sNODE}, s6, s4")
A("    s_waitcnt lgkmcnt(0)")
STAMP(2)
srd(S_WS, 80, 81, WS_USED)
A(f"    buffer_load_dwordx4 v{X+1}, s[{S_WS}:{S_WS+3}], s3 offen lds")
A(f"    s_lshl_b32 s4, s{sW}, 10")
A(f"    s_add_u32 s5, s5, s4")
for i in range(3):
    A(f"    s_add_u32 m0, s4, {L_WF + 8192*i}")
    A(f"    s_add_u32 s3, s5, {8192*i}")
    A(f"    buffer_load_dwordx4 v{xL16}, s[{S_WS}:{S_WS+3}], s3 offen lds")
srd(S_H, 64, 65, N * 128)
NPF = 0
if PF:
    per_wg = -(-PFN // PF)
    per_w = -(-per_wg // 8)
    NPF = -(-per_w // 64)
    A(f"    s_mul_i32 s3, s2, {(1 << 20) // PF + 1}")
    A(f"    s_lshr_b32 s3, s3, 20")
    A(f"    s_mul_i32 s3, s3, {PF}")
    A(f"    s_sub_u32 s3, s2, s3                  ; slice")
    A(f"    s_mul_i32 s3, s3, {per_wg}")
    A(f"    s_mul_i32 s4, s{sW}, {per_w}")
    A(f"    s_add_u32 s3, s3, s4")
    A(f"    v_add_u32 v{X+2}, s3, v{xLANE}")
    A(f"    v_lshlrev_b32 v{X+2}, 7, v{X+2}")
    A(f"    s_mov_b32 m0, {L_W0}")
    for i in range(NPF):
        A(f"    s_mov_b32 s3, {i * 64 * 128}")
        A(f"    buffer_load_dword v{X+2}, s[{S_H}:{S_H+3}], s3 offen lds")
srd(S_P4, 80, 81, N, stride=8)
srd(S_EA, 66, 67, E * 32)
srd(S_OUT, 78, 79, N * 128 + N * 6)
STAMP(2)
def own_loads(X=X):
    A(f"    v_add_u32 v{X}, s{sNODE}, v{xE32}")
    A(f"    v_lshl_add_u32 v{X+1}, v{X}, 7, v{xH16}")
    for s in range(4):
        A(f"    buffer_load_dwordx4 {vr(HB+4*s,4)}, v{X+1}, s[{S_H}:{S_H+3}], 0 offen offset:{32*s}")
    A(f"    buffer_load_dwordx2 {vr(PD,2)}, v{X}, s[{S_P4}:{S_P4+3}], s{sP4O} idxen")
NOWN = 4 + 1
STAMP(2)
A(f"    s_mul_i32 s4, s{sW}, {MS_W}")
A(f"    s_add_u32 s4, s4, {L_MS}")
A(f"    v_mul_u32_u24 v{X}, {MS_RS}, v{xE32}")
A(f"    v_add_u32 v{X}, s4, v{X}")
A(f"    v_lshl_add_u32 v{vMWL}, v{xHH}, 3, v{X}")
A(f"    v_add_u32 v{vSWL}, 64, v{X}")
A(f"    v_bfe_u32 v{X}, v{xLANE}, 2, 2")
A(f"    v_lshlrev_b32 v{X}, 2, v{X}")
A(f"    v_add_u32 v{X}, v{X}, v{xHH}")
A(f"    v_mul_u32_u24 v{X}, {2*MS_RS}, v{X}")
A(f"    v_bfe_u32 v{X+1}, v{xLANE}, 4, 1")
A(f"    v_lshl_add_u32 v{X}, v{X+1}, 5, v{X}")
A(f"    v_and_b32 v{X+1}, 3, v{xLANE}")
A(f"    v_lshl_add_u32 v{X}, v{X+1}, 3, v{X}")
A(f"    v_add_u32 v{vTRL}, s4, v{X}")
A(f"    v_bfe_u32 v{X}, v{xLANE}, 2, 2")
A(f"    v_lshlrev_b32 v{X}, 2, v{X}")
A(f"    v_add_u32 v{X}, v{X}, v{xHH}")
A(f"    v_mul_u32_u24 v{X}, {2*MS_RS}, v{X}")
A(f"    v_add_u32 v{X}, s4, v{X}")
A(f"    v_add_u32 v{X}, 128, v{X}")
A(f"    v_bfe_u32 v{X+1}, v{xLANE}, 4, 1")
A(f"    v_and_b32 v{X+2}, 3, v{xLANE}")
A(f"    v_cmp_eq_u32 vcc, v{X+1}, v{X+2}")
A(f"    v_mov_b32 v{vTRP}, {L_Z}")
A(f"    s_lshl_b32 s{sPAB}, s{sW}, 9")
A(f"    v_cndmask_b32 v{vTRP}, v{vTRP}, v{X}, vcc")
A(f"    s_add_u32 s{sPAB}, s{sPAB}, {L_PA}")
A(f"    v_add_u32 v{vIDB}, {L_ID}, v{xH16}")
A(f"    v_mov_b32 v{vONE}, 0x3f80")
A(f"    v_mov_b32 v{vZERO}, 0")
A(f"    v_mul_u32_u24 v{vMASK}, 0xffff, v{xHH}")
A(f"    v_lshlrev_b32 v{vMASK}, 16, v{vMASK}")
A(f"    v_lshrrev_b32 v{X}, 3, v{xLANE}")
A(f"    v_and_b32 v{X+1}, 7, v{xLANE}")
A(f"    v_xor_b32 v{X+1}, v{X+1}, v{X}")
A(f"    v_lshlrev_b32 v{vSWZ[0]}, 4, v{X+1}")
A(f"    v_xor_b32 v{vSWZ[1]}, 16, v{vSWZ[0]}")
A(f"    v_and_b32 v{vEAO}, 1, v{xLANE}")
A(f"    v_lshlrev_b32 v{vEAO}, 4, v{vEAO}")
A(f"    v_lshrrev_b32 v{X}, 3, v{xE32}          ; i")
A(f"    v_and_b32 v{X+1}, 7, v{xE32}            ; r")
A(f"    v_and_b32 v{X+2}, 1, v{X}")
A(f"    v_xor_b32 v{X+2}, v{X+2}, v{X+1}        ; x")
A(f"    v_xor_b32 v{X+2}, v{X+2}, v{xHH}        ; x ^ hh")
A(f"    v_lshlrev_b32 v{X+3}, 10, v{X}")
A(f"    v_lshl_add_u32 v{X+3}, v{X+1}, 7, v{X+3}")
A(f"    v_add_u32 v{X+3}, s{sSTG}, v{X+3}")
for s in range(4):
    A(f"    v_xor_b32 v{vHBA[s]}, {2*s}, v{X+2}")
    A(f"    v_lshl_add_u32 v{vHBA[s]}, v{vHBA[s]}, 4, v{X+3}")
A(f"    v_lshl_add_u32 v{vEAR}, v{xE32}, 5, v{xH16}")
A(f"    v_add_u32 v{vEAR}, s{sSTG}, v{vEAR}")
A(f"    v_add_u32 v{vEAR}, 4096, v{vEAR}")
for j in range(4):
    A(f"    v_mov_b32 v{X+8+j}, 0")
A(f"    ds_write_b128 v{xL16}, {vr(X+8,4)} offset:{L_Z}")
A("    v_cmp_gt_u32 vcc, 32, v0")
A("    s_and_saveexec_b64 s[48:49], vcc")
A(f"    v_mul_u32_u24 v{X}, {ID_RS}, v0")
for j in range(5):
    A(f"    ds_write_b128 v{X}, {vr(X+8,4)} offset:{L_ID + 16*j}")
A(f"    v_lshrrev_b32 v{X+1}, 4, v0")
A(f"    v_lshl_add_u32 v{X}, v{X+1}, 5, v{X}")
A(f"    v_bfe_u32 v{X+1}, v0, 2, 1")
A(f"    v_lshl_add_u32 v{X}, v{X+1}, 4, v{X}")
A(f"    v_bfe_u32 v{X+1}, v0, 3, 1")
A(f"    v_lshl_add_u32 v{X}, v{X+1}, 3, v{X}")
A(f"    v_and_b32 v{X+1}, 3, v0")
A(f"    v_lshl_add_u32 v{X}, v{X+1}, 1, v{X}")
A("    v_cmp_gt_u32 vcc, 31, v0")
A("    s_and_b64 exec, exec, vcc")
A(f"    ds_write_b16 v{X}, v{vONE} offset:{L_ID}")
A("    s_mov_b64 exec, s[48:49]")
OWNE = int(os.environ.get("OWNE", "0"))
if F16:
    A(f"    v_mov_b32 v{vONE}, 0x3c00")
if OWNE == 1:
    own_loads()
T_ = X + 4
A(f"    s_lshl_b32 s3, s{sW}, 2")
A(f"    s_add_u32 s3, s3, {L_TB}")
A(f"    v_lshl_add_u32 v{X}, v{xLANE}, 5, s3")
A(f"    s_lshl_b32 s{sLB}, s{sW}, 11")
A(f"    s_mov_b32 s{sBASE}, 0")
A("    s_mov_b32 s96, 0")
sFAST = 77
F_, L_, DF, BS = SEG, SEG + 4, SEG + 8, X + 36
A(f"    v_lshrrev_b32 v{X+3}, 4, v{xLANE}")
A(f"    s_lshl_b32 s3, s{sW}, 8")
A(f"    s_add_u32 s3, s3, {L_TB}")
A(f"    v_lshl_add_u32 v{X+1}, v{X+3}, 11, s3")
A(f"    v_mul_u32_u24 v{X+2}, {C*8}, v{X+3}")
A(f"    v_and_b32 v{X+3}, 15, v{xLANE}")
A(f"    v_lshl_add_u32 v{X+2}, v{X+3}, 4, v{X+2}")
A(f"    s_mul_i32 s3, s{sW}, {32*C*8}")
A(f"    v_add_u32 v{X+2}, s3, v{X+2}")
A(f"    v_lshlrev_b32 v{X+3}, 5, v{xLANE}")
A(f"    v_add_u32 v{X+3}, {L_TB}, v{X+3}")
A(f"    s_lshl_b32 s4, s{sW}, 13")
A(f"    s_add_u32 s4, s4, {L_RAW}")
STAMP(2)
A(f"    s_waitcnt vmcnt({NOWN if OWNE == 1 else 0}) lgkmcnt(0)")
STAMP(2)
A("    s_barrier")
STAMP(0)
RMASK = int(os.environ.get("RMASK", "1"))
if not RMASK:
    for i in range(8):
        A(f"    ds_read_b32 v{DF+i}, v{X+1} offset:{32*i}")
    for j in range(4):
        A(f"    ds_read_b32 v{T_+j}, v{X} offset:{2048*j}")
    for i in range(8):
        A(f"    s_add_u32 m0, s4, {1024*i}")
        A(f"    s_mov_b32 s3, {4*C*8*i}")
        A(f"    s_waitcnt lgkmcnt({11-i})")
        A(f"    v_and_b32 v{DF+i}, 0xfffe, v{DF+i}")
        A(f"    v_lshl_add_u32 v{DF+i}, v{DF+i}, 3, v{X+2}")
        A(f"    buffer_load_dwordx4 v{DF+i}, s[{S_WS}:{S_WS+3}], s3 offen lds")
else:
    for i in range(8):
        A(f"    ds_read2_b32 v[{DF+2*i}:{DF+2*i+1}], v{X+1} offset0:{8*i} offset1:{8*i+7}")
    for j in range(4):
        A(f"    ds_read_b32 v{T_+j}, v{X} offset:{2048*j}")
    A(f"    v_and_b32 v{BS}, 15, v{xLANE}")
    A(f"    v_lshlrev_b32 v{BS}, 1, v{BS}              ; 2p")
    A(f"    v_mov_b32 v{BS+1}, -16")
    for i in range(8):
        f, l = DF + 2 * i, DF + 2 * i + 1
        A(f"    s_add_u32 m0, s4, {1024*i}")
        A(f"    s_mov_b32 s3, {4*C*8*i}")
        A(f"    s_waitcnt lgkmcnt({11-i})")
        A(f"    v_and_b32 v{f}, 0xfffe, v{f}")
        A(f"    v_add_u32_sdwa v{l}, v{l}, v{l} dst_sel:DWORD dst_unused:UNUSED_PAD src0_sel:WORD_0 src1_sel:WORD_1")
        A(f"    v_sub_u32 v{l}, v{l}, v{f}")
        RH = int(os.environ.get("RHACK", "0"))
        if RH == 1:
            A(f"    v_min_i32 v{l}, 4, v{l}")
        if RH == 2:
            A(f"    v_lshl_add_u32 v{f}, v{f}, 3, v{X+2}")
            A(f"    v_cmp_lt_i32 vcc, v{BS}, v{l}")
            A(f"    s_and_b64 exec, exec, vcc")
            A(f"    s_cbranch_execz LM_rsk{i}")
            A(f"    buffer_load_dwordx4 v{f}, s[{S_WS}:{S_WS+3}], s3 offen{RNT} lds")
            A(f"LM_rsk{i}:")
            A(f"    s_mov_b64 exec, -1")
            continue
        A(f"    v_cmp_lt_i32 vcc, v{BS}, v{l}")
        A(f"    v_lshl_add_u32 v{f}, v{f}, 3, v{X+2}")
        A(f"    s_nop 0")
        A(f"    v_cndmask_b32 v{f}, v{BS+1}, v{f}, vcc")
        A(f"    buffer_load_dwordx4 v{f}, s[{S_WS}:{S_WS+3}], s3 offen{RNT} lds")
for j in range(4):
    A(f"    ds_read2_b32 v[{F_+2*j}:{F_+2*j+1}], v{X+3} offset0:0 offset1:7")
    if j < 3:
        A(f"    v_add_u32 v{X+3}, 2048, v{X+3}")
if not OWNE:
    own_loads()
STAMP(2)
STAMP(3)
A(f"    v_cmp_gt_u32 vcc, 62, v{xLANE}")
A(f"    v_cmp_gt_u32 s[48:49], 63, v{xLANE}")
A(f"    v_lshlrev_b32 v{X}, 7, v{xLANE}")
A("    s_waitcnt lgkmcnt(0)")
for j in range(4):
    f, l = F_ + 2 * j, F_ + 2 * j + 1
    A(f"    v_and_b32 v{f}, 0xfffe, v{f}")
    A(f"    v_lshrrev_b32 v{X+1}, 16, v{l}")
    A(f"    v_and_b32 v{l}, 0xffff, v{l}")
    A(f"    v_add_u32 v{l}, v{l}, v{X+1}")
    A(f"    v_sub_u32 v{l}, v{l}, v{f}")
    A(f"    v_cndmask_b32 v{l}, 0, v{l}, {'s[48:49]' if j < 2 else 'vcc'}")
    A(f"    v_sub_u32 v{BS+j}, v{X}, v{f}")
    A(f"    v_add_u32 v{BS+j}, {32*j + L_RAW//8}, v{BS+j}")
A(f"    v_max_u32 v{F_+1}, v{F_+1}, v{F_+3}")
A(f"    v_max3_u32 v{F_+1}, v{F_+1}, v{F_+5}, v{F_+7}")
A(f"    v_cmp_lt_u32 vcc, {int(os.environ.get('WIN', '32'))}, v{F_+1}")
A(f"    s_mov_b32 s{sFAST}, {L_Z}")
A("    s_cmp_eq_u64 vcc, 0")
A("    s_cbranch_scc1 LM_round")
A("LM_slowbase:")
A(f"    s_mov_b32 s{sFAST}, -128")
A(f"    v_mul_u32_u24 v{BS}, {4*C}, v{xLANE}")
for j in range(1, 4):
    A(f"    v_add_u32 v{BS+j}, {j*C}, v{BS}")
A("LM_round:")
CN, SM, PP, DL, MK = X + 8, X + 12, X + 16, X + 20, X + 24
xMKA, xI = X + 32, X + 33
A(f"    v_lshl_add_u32 v{xMKA}, v{xLANE}, 5, s{sLB}")
for j in range(4):
    A(f"    v_mov_b32 v{MK+j}, 0")
A(f"    ds_write_b128 v{xMKA}, {vr(MK,4)} offset:{L_W1}")
A(f"    ds_write_b128 v{xMKA}, {vr(MK,4)} offset:{L_W1+16}")
A(f"    v_cmp_gt_u32 vcc, 62, v{xLANE}")
A(f"    v_cmp_gt_u32 s[48:49], 63, v{xLANE}")
A("    s_nop 0")
A(f"    v_cndmask_b32 v{T_+2}, 0, v{T_+2}, vcc")
A(f"    v_cndmask_b32 v{T_+3}, 0, v{T_+3}, vcc")
A(f"    v_cndmask_b32 v{T_}, 0, v{T_}, s[48:49]")
A(f"    v_cndmask_b32 v{T_+1}, 0, v{T_+1}, s[48:49]")
for k in range(4):
    A(f"    v_lshrrev_b32 v{CN+k}, 16, v{T_+k}")
for k in range(4):
    A(f"    v_and_b32 v{T_+k}, 0xffff, v{T_+k}")
A(f"    v_add_u32 v{SM}, v{CN}, v{CN+1}")
A(f"    v_add_u32 v{SM+1}, v{SM}, v{CN+2}")
A(f"    v_add_u32 v{SM+2}, v{SM+1}, v{CN+3}")
A(f"    v_mov_b32 v{SM+3}, v{SM+2}")
wave_scan(SM + 3)
A(f"    v_readlane_b32 s{sT}, v{SM+3}, 63")
A(f"    v_sub_u32 v{PP}, v{SM+3}, v{SM+2}")
A(f"    v_add_u32 v{PP+1}, v{PP}, v{CN}")
A(f"    v_add_u32 v{PP+2}, v{PP}, v{SM}")
A(f"    v_add_u32 v{PP+3}, v{PP}, v{SM+1}")
for k in range(4):
    A(f"    v_add_u32 v{DL+k}, v{BS+k}, v{T_+k}")
    A(f"    v_sub_u32 v{DL+k}, v{DL+k}, v{PP+k}")
A(f"    s_add_u32 s3, s{sLB}, {L_W1}")
A(f"    s_add_u32 s4, s{sLB}, {L_W0}")
A(f"    v_mov_b32 v{SM+1}, s4")
for k in range(4):
    A(f"    v_subrev_u32 v{PP+k}, s{sBASE}, v{PP+k}     ; q")
    A(f"    v_add_u32 v{CN+k}, v{CN+k}, v{PP+k}         ; e")
    A(f"    v_max_i32 v{PP+k}, 0, v{PP+k}")
    A(f"    v_min_i32 v{CN+k}, {CAP}, v{CN+k}")
    A(f"    v_cmp_lt_i32 vcc, v{PP+k}, v{CN+k}")
    A(f"    v_lshl_add_u32 v{PP+k}, v{PP+k}, 2, s3")
    A("    s_nop 0")
    A(f"    v_cndmask_b32 v{PP+k}, v{SM+1}, v{PP+k}, vcc")
    A(f"    ds_write_b32 v{PP+k}, v{DL+k}")
A(f"    ds_read_b128 {vr(MK,4)}, v{xMKA} offset:{L_W1}")
A(f"    ds_read_b128 {vr(MK+4,4)}, v{xMKA} offset:{L_W1+16}")
xEM, xNEG = X + 34, X + 35
A(f"    v_lshl_add_u32 v{xI}, v{xLANE}, 3, s{sBASE}")
A(f"    v_mov_b32 v{xNEG}, s{sFAST}")
A(f"    v_mov_b32 v{xEM}, 0")
A("    s_waitcnt lgkmcnt(0)")
for k in range(1, 8):
    A(f"    v_max_u32 v{MK+k}, v{MK+k}, v{MK+k-1}")
A("    s_nop 1")
A(f"    v_mov_b32_dpp v{xEM}, v{MK+7} wave_shr:1 row_mask:0xf bank_mask:0xf")
for sh in (1, 2, 4, 8):
    A("    s_nop 1")
    A(f"    v_max_u32_dpp v{xEM}, v{xEM}, v{xEM} row_shr:{sh} row_mask:0xf bank_mask:0xf bound_ctrl:0")
A("    s_nop 1")
A(f"    v_max_u32_dpp v{xEM}, v{xEM}, v{xEM} row_bcast:15 row_mask:0xa bank_mask:0xf")
A("    s_nop 1")
A(f"    v_max_u32_dpp v{xEM}, v{xEM}, v{xEM} row_bcast:31 row_mask:0xc bank_mask:0xf")
RR, W0C, W1C = X, X + 16, X + 24
NS = 8
for k in range(NS):
    A(f"    s_sub_u32 s3, s{sT}, {k}")
    A(f"    v_max_u32 v{MK+k}, v{MK+k}, v{xEM}")
    A(f"    v_cmp_gt_i32 vcc, s3, v{xI}")
    A(f"    v_add_u32 v{MK+k}, v{MK+k}, v{xI}")
    A(f"    v_lshlrev_b32 v{MK+k}, 3, v{MK+k}")
    A(f"    v_cndmask_b32 v{MK+k}, v{xNEG}, v{MK+k}, vcc")
A(f"    s_cmp_ge_i32 s{sFAST}, 0")
A("    s_cbranch_scc1 LM_fast1")
for k in range(NS):
    A(f"    buffer_load_dwordx2 {vr(RR+2*k,2)}, v{MK+k}, s[{S_WS}:{S_WS+3}], 0 offen offset:{8*k}")
A("LM_fast1:")
STAMP(3)
A(f"    s_sub_u32 s{sCNT}, s{sT}, s{sBASE}")
A(f"    s_min_u32 s{sCNT}, s{sCNT}, {CAP}")
A(f"    s_add_u32 s3, s{sCNT}, 31")
A(f"    s_lshr_b32 s{sNT}, s3, 5               ; ntiles")
RG = W0C
A(f"    v_and_b32 v{RG}, 7, v{xE32}")
A(f"    v_lshrrev_b32 v{RG+1}, 3, v{xE32}")
A(f"    v_lshl_add_u32 v{RG}, v{RG}, 2, v{RG+1}     ; p(e)")
A(f"    v_lshl_add_u32 v{vL0E}, v{RG}, 2, s{sLB}")
A(f"    v_lshrrev_b32 v{RG}, 3, v{xLANE}")
A(f"    v_lshl_add_u32 v{vL0D}, v{RG}, 4, s{sLB}")
A(f"    v_bfe_u32 v{RG}, v{xLANE}, 1, 3            ; (l/2)%8")
A(f"    v_lshrrev_b32 v{RG+1}, 4, v{xLANE}         ; (l/2)/8")
A(f"    v_lshl_add_u32 v{RG}, v{RG}, 2, v{RG+1}")
A(f"    v_lshl_add_u32 v{vL1P}, v{RG}, 2, s{sLB}")
A(f"    s_lshl_b32 s3, s{sW}, 7")
A(f"    s_add_u32 s3, s3, {L_PS}")
A(f"    s_sub_u32 s3, s3, s{sLB}")
A(f"    v_add_u32 v{RG}, s3, v{vL0E}")
A(f"    v_add_u32 v{RG+1}, s{sNODE}, v{xE32}")
A(f"    v_lshlrev_b32 v{RG+1}, 7, v{RG+1}")
A(f"    ds_write_b32 v{RG}, v{RG+1}")
A(f"    s_lshl_b32 s4, s{sNT}, 7")
A(f"    s_sub_u32 s3, s3, s4")
A(f"    s_sub_u32 s{sDEL}, s3, {L_W0}")
A(f"    s_add_u32 s3, s{sBASE}, {CAP}")
A(f"    s_cmp_ge_u32 s3, s{sT}")
A(f"    s_cselect_b32 s{sTAIL}, {1 if FT else 0}, 0")
A(f"    s_cmp_ge_u32 s{sNT}, 2")
A(f"    s_cselect_b32 s{sTAIL}, s{sTAIL}, 0")
A(f"    s_cmp_lg_u32 s{sBASE}, 0")
A("    s_cbranch_scc1 LM_noat")
A(f"    v_add_u32 v{RG}, {L_WF}, v{xL16}")
for f in range(8):
    A(f"    ds_read_b128 {vr(ACC+4*f,4)}, v{RG} offset:{1024*f}")
for f in range(10):
    A(f"    ds_read_b128 {vr(WSF+4*f,4)}, v{RG} offset:{8192+1024*f}")
for f in range(4):
    A(f"    ds_read_b128 {vr(WX+4*f,4)}, v{RG} offset:{8192+1024*(10+f)}")
A(f"    ds_read_b64 {vr(EA,2)}, v{RG} offset:{8192+1024*14}")
STAMP(3)
if PROF == 3:
    A("    s_waitcnt lgkmcnt(0)")
    STAMP(3)
A(f"    s_waitcnt vmcnt({0 if OWNE else NOWN}) lgkmcnt(0)")
STAMP(3)
A("    s_barrier")
STAMP()
if OWNE == 2:
    own_loads(SEG + 24)
A("LM_noat:")
A(f"    s_cmp_ge_i32 s{sFAST}, 0")
A("    s_cbranch_scc1 LM_fast2")
A("    s_waitcnt vmcnt(0)")
A("    s_branch LM_recs")
A("LM_fast2:")
for k in range(NS):
    A(f"    ds_read_b64 {vr(RR+2*k,2)}, v{MK+k} offset:{8*k}")
A("LM_recs:")
if not PH:
    A(f"    v_mov_b32 v{xNEG}, {PADNB}")
    for k in range(NS):
        A(f"    s_sub_u32 s3, s{sT}, {k}")
        A(f"    v_cmp_gt_i32 vcc, s3, v{xI}")
        A(f"    s_waitcnt lgkmcnt({NS-1-k})")
        A(f"    v_mov_b32 v{W1C+k}, v{RR+2*k+1}")
        A(f"    v_cndmask_b32 v{W0C+k}, v{xNEG}, v{RR+2*k}, vcc")
    A(f"    ds_write_b128 v{xMKA}, {vr(W0C,4)} offset:{L_W0}")
    A(f"    ds_write_b128 v{xMKA}, {vr(W0C+4,4)} offset:{L_W0+16}")
    A(f"    ds_write_b128 v{xMKA}, {vr(W1C,4)} offset:{L_W1}")
    A(f"    ds_write_b128 v{xMKA}, {vr(W1C+4,4)} offset:{L_W1+16}")
else:
    FS = (64, 66, 68, 70, 72, 74, 78, 80)
    RK = SO
    SC, BA, BB, TB = BS, BS + 1, BS + 2, BS + 3
    TA = W1C
    A(f"    v_mov_b32 v{xNEG}, 0x{0x007fff80 | PADNB:x}")
    A(f"    s_mov_b32 s4, {TH << 7}")
    A(f"    v_mov_b32 v{RK}, 0")
    for k in range(NS):
        A(f"    s_sub_u32 s3, s{sT}, {k}")
        A(f"    v_cmp_gt_i32 vcc, s3, v{xI}")
        A(f"    s_waitcnt lgkmcnt({NS-1-k})")
        A(f"    s_nop 0")
        A(f"    v_cndmask_b32 v{W0C+k}, v{xNEG}, v{RR+2*k}, vcc")
        A(f"    v_cmp_le_u32 s[{FS[k]}:{FS[k]+1}], s4, v{W0C+k}")
        A(f"    s_nop 1")
        A(f"    v_addc_co_u32 v{RK+k+1 if k < 7 else BA}, vcc, v{RK+k}, 0, s[{FS[k]}:{FS[k]+1}]")
    A(f"    v_mov_b32 v{SC}, v{BA}")
    wave_scan(SC)
    A(f"    v_readlane_b32 s3, v{SC}, 63")
    A(f"    v_sub_u32 v{SC}, v{SC}, v{BA}        ; P")
    A(f"    s_sub_u32 s3, {CAP}, s3               ; N0")
    A(f"    s_lshl_b32 s3, s3, 2")
    A(f"    s_add_u32 s5, s{sLB}, {L_W0}")
    A(f"    s_add_u32 s3, s3, s5")
    A(f"    v_lshl_add_u32 v{BA}, v{SC}, 2, s3")
    A(f"    v_lshlrev_b32 v{BB}, 3, v{xLANE}")
    A(f"    v_sub_u32 v{BB}, v{BB}, v{SC}")
    A(f"    v_lshl_add_u32 v{BB}, v{BB}, 2, s5")
    assert L_W1 - L_W0 == 64 * 256
    for k in range(NS):
        A(f"    v_lshl_add_u32 v{TA+k}, v{RK+k}, 2, v{BA}")
        A(f"    v_sub_u32 v{TB}, {k}, v{RK+k}")
        A(f"    v_lshl_add_u32 v{TB}, v{TB}, 2, v{BB}")
        A(f"    v_cndmask_b32 v{TA+k}, v{TB}, v{TA+k}, s[{FS[k]}:{FS[k]+1}]")
        A(f"    ds_write2st64_b32 v{TA+k}, v{W0C+k}, v{RR+2*k+1} offset0:0 offset1:64")
A(f"    s_cmp_lg_u32 s{sBASE}, 0")
A("    s_cbranch_scc1 LM_nob3")
A("    s_barrier")
A("LM_nob3:")
STAMP()
def at_block():
    A(f"    v_mov_b32 v{RG+2}, 0")
    A(f"    v_mov_b32 v{RG+3}, 0")
    A(f"    v_lshl_add_u32 v{RG}, v{xHH}, 5, v{vSWL}")
    for j in range(4):
        A(f"    ds_write_b64 v{RG}, {vr(RG+2,2)} offset:{8*j}")
    for t in range(2):
        for s_ in range(4):
            c = "0" if s_ == 0 else vr(SEG+16*t,16)
            A(f"    v_mfma_f32_32x32x16_bf16 {vr(SEG+16*t,16)}, {vr(HB+4*s_,4)}, {vr(ACC+4*(2*s_+t),4)}, {c}")
    A(f"    v_lshl_add_u32 v{RG}, v{xE32}, 4, s{sPAB}")
    A(f"    v_mov_b32 v{PD+2}, v{PD+1}")
    A(f"    v_and_b32 v{PD+1}, s{sHI}, v{PD}")
    A(f"    v_lshlrev_b32 v{PD}, 16, v{PD}")
    A(f"    ds_write_b96 v{RG}, {vr(PD,3)}")
    for j in range(4):
        A(f"    v_mov_b32 v{PAC+j}, 0")
    A(f"    s_mov_b32 s3, 0x{LOG2E:08x}")
    A("    s_nop 7")
    for r in range(32):
        A(f"    v_mul_f32 v{SEG+r}, s3, v{SEG+r}")
    for t in range(2):
        for u in range(2):
            for j in range(4):
                A(f"    v_cvt_pk_bf16_f32 v{atf(u,t)+j}, v{SEG+16*t+8*u+2*j}, v{SEG+16*t+8*u+2*j+1}")
        A(f"    v_bfi_b32 v{atf(1,t)+3}, v{vMASK}, v{EA+t}, v{atf(1,t)+3}")
    for r in range(32):
        A(f"    v_mov_b32 v{SEG+r}, 0")


def V(t): return ('v', t, None)
def M(t): return ('m', t, None)
def DS(t, tag=None): return ('ds', t, tag)
def VM(t): return ('vm', t, None)
def S(t): return ('s', t, None)
def WL(tag): return ('wl', None, tag)
def WV(n): return ('s', f"s_waitcnt vmcnt({n})", None)

def mf(d, a, b, c0=False, ty="bf16"):
    return M(f"v_mfma_f32_32x32x16_{ty} {vr(d,16)}, {vr(a,4)}, {vr(b,4)}, {'0' if c0 else vr(d,16)}")
def chain(t):
    d = ACC + 16 * t
    l = [mf(d, wsf(s, t), HB + 4 * s, s == 0) for s in range(4)]
    l.append(mf(d, WAE + 4 * t, EA))
    l += [mf(d, atf(u, t), SO + 4 * u) for u in range(2)]
    return l
def seg(t, s):
    return mf(SEG + 16 * t, TRM + 4 * s, TRS + 4 * s, ty=MT)
def csm(t, u):
    c = '0' if (t == 0 and u == 0) else vr(CS, 4)
    return M(f"v_mfma_f32_16x16x32_{MT} {vr(CS,4)}, {vr(WX+8*t+4*u,4)}, {vr(PK+8*t+4*u,4)}, {c}")
def list_reads(k):
    return [DS(f"ds_read_b128 {vr(W0D,4)}, v{vL0D} offset:{L_W0 + 128*k}"),
            DS(f"ds_read_b32 v{vW1P}, v{vL1P} offset:{L_W1 + 128*k}"),
            DS(f"ds_read_b32 v{vW0E3}, v{vL0E} offset:{L_W0 + 128*k}", 'L3')]
def list_reads_loop(par):
    k = par + 3
    return [S(f"s_cmp_eq_u32 s{sNT}, 2"), S(f"s_cselect_b32 s{sINC}, s{sDEL}, 128"),
            V(f"v_add_u32 v{vL0D}, s{sINC}, v{vL0D}"),
            DS(f"ds_read_b128 {vr(W0D,4)}, v{vL0D} offset:{L_W0 + 256}"),
            DS(f"ds_read_b32 v{vW1P}, v{vL1P} offset:{L_W1 + 128*k}"),
            DS(f"ds_read_b32 v{vW0E3}, v{vL0E} offset:{L_W0 + 128*k}", 'L3')]
def srd_ops():
    return [S(f"s_cmp_lt_u32 s{sNT}, 4"), S(f"s_cselect_b32 s{sTMP}, 0, {N*128}"),
            S(f"s_cselect_b32 s{S_EA+2}, 0, s{S_EA+2}"), S(f"s_cselect_b32 s{S_P4+2}, 0, s{S_P4+2}"),
            S(f"s_cmp_eq_u32 s{sNT}, 2"), S(f"s_cselect_b32 s{S_H+2}, {N*128}, s{sTMP}")]
def dma_addr():
    l = [V(f"v_and_or_b32 v{W0D+i}, v{W0D+i}, s{sAM}, v{vSWZ[i&1]}") for i in range(4)]
    if os.environ.get("HOTEA"):
        l.append(V(f"v_and_or_b32 v{vW1P}, v{vW1P}, s{sHOT}, v{vEAO}"))
    else:
        l.append(V(f"v_add_u32 v{vW1P}, v{vW1P}, v{vEAO}"))
    l.append(V(f"v_bfe_u32 v{vW0E3}, v{vW0E3}, 7, 16"))
    return l
def dma_pairs(q):
    l = []
    for i in range(4):
        l.append((S(f"s_add_u32 m0, s{sSTG}, {q*ST_SZ + i*1024}"),
                  VM(f"buffer_load_dwordx4 v{W0D+i}, s[{S_H}:{S_H+3}], 0 offen lds")))
    l.append((S(f"s_add_u32 m0, s{sSTG}, {q*ST_SZ + 4096}"),
              VM(f"buffer_load_dwordx4 v{vW1P}, s[{S_EA}:{S_EA+3}], 0 offen{EANT} lds")))
    pos = [S(f"s_mov_b64 exec, s[{sHIGH}:{sHIGH+1}]"),
           VM(f"buffer_load_dwordx2 {vr(PS[q],2)}, v{vW0E3}, s[{S_P4}:{S_P4+3}], s{sP4O} idxen"),
           S("s_mov_b64 exec, -1")]
    return l, pos
def stage_reads(q):
    l = [DS(f"ds_read_b128 {vr(HB+4*s,4)}, v{vHBA[s]} offset:{q*ST_SZ}") for s in range(4)]
    l.append(DS(f"ds_read_b128 {vr(EA,4)}, v{vEAR} offset:{q*ST_SZ}"))
    return l
def nb_ops(q):
    return [V(f"v_and_b32 v{vNB}, 31, v{vW0E}"),
            V(f"v_mad_u32_u24 v{vW0E}, v{vNB}, s{sIDRS}, v{vIDB}"),
            V(f"v_lshl_add_u32 v{PD}, v{vNB}, 4, s{sPAB}")]
def so_reads(q):
    return [DS(f"ds_read_b128 {vr(SO,4)}, v{vW0E}"),
            DS(f"ds_read_b128 {vr(SO+4,4)}, v{vW0E} offset:32"),
            DS(f"ds_read_b96 {vr(PD,3)}, v{PD}", 'PD')]
def pre_ops(q):
    d = DX[q]; p = PS[q]
    return [V(f"v_sub_f32 v{PD}, v{PD}, v{p+2}"),
            V(f"v_sub_f32 v{PD+1}, v{PD+1}, v{p}"),
            V(f"v_sub_f32 v{PD+2}, v{PD+2}, v{p+1}"),
            V(f"v_cvt_pk_bf16_f32 v{PD}, v{PD}, v{PD+1}"),
            V(f"v_cvt_pk_bf16_f32 v{PD+2}, v{PD+2}, v{PD+2}"),
            V(f"v_lshlrev_b32 v{d}, 16, v{PD}"),
            V(f"v_and_b32 v{d+1}, s{sHI}, v{PD}"),
            V(f"v_lshlrev_b32 v{d+2}, 16, v{PD+2}"),
            V(f"v_mul_f32 v{PD+1}, v{d}, v{d}"),
            V(f"v_fma_f32 v{PD+1}, v{d+1}, v{d+1}, v{PD+1}"),
            V(f"v_fma_f32 v{PD+1}, v{d+2}, v{d+2}, v{PD+1}"),
            V(f"v_cvt_pk_bf16_f32 v{PD+1}, v{PD+1}, v{PD+1}"),
            V(f"v_bfi_b32 v{SO+7}, v{vMASK}, v{PD+1}, v{SO+7}")]
def unp_ops(q):
    p = PS[q]
    return [V(f"v_lshlrev_b32 v{p+2}, 16, v{p}"),
            V(f"v_and_b32 v{p}, s{sHI}, v{p}")]
def post_ops(q):
    d = DX[q]
    va = [V(f"v_mul_f32 v{CS}, s{sLN2}, v{CS}"),
          V(f"v_cvt_pk_bf16_f32 v{CS}, v{CS}, v{CS}"),
          V(f"v_and_b32 v{CS}, s{sHI}, v{CS}"),
          V(f"v_mul_f32 v{d}, v{d}, v{CS}"),
          V(f"v_mul_f32 v{d+1}, v{d+1}, v{CS}"),
          V(f"v_mul_f32 v{d+2}, v{d+2}, v{CS}"),
          V(f"{CVT} v{CS+2}, v{d}, v{d+1}"),
          V(f"{CVT} v{CS+3}, v{d+2}, v{d+2}")]
    da = [S(f"s_mov_b64 exec, s[{sHIGH}:{sHIGH+1}]"),
          DS(f"ds_write_b64 v{vSWL}, {vr(CS+2,2)} offset:64"),
          S("s_mov_b64 exec, -1")]
    da += [DS(f"ds_read_b64_tr_b16 {vr(TRM+4*s+2*p,2)}, v{vTRP} offset:{(4*s+p)*MS_RS}", 'TRP' if (s, p) == (1, 1) else None)
           for s in range(2) for p in range(2)]
    pm = [M(f"v_mfma_f32_16x16x32_{MT} {vr(PAC,4)}, {vr(TRM+4*s,4)}, {vr(TRS+4*s,4)}, {vr(PAC,4)}") for s in range(2)]
    return va, da, pm
def m_write(t, qs):
    return [DS(f"ds_write_b64 v{vMWL}, {vr(PK+8*t+2*q,2)} offset:{16*q}") for q in qs]
def trm_reads(tag):
    l = [DS(f"ds_read_b64_tr_b16 {vr(TRM+4*s+2*p,2)}, v{vTRL} offset:{(4*s+p)*MS_RS}") for s in range(2) for p in range(2)]
    l[-1] = (l[-1][0], l[-1][1], tag)
    return l
def trs_reads():
    l = [DS(f"ds_read_b64_tr_b16 {vr(TRS+4*s+2*p,2)}, v{vTRL} offset:{(4*s+p)*MS_RS+64}") for s in range(2) for p in range(2)]
    l[-1] = (l[-1][0], l[-1][1], 'TRS')
    return l
SA_OP = V(f"v_lshl_add_u32 v{vSA}, v{vNB}, 1, v{vSWL}")

def silu_stream(t):
    a = ACC + 16 * t
    l = []
    if F16:
        LO = "dst_sel:WORD_0 dst_unused:UNUSED_PRESERVE src0_sel:WORD_0"
        HI = "dst_sel:WORD_1 dst_unused:UNUSED_PRESERVE src0_sel:WORD_1"
        for g in range(2):
            js = range(4)
            pk = lambda j: PK + 8 * t + 4 * g + j
            tm = lambda j: TMP + 4 * g + j
            l += [V(f"v_cvt_pk_f16_f32 v{pk(j)}, v{a+8*g+2*j}, v{a+8*g+2*j+1}") for j in js]
            l += [V(f"v_exp_f16 v{tm(j)}, v{pk(j)}") for j in js]
            l += [V(f"v_exp_f16_sdwa v{tm(j)}, v{pk(j)} {HI}") for j in js]
            l += [V(f"v_pk_add_f16 v{tm(j)}, v{tm(j)}, s{sONE2}") for j in js]
            l += [V(f"v_rcp_f16_sdwa v{tm(j)}, v{tm(j)} {LO}") for j in js]
            l += [V(f"v_rcp_f16_sdwa v{tm(j)}, v{tm(j)} {HI}") for j in js]
            l += [V(f"v_pk_mul_f16 v{pk(j)}, v{pk(j)}, v{tm(j)}") for j in js]
        return l
    for g in range(2):
        rs = range(8 * g, 8 * g + 8)
        l += [V(f"v_exp_f32 v{TMP+r%8}, v{a+r}") for r in rs]
        l += [V(f"v_add_f32 v{TMP+r%8}, 1.0, v{TMP+r%8}") for r in rs]
        l += [V(f"v_rcp_f32 v{TMP+r%8}, v{TMP+r%8}") for r in rs]
        l += [V(f"v_mul_f32 v{a+r}, v{a+r}, v{TMP+r%8}") for r in rs]
        l += [V(f"v_cvt_pk_bf16_f32 v{PK+8*t+4*g+j}, v{a+8*g+2*j}, v{a+8*g+2*j+1}") for j in range(4)]
    return l

def remap(p):
    g, r = divmod(p, 36)
    if r < 8: n = r
    elif r < 16: n = 8 + (r - 8) // 2
    elif r < 24: n = 12 + (r - 16)
    elif r < 32: n = 20 + (r - 24) // 2
    else: n = 24 + (r - 32)
    return 28 * g + n
def merge(main, side):
    res = []
    if F16:
        side = [((p * 28 + 35) // 36, o) for p, o in side]
    side = sorted(enumerate(side), key=lambda x: (x[1][0], x[0]))
    k = 0
    for i in range(len(main) + 1):
        while k < len(side) and side[k][1][0] <= i:
            ops = side[k][1][1]
            res += ops if isinstance(ops, list) else [ops]
            k += 1
        if i < len(main):
            res.append(main[i])
    assert k == len(side)
    return res

VMW = int(os.environ.get("VMW", "0"))
def wv6():
    if not VMW:
        return [WV(6)]
    l = [WV(6)] if VMW == 2 else []
    l += [S("s_memtime s[64:65]"), S("s_waitcnt lgkmcnt(0)"), WV(6), S("s_memtime s[66:67]"), S("s_waitcnt lgkmcnt(0)"),
          S("s_sub_u32 s64, s66, s64"), S("s_add_u32 s96, s96, s64")]
    return l
SPREAD = int(os.environ.get("SPREAD", "0"))
SPOS = [int(x) for x in os.environ.get("SPOS", "12,23,34,45,56,67").split(",")]
def phaseA(par):
    q = 1 - par
    ch = chain(1)
    pv, pd, pm = post_ops(q)
    nb = nb_ops(q)
    sd = [(0, DS(f"ds_read_b32 v{vW0E}, v{vL0E} offset:{L_W0 + 128*(par+1)}", 'W0E')),
          (0, ch[0]), (5, [WL('TRM1'), seg(1, 0)]), (8, ch[1]), (12, seg(1, 1)), (16, ch[2]),
          (20, csm(1, 0)), (24, ch[3]), (27, csm(1, 1)), (30, ch[4]),
          (36, m_write(0, (0, 1))), (36, ch[5]),
          (38, wv6() + stage_reads(q)), (42, ch[6]),
          (39, pv[0]), (40, pv[1]), (41, pv[2]), (43, pv[3]), (44, pv[4]), (45, pv[5]), (46, pv[6]), (47, [pv[7]] + pd),
          (48, [WL('W0E'), nb[0]]), (49, nb[1]), (50, nb[2]), (51, so_reads(q)),
          (53, unp_ops(q)[0]), (55, unp_ops(q)[1]),
          (64, [WL('TRP'), pm[0]]), (67, pm[1]),
          (60, DS(f"ds_write_b16 v{vSA}, v{vONE}")),
          (72, m_write(0, (2, 3)) + trm_reads('TRM0') + trs_reads() + [DS(f"ds_write_b16 v{vSA}, v{vZERO}")])]
    if SPREAD:
        sd += [(57, list_reads_loop(par))]
    if BAL:
        sd += [(2, V(f"v_mov_b32 v{W0D}, s{sNT}") if BAL == 1 else [S(f"s_sub_u32 s{sPUB}, s{sNT}, s{sBIAS}"), V(f"v_mov_b32 v{W0D}, s{sPUB}")]), (3, V(f"v_mov_b32 v{W0D+1}, s{sPGW}")),
               (4, V(f"v_mov_b32 v{W0D+2}, s{sPGR}")),
               (6, [DS(f"ds_write_b32 v{W0D+1}, v{W0D}"), DS(f"ds_read_b32 v{W0D+3}, v{W0D+2}", 'PG')]),
               (33, [WL('PG'), V(f"v_readfirstlane_b32 s{sPGP}, v{W0D+3}")]),
               (35, [S("s_setprio 0"), S(f"s_cmp_gt_u32 s{sNT}, s{sPGP}"), S(f"s_cbranch_scc0 LM_pg{par}"),
                     S("s_setprio 1"), S(f"LM_pg{par}:")])]
    return merge(silu_stream(0), sd)

def phaseB(par):
    q = 1 - par
    ch = chain(0)
    pr = pre_ops(q)
    da = dma_addr()
    dp, dpos = dma_pairs(q)
    sd = [(0, list_reads_loop(par)),
          (31, srd_ops()),
          (2, [WL('PD'), pr[0]]), (3, pr[1]), (4, pr[2]), (6, pr[3]), (7, pr[4]), (9, pr[5]), (10, pr[6]),
          (11, pr[7]), (13, pr[8]), (14, pr[9]), (15, pr[10]), (17, pr[11]), (18, pr[12]),
          (4, ch[0]), (8, [WL('TRS'), seg(0, 0)]), (12, ch[1]), (16, seg(0, 1)), (20, ch[2]),
          (23, csm(0, 0)), (27, ch[3]), (30, csm(0, 1)), (33, ch[4]),
          (36, m_write(1, (0, 1))), (19, SA_OP), (39, ch[5]), (46, ch[6]),
          (21, [WL('L3'), da[0]]), (22, da[1]), (24, da[2]), (25, da[3]), (26, da[4]), (28, da[5]),
          (39, dp[0][0]), (41, dp[0][1]), (43, dp[1][0]), (44, dp[1][1]), (47, dp[2][0]), (48, dp[2][1]),
          (49, dp[3][0]), (51, dp[3][1]), (52, dp[4][0]), (54, dp[4][1]), (56, dpos),
          (72, m_write(1, (2, 3)) + trm_reads('TRM1'))]
    if SPREAD:
        sd = [(0, srd_ops()),
          (2, [WL('L3'), pr[0]]), (3, pr[1]), (4, pr[2]), (6, pr[3]), (7, pr[4]), (13, pr[5]), (14, pr[6]),
          (15, pr[7]), (17, pr[8]), (18, pr[9]), (21, pr[10]), (22, pr[11]), (24, pr[12]),
          (4, ch[0]), (8, [WL('TRS'), seg(0, 0)]), (12, ch[1]), (16, seg(0, 1)), (20, ch[2]),
          (23, csm(0, 0)), (27, ch[3]), (30, csm(0, 1)), (33, ch[4]),
          (36, m_write(1, (0, 1))), (25, SA_OP), (39, ch[5]), (46, ch[6]),
          (5, da[0]), (9, da[1]), (10, da[2]), (11, da[3]), (26, da[4]), (28, da[5]),
          (72, m_write(1, (2, 3)) + trm_reads('TRM1'))]
        for i in range(5):
            sd += [(SPOS[i] - 2, dp[i][0]), (SPOS[i], dp[i][1])]
        sd += [(SPOS[5], dpos)]
    if par == 1 and not MB:
        sd += [(60, V(f"v_add_u32 v{vL0E}, 256, v{vL0E}")),
               (64, V(f"v_add_u32 v{vL1P}, 256, v{vL1P}"))]
    return merge(silu_stream(1), sd)

def resolve(body):
    n = len(body)
    res = []
    for i, op in enumerate(body):
        if op[0] != 'wl':
            res.append(op[1]); continue
        cnt = 0
        for d in range(1, n + 1):
            o = body[(i - d) % n]
            if o[0] == 'ds':
                if o[2] == op[2]:
                    break
                cnt += 1
        else:
            raise Exception("tag not found " + op[2])
        res.append(f"s_waitcnt lgkmcnt({min(cnt, 15)})")
    return res

def resolve_lin(body, start):
    res = []
    for i in range(start, len(body)):
        op = body[i]
        if op[0] != 'wl':
            res.append(op[1]); continue
        cnt = 0
        for d in range(1, i + 1):
            o = body[i - d]
            if o[0] == 'ds':
                if o[2] == op[2]:
                    break
                cnt += 1
        else:
            raise Exception("tag not found " + op[2])
        res.append(f"s_waitcnt lgkmcnt({min(cnt, 15)})")
    return res
eE32, eHH, eH16, eL16, eNODE, eSTO, ePOFF, eT = PS0, PS0 + 1, PS0 + 2, W0D, W0D + 1, W0D + 2, W0D + 3, PS1
def whreg(f):
    return WSF + 4 * f if f < 14 else SO + 4 * (f - 14)
WHORD = (8, 9, 10, 11, 12, 13, 14, 15, 0, 1, 2, 3, 4, 5, 6, 7)
def wh_pre():
    return [V(f"v_and_b32 v{eL16}, 63, v0"), V(f"v_lshlrev_b32 v{eL16}, 4, v{eL16}")] + \
           [S(f"s_mov_b32 s{sWH+j}, {WF_OFF + 24*1024 + 4096*j}") for j in range(4)]
def wh_load(f):
    return VM(f"buffer_load_dwordx4 {vr(whreg(f),4)}, v{eL16}, s[{S_WS}:{S_WS+3}], s{sWH + f//4} offen offset:{(f%4)*1024}")
def tailB(par):
    sd = [(0, wh_pre() + [S(f"s_mov_b32 s{sTMP}, {par*ST_SZ}")]),
          (8, [WL('TRS'), seg(0, 0)]), (16, seg(0, 1)), (23, csm(0, 0)), (30, csm(0, 1)),
          (36, m_write(1, (0, 1))),
          (52, [WV(16)] + stage_reads(par)[:4]),
          (72, m_write(1, (2, 3)) + trm_reads('TRM1'))]
    for i, f in enumerate(WHORD):
        sd.append((2 + 2 * i + (0 if i < 3 else 2), wh_load(f)))
    return merge(silu_stream(1), sd)
def emit(ops):
    for o in ops:
        assert o[0] != 'wl'
        A("    " + o[1])
def emit_dma(q):
    dp, dpos = dma_pairs(q)
    for a, b in dp:
        emit([a, S("s_nop 0"), b])
    emit(dpos)

fill_start = len(out)
A(f"    s_cmp_lg_u32 s{sNT}, 0")
A("    s_cbranch_scc1 LM_g01")
A("    s_waitcnt vmcnt(0)")
A("    s_branch LM_nog")
A("LM_g01:")
for k in range(2):
    emit(list_reads(k))
    A("    s_waitcnt lgkmcnt(0)")
    emit(dma_addr())
    emit_dma(k)
A("LM_nog:")
A(f"    s_cmp_lg_u32 s{sBASE}, 0")
A("    s_cbranch_scc1 LM_noat2")
A("    s_waitcnt vmcnt(12)")
at_block()
A("LM_noat2:")
A(f"    s_cmp_eq_u32 s{sNT}, 0")
A("    s_cbranch_scc1 LM_tiles_done")
A(f"    ds_read_b32 v{vW0E}, v{vL0E} offset:{L_W0}")
emit(list_reads(2))
for r in list(range(TRM, TRM + 16)) + list(range(PK + 8, PK + 16)) + list(range(CS, CS + 4)) + list(range(DX[1], DX[1] + 3)):
    A(f"    v_mov_b32 v{r}, 0")
A("    s_waitcnt lgkmcnt(0)")
emit(nb_ops(0))
emit([SA_OP])
emit(dma_addr())
A("    s_waitcnt vmcnt(6)")
emit(stage_reads(0))
emit(so_reads(0))
emit(unp_ops(0))
A("    s_waitcnt lgkmcnt(0)")
emit(pre_ops(0))
emit_dma(0)
emit(chain(0))
A("    s_nop 15")
if MB:
    A(f"    s_mov_b32 s{sNT}, 400")
    STAMP()
HALF = None
body = []
marks = []
for par in range(2):
    body += phaseA(par)
    body.append(('br', 2 + par, None))
    body += phaseB(par)
    body.append(('br', par, None))
XF = os.environ.get("XF", "").split(",")
def keep(o):
    if o[0] in ('br', 'wl'): return True
    t = o[1]
    if 'nodma' in XF and o[0] == 'vm': return False
    if 'noea' in XF and o[0] == 'vm' and f"s[{S_EA}:" in t: return False
    if 'noh' in XF and o[0] == 'vm' and f"s[{S_H}:" in t: return False
    if 'nopos' in XF and o[0] == 'vm' and f"s[{S_P4}:" in t: return False
    if 'noadd' in XF and t.startswith('ds_add'): return False
    if 'nomw' in XF and t.startswith('ds_write'): return False
    if 'notrans' in XF and (t.startswith('v_exp') or t.startswith('v_rcp')): return False
    if 'novalu' in XF and o[0] == 'v': return False
    if 'nomfma' in XF and o[0] == 'm': return False
    if 'nods' in XF and o[0] == 'ds' and o[2] is None: return False
    return True
body = [o for o in body if keep(o)]
flat = [o for o in body if o[0] != 'br']
txt = resolve(flat)
A("LM_loop:")
k = 0
loop_lines = []
for o in body:
    if o[0] == 'br':
        l = [f"s_sub_u32 s{sNT}, s{sNT}, 1"]
        if o[1] >= 2:
            l = [f"s_cmp_eq_u32 s{sNT}, s{sTAIL}", f"s_cbranch_scc1 LM_tail{o[1]-2}"]
        elif o[1] == 0:
            l += [f"s_cmp_eq_u32 s{sNT}, 0", "s_cbranch_scc1 LM_drain0"]
        else:
            l += [f"s_cmp_lg_u32 s{sNT}, 0", "s_cbranch_scc1 LM_loop"]
        for x in l:
            A("    " + x); loop_lines.append(x)
    else:
        A("    " + txt[k]); loop_lines.append(txt[k]); k += 1
def drain(par):
    l = [S("s_waitcnt lgkmcnt(0)"), seg(1, 0), seg(1, 1), csm(1, 0), csm(1, 1), S("s_nop 9")]
    pv, pd, pm = post_ops(par)
    return l + pv + pd + [S("s_waitcnt lgkmcnt(0)")] + pm
tail_txt = {}
for par in range(2):
    pre = phaseA(1 - par) + phaseB(1 - par) + phaseA(par)
    pre = [o for o in pre if keep(o)]
    tl = [o for o in tailB(par) if keep(o)]
    tail_txt[par] = resolve_lin(pre + tl, len(pre)) + [o[1] for o in drain(par)]
emit(drain(1))
A("    s_branch LM_tiles_done")
for par in range(2):
    A(f"LM_tail{par}:")
    for x in tail_txt[par]:
        A("    " + x)
    A("    s_branch LM_epif")
A("LM_drain0:")
emit(drain(0))
A("LM_tiles_done:")
A(f"    s_mov_b32 s{S_H+2}, {N*128}")
A(f"    s_mov_b32 s{S_EA+2}, {E*32}")
A(f"    s_mov_b32 s{S_P4+2}, {N}")
errs = lint(out[fill_start:out.index("LM_loop:")] + loop_lines + loop_lines + [o[1] for o in drain(1)], "loop")
half = loop_lines.index("s_cbranch_scc1 LM_drain0") + 1
errs += lint(loop_lines[:half] + [o[1] for o in drain(0)], "drain0")
for par in range(2):
    cut = loop_lines.index(f"s_cbranch_scc1 LM_tail{par}") + 1
    errs += lint(loop_lines + loop_lines[:cut] + tail_txt[par], f"tail{par}")
for e in errs:
    print("LINT", e)
nv = sum(1 for l in loop_lines if l.startswith("v_") and not l.startswith("v_mfma"))
print("loop: instrs", len(loop_lines), "valu", nv, "per tile", nv / 2)

A("    s_waitcnt vmcnt(0) lgkmcnt(0)")
A(f"    s_add_u32 s{sBASE}, s{sBASE}, {CAP}")
A(f"    s_cmp_ge_u32 s{sBASE}, s{sT}")
A("    s_cbranch_scc1 LM_epi")
lane_consts()
if TROW:
    A(f"    s_lshl_b32 s3, s2, 5")
    A(f"    s_lshl_b32 s4, s{sW}, 2")
    A(f"    s_add_u32 s3, s3, s4")
    A(f"    s_add_u32 s3, s3, {TBL_OFF}")
    A(f"    v_mul_u32_u24 v{X}, {4*TRS_}, v{xLANE}")
    for j in range(4):
        A(f"    buffer_load_dword v{T_+j}, v{X}, s[{S_WS}:{S_WS+3}], s3 offen")
        A(f"    s_add_u32 s3, s3, {TRS_}")
else:
    A(f"    s_lshl_b32 s3, s2, 13")
    A(f"    s_lshl_b32 s4, s{sW}, 2")
    A(f"    s_add_u32 s3, s3, s4")
    A(f"    s_add_u32 s3, s3, {TBL_OFF}")
    A(f"    v_lshlrev_b32 v{X}, 5, v{xLANE}")
    A(f"    v_add_u32 v{X+1}, 4096, v{X}")
    for j in range(4):
        A(f"    buffer_load_dword v{T_+j}, v{X+j//2}, s[{S_WS}:{S_WS+3}], s3 offen offset:{2048*(j%2)}")
A("    s_waitcnt vmcnt(0)")
A("    s_branch LM_slowbase")
HD = TRM
def whf(q, tp):
    return whreg(2 * q + tp)
def epilogue(fast):
    epi_start = len(out)
    A(f"    v_and_b32 v{eE32}, 31, v0")
    A(f"    v_bfe_u32 v{eHH}, v0, 5, 1")
    A(f"    v_add_u32 v{eNODE}, s{sNODE}, v{eE32}")
    A(f"    v_lshlrev_b32 v{eSTO}, 7, v{eNODE}")
    A(f"    v_lshl_add_u32 v{eSTO}, v{eHH}, 3, v{eSTO}")
    if not fast:
        A(f"    v_lshlrev_b32 v{eH16}, 4, v{eHH}")
        emit(wh_pre())
        for f in WHORD:
            emit([wh_load(f)])
        A(f"    v_lshl_add_u32 v{eT}, v{eNODE}, 7, v{eH16}")
        for s in range(4):
            A(f"    buffer_load_dwordx4 {vr(HB+4*s,4)}, v{eT}, s[{S_H}:{S_H+3}], 0 offen offset:{32*s}")
        for t in range(2):
            for q in range(4):
                A(f"    buffer_load_dwordx2 {vr(HD+8*t+2*q,2)}, v{eSTO}, s[{S_H}:{S_H+3}], 0 offen offset:{64*t+16*q}")
    else:
        A(f"    s_add_u32 s{sTMP}, s{sTMP}, s{sSTG}")
    if fast or LOUT:
        if not fast:
            A(f"    s_mov_b32 s{sTMP}, s{sSTG}")
        A(f"    v_lshrrev_b32 v{eT}, 3, v{eE32}          ; i")
        A(f"    v_and_b32 v{eH16}, 7, v{eE32}            ; r")
        A(f"    v_lshl_add_u32 v{ePOFF}, v{eT}, 10, s{sTMP}")
        A(f"    v_lshl_add_u32 v{ePOFF}, v{eH16}, 7, v{ePOFF}")
        A(f"    v_lshl_add_u32 v{ePOFF}, v{eHH}, 3, v{ePOFF}")
        A(f"    v_and_b32 v{eT}, 1, v{eT}")
        A(f"    v_xor_b32 v{eT}, v{eT}, v{eH16}          ; x")
        A(f"    v_lshl_add_u32 v{ePOFF}, v{eT}, 4, v{ePOFF}")
        for c in range(8):
            A(f"    v_xor_b32 v{WX+c}, {16*c}, v{ePOFF}")
    if fast:
        for c in range(8):
            A(f"    ds_read_b64 {vr(HD+2*c,2)}, v{WX+c}")
    if LOUT:
        A(f"    v_and_b32 v{WX+8}, 63, v0")
        A(f"    v_lshl_add_u32 v{WX+9}, v{WX+8}, 4, s{sTMP}      ; lds read addr")
        A(f"    v_lshrrev_b32 v{WX+8}, 3, v{WX+8}")
        A(f"    v_add_u32 v{WX+8}, s{sNODE}, v{WX+8}")
        A(f"    v_lshl_add_u32 v{WX+10}, v{WX+8}, 7, v{vSWZ[0]}")
        A(f"    v_lshl_add_u32 v{WX+11}, v{WX+8}, 7, v{vSWZ[1]}")
    for r in range(32):
        A(f"    v_mul_f32 v{SEG+r}, s{sLN2}, v{SEG+r}")
    for j in range(16):
        A(f"    v_cvt_pk_bf16_f32 v{PK+j}, v{SEG+2*j}, v{SEG+2*j+1}")
    NL = 0 if fast else 12
    def mm():
        A(f"    s_waitcnt vmcnt({8 + NL + (0 if fast else 3)})")
        for tp in range(2):
            for i, q in enumerate((4, 5, 6, 7)):
                c = "0" if i == 0 else vr(ACC+16*tp,16)
                A(f"    v_mfma_f32_32x32x16_bf16 {vr(ACC+16*tp,16)}, {vr(whf(q,tp),4)}, {vr(PK+4*(q-4),4)}, {c}")
        A(f"    s_waitcnt vmcnt({0 if fast else 8 + 3})")
        for tp in range(2):
            for q in range(4):
                A(f"    v_mfma_f32_32x32x16_bf16 {vr(ACC+16*tp,16)}, {vr(whf(q,tp),4)}, {vr(HB+4*q,4)}, {vr(ACC+16*tp,16)}")
    if fast:
        A("    s_nop 0")
        mm()
    A("    s_mov_b64 exec, 0x01ffffff")
    A(f"    v_lshl_add_u32 v{eT}, v{eE32}, 4, s{sPAB}")
    A(f"    ds_read_b96 {vr(TMP+4,3)}, v{eT}")
    A(f"    v_mul_u32_u24 v{ePOFF}, 6, v{eNODE}")
    A(f"    v_add_u32 v{ePOFF}, {N*128}, v{ePOFF}")
    A(f"    v_cvt_pk_bf16_f32 v{CS}, v{PAC}, v{PAC+1}")
    A(f"    v_cvt_pk_bf16_f32 v{CS+1}, v{PAC+2}, v{PAC+2}")
    A(f"    v_lshlrev_b32 v{TMP}, 16, v{CS}")
    A(f"    v_and_b32 v{TMP+1}, s{sHI}, v{CS}")
    A(f"    v_lshlrev_b32 v{TMP+2}, 16, v{CS+1}")
    A("    s_waitcnt lgkmcnt(0)")
    for c in range(3):
        A(f"    v_add_f32 v{TMP+c}, v{TMP+c}, v{TMP+4+c}")
    for c in range(3):
        A(f"    v_cvt_pk_bf16_f32 v{CS+c}, v{TMP+c}, v{TMP+c}")
    for c in range(3):
        A(f"    buffer_store_short v{CS+c}, v{ePOFF}, s[{S_OUT}:{S_OUT+3}], 0 offen offset:{2*c}" + PST)
    A("    s_mov_b64 exec, -1")
    if not fast:
        mm()
        A("    s_nop 15")
    for j in range(16):
        a0, a1 = ACC + 2 * j, ACC + 2 * j + 1
        A(f"    v_cvt_pk_bf16_f32 v{TMP}, v{a0}, v{a1}")
        A(f"    v_lshlrev_b32 v{a0}, 16, v{TMP}")
        A(f"    v_and_b32 v{a1}, s{sHI}, v{TMP}")
    A(f"    s_mov_b32 s3, 0x{LOG2E:08x}")
    for g0 in range(0, 32, 8):
        rs = range(g0, g0 + 8)
        for r in rs: A(f"    v_mul_f32 v{TMP+r%8}, s3, v{ACC+r}")
        for r in rs: A(f"    v_exp_f32 v{TMP+r%8}, v{TMP+r%8}")
        for r in rs: A(f"    v_add_f32 v{TMP+r%8}, 1.0, v{TMP+r%8}")
        for r in rs: A(f"    v_rcp_f32 v{TMP+r%8}, v{TMP+r%8}")
        for r in rs: A(f"    v_mul_f32 v{ACC+r}, v{ACC+r}, v{TMP+r%8}")
    if not fast:
        A("    s_waitcnt vmcnt(3)")
    for j in range(16):
        a0, a1 = ACC + 2 * j, ACC + 2 * j + 1
        hv = HD + j
        A(f"    v_cvt_pk_bf16_f32 v{TMP}, v{a0}, v{a1}")
        A(f"    v_lshlrev_b32 v{a0}, 16, v{TMP}")
        A(f"    v_and_b32 v{a1}, s{sHI}, v{TMP}")
        A(f"    v_lshlrev_b32 v{TMP+1}, 16, v{hv}")
        A(f"    v_and_b32 v{TMP+2}, s{sHI}, v{hv}")
        A(f"    v_add_f32 v{a0}, v{a0}, v{TMP+1}")
        A(f"    v_add_f32 v{a1}, v{a1}, v{TMP+2}")
        A(f"    v_cvt_pk_bf16_f32 v{PK+j}, v{a0}, v{a1}")
        if LOUT and j % 2 == 1:
            A(f"    ds_write_b64 v{WX+j//2}, {vr(PK+j-1,2)}")
    if LOUT:
        for i in range(4):
            A(f"    ds_read_b128 {vr(SEG+4*i,4)}, v{WX+9} offset:{1024*i}")
        for i in range(4):
            if i == 3:
                A("    s_mov_b64 exec, 0xff")
            A(f"    s_waitcnt lgkmcnt({3-i})")
            A(f"    buffer_store_dwordx4 {vr(SEG+4*i,4)}, v{WX+10+(i&1)}, s[{S_OUT}:{S_OUT+3}], 0 offen offset:{1024*i}" + OST)
    else:
        A(f"    s_mov_b64 exec, s[{sM25}:{sM25+1}]")
        for t in range(2):
            for q in range(4):
                A(f"    buffer_store_dwordx2 {vr(PK+8*t+2*q,2)}, v{eSTO}, s[{S_OUT}:{S_OUT+3}], 0 offen offset:{64*t+16*q}" + OST)
    pre = tail_txt[0][-30:] if fast else []
    for e in lint(pre + out[epi_start:], "epi"):
        print("LINT", e)
A("LM_epi:")
_sv = _stamp[0]
STAMP()
epilogue(0)
A("    s_branch LM_fin")
A("LM_epif:")
_stamp[0] = _sv
STAMP()
epilogue(1)
A("LM_fin:")
if PROF:
    A("    s_mov_b64 exec, -1")
    prof_dump("LP", "LM_end", sW, 82, _stamp[0])
A("LM_end:")
A("    s_endpgm")

A('.section .rodata,"a"')
for name, nv in (("egnn_sort_kernel", 88), ("egnn_main_kernel", 256)):
    A(".p2align 6")
    A(f".amdhsa_kernel {name}")
    A(f"  .amdhsa_next_free_vgpr {nv}")
    A("  .amdhsa_next_free_sgpr 100")
    A(f"  .amdhsa_accum_offset {nv}")
    A("  .amdhsa_group_segment_fixed_size 0")
    A("  .amdhsa_kernarg_size 88")
    A("  .amdhsa_user_sgpr_count 2")
    A("  .amdhsa_user_sgpr_kernarg_segment_ptr 1")
    A("  .amdhsa_system_sgpr_workgroup_id_x 1")
    A(".end_amdhsa_kernel")

path = sys.argv[1] if len(sys.argv) > 1 else f"cdna_kernels/{NAME}.s"
open(path, "w").write("\n".join(out) + "\n")
print("wrote", path, len(out), "lines; sort lds", SORT_LDS, "main lds", MAIN_LDS, "vgprs", NVGPR)
```

```python
import sys, os
sys.path.insert(0, os.path.dirname(os.path.abspath(__file__)))
from lint import lint
PROF = int(os.environ.get("PROF", "0"))
MB = int(os.environ.get("MB", "0"))
EANT = os.environ.get("EANT", "")
BAL = int(os.environ.get("BAL", "1"))
PH = int(os.environ.get("PH", "1"))
F16 = int(os.environ.get("F16", "1"))
MT = "f16" if F16 else "bf16"
CVT = "v_cvt_pk_f16_f32" if F16 else "v_cvt_pk_bf16_f32"
PF = int(os.environ.get("PF", "0"))
PFN = int(os.environ.get("PFN", "25000"))
TH = int(os.environ.get("TH", "25000"))

PFW = int(os.environ.get("PFW", "0"))
PFS = int(os.environ.get("PFS", "0"))
PFSH = int(os.environ.get("PFSH", "0"))
NPS = PFS + PFSH
PFI = int(os.environ.get("PFI", "2"))
PFH = int(os.environ.get("PFH", "1"))
SST = os.environ.get("SST", "sc1")
SST = (" " + SST.replace(",", " ")) if SST else ""
OST = os.environ.get("OST", "sc1")
OST = (" " + OST.replace(",", " ")) if OST else ""
PST = os.environ.get("PST", "sc1")
PST = (" " + PST.replace(",", " ")) if PST else ""
LOUT = int(os.environ.get("LOUT", "1"))
NAME = "gather_scatter__cheap_equivariant_egnn__graph"
N = 50000
E = 800000
G = 250
GW = 4
C = 3200
NBK = 250
BN = 200
FBN = 25
REC_OFF = 0
TBL_OFF = E * 8
WF_OFF = TBL_OFF + 256 * 8192
P4_OFF = WF_OFF + 40 * 1024
WS_USED = P4_OFF + N * 8
LOG2E = 0xbfb8aa3b
LN2 = 0xbf317218
PADNB = 30

out = []
def A(s=""):
    out.append(s)

_stamp = [0]
def STAMP(lvl=1):
    if PROF != lvl and lvl != 0:
        return
    if not PROF:
        return
    i = _stamp[0]; _stamp[0] += 1
    assert i < 7
    A(f"    s_memtime s[{82+2*i}:{83+2*i}]")
_sst = [0]
def SSTAMP():
    if not PROF:
        return
    i = _sst[0]; _sst[0] += 1
    assert i < 7
    A(f"    s_memtime s[{46+2*i}:{47+2*i}]")

def srd(base, lo, hi, nbytes, stride=0):
    A(f"    s_mov_b32 s{base}, s{lo}")
    A(f"    s_and_b32 s{base+1}, s{hi}, 0xffff")
    if stride:
        A(f"    s_or_b32 s{base+1}, s{base+1}, {stride << 16}")
    A(f"    s_mov_b32 s{base+2}, {nbytes}")
    A(f"    s_mov_b32 s{base+3}, 0x00020000")

def vr(a, n):
    return f"v[{a}:{a+n-1}]"

def wave_scan(x):
    for sh in (1, 2, 4, 8):
        A("    s_nop 1")
        A(f"    v_add_u32_dpp v{x}, v{x}, v{x} row_shr:{sh} row_mask:0xf bank_mask:0xf bound_ctrl:0")
    A("    s_nop 1")
    A(f"    v_add_u32_dpp v{x}, v{x}, v{x} row_bcast:15 row_mask:0xa bank_mask:0xf")
    A("    s_nop 1")
    A(f"    v_add_u32_dpp v{x}, v{x}, v{x} row_bcast:31 row_mask:0xc bank_mask:0xf")
    A("    s_nop 1")

PALL = int(os.environ.get("PALL", "0"))
def prof_all(wreg, base, n, off, rt0):
    A("    s_waitcnt vmcnt(0)")
    A(f"    s_memtime s[{base+2*n}:{base+2*n+1}]")
    A(f"    s_memrealtime s[66:67]")
    A("    s_load_dwordx2 s[64:65], s[0:1], 80")
    A("    s_getreg_b32 s75, hwreg(HW_REG_HW_ID)")
    A("    s_getreg_b32 s77, hwreg(HW_REG_XCC_ID)")
    A("    s_waitcnt lgkmcnt(0)")
    srd(68, 64, 65, 256 << 20)
    A("    s_lshl_b32 s72, s2, 4")
    A(f"    s_add_u32 s72, s72, s{wreg}")
    A("    s_lshl_b32 s72, s72, 6")
    A(f"    s_add_u32 s72, s72, {off}")
    A("    s_mov_b64 exec, 1")
    A("    v_mov_b32 v1, s72")
    for i in range(1, n + 1):
        A(f"    s_sub_u32 s73, s{base+2*i}, s{base}")
        A(f"    v_mov_b32 v2, s73")
        A(f"    buffer_store_dword v2, v1, s[68:71], 0 offen offset:{4*i}")
    for j, r in enumerate((rt0, 66, 75, 77, 96)):
        A(f"    v_mov_b32 v2, s{r}")
        A(f"    buffer_store_dword v2, v1, s[68:71], 0 offen offset:{32+4*j}")
def prof_dump(lbl, endlbl, wreg, base, n):
    if PALL:
        return prof_all(wreg, base, n, (200 << 20) + (0 if lbl == "LP" else 1 << 20), 98 if lbl == "LP" else 62)
    A("    s_waitcnt vmcnt(0)")
    A(f"    s_memtime s[{base+2*n}:{base+2*n+1}]")
    A("    s_load_dwordx2 s[64:65], s[0:1], 72")
    A("    s_waitcnt lgkmcnt(0)")
    srd(68, 64, 65, 256)
    A("    s_mov_b32 s72, 0")
    A("    s_cmp_eq_u32 s2, 0")
    A(f"    s_cbranch_scc1 {lbl}_a")
    A("    s_mov_b32 s72, 2")
    A("    s_cmp_eq_u32 s2, 137")
    A(f"    s_cbranch_scc0 {endlbl}")
    A(f"{lbl}_a:")
    A(f"    s_cmp_eq_u32 s{wreg}, 0")
    A(f"    s_cbranch_scc1 {lbl}_b")
    A("    s_add_u32 s72, s72, 1")
    A(f"    s_cmp_eq_u32 s{wreg}, 7")
    A(f"    s_cbranch_scc0 {endlbl}")
    A(f"{lbl}_b:")
    A("    s_lshl_b32 s72, s72, 5")
    A("    s_mov_b64 exec, 1")
    A("    v_mov_b32 v1, s72")
    for i in range(1, n + 1):
        A(f"    s_sub_u32 s73, s{base+2*i}, s{base}")
        A(f"    v_mov_b32 v2, s73")
        A(f"    buffer_store_dword v2, v1, s[68:71], 0 offen offset:{4*i}")

S_HIST = 0
S_OFF = 8192
S_WT = 16384
S_STAGE = 16384 + 64
SORT_LDS = S_STAGE + C * 8
CAP = 512
ST_SZ = 5120
L_ID = 0
ID_RS = 80
L_PA = L_ID + 32 * ID_RS
L_Z = L_PA + 8 * 512
L_PRG = L_Z + 1024
L_PS = L_PRG + 128
L_W0 = L_PS + 1024
L_W1 = L_W0 + 8 * CAP * 4
L_MS = L_W1 + 8 * CAP * 4
MS_RS = 136
MS_W = 32 * MS_RS
L_ST = L_MS + 8 * MS_W
assert L_PRG % 32 == 0
assert L_ST % 128 == 0 and L_PA % 16 == 0 and L_ID % 16 == 0
L_TB = L_MS
L_WF = L_MS + 8192
assert L_WF + 24576 <= L_ST
L_RAW = L_ST
MAIN_LDS = L_ST + 16 * ST_SZ
assert MAIN_LDS <= 163840, MAIN_LDS

A(f"; @launch kernel=egnn_sort_kernel grid=({G+GW+PFW},1,1) block=(640,1,1) lds={SORT_LDS}")
A(f"; @launch kernel=egnn_main_kernel grid=({NBK},1,1) block=(512,1,1) lds={MAIN_LDS}")
A('.amdgcn_target "amdgcn-amd-amdhsa--gfx950"')
A(".text")

A(".globl egnn_sort_kernel")
A(".p2align 8")
A(".type egnn_sort_kernel,@function")
A("egnn_sort_kernel:")
A(f"    s_cmp_ge_u32 s2, {G+GW}")
A("    s_cbranch_scc1 LS_pf")
A(f"    s_cmp_ge_u32 s2, {G}")
A("    s_cbranch_scc1 LS_weights")
SSTAMP()
if PALL:
    A("    s_memrealtime s[62:63]")
A("    s_load_dwordx2 s[4:5], s[0:1], 8      ; pos")
A("    s_load_dwordx4 s[8:11], s[0:1], 24    ; src, dst")
A("    s_load_dwordx2 s[12:13], s[0:1], 80   ; ws")
if NPS:
    A("    s_load_dwordx2 s[40:41], s[0:1], 0     ; h")
    A("    s_load_dwordx2 s[42:43], s[0:1], 16    ; e_attr")
A("    v_lshlrev_b32 v1, 4, v0")
if NPS:
    A("    v_mov_b32 v82, v1")
for j in range(4):
    A(f"    v_mov_b32 v{4+j}, 0")
A("    v_cmp_gt_u32 vcc, 512, v0")
A("    s_and_saveexec_b64 s[14:15], vcc")
A(f"    ds_write_b128 v1, v[4:7] offset:{S_HIST}")
A("    s_mov_b64 exec, s[14:15]")
A("    v_lshlrev_b32 v1, 2, v0")
A(f"    s_mul_i32 s3, s2, {C * 4}")
A("    v_add_u32 v1, s3, v1")
SL = 5
for k in range(1, SL):
    A(f"    s_mov_b32 s{35+k}, {k*2560}")
A(f"    s_mul_i32 s3, s2, {BN}")
A("    v_add_u32 v44, s3, v0                ; node")
A("    v_mul_u32_u24 v45, 6, v44")
A("    s_waitcnt lgkmcnt(0)")
SSTAMP()
srd(24, 10, 11, E * 4)
srd(20, 8, 9, E * 4)
for k in range(SL):
    so = "0" if k == 0 else f"s{35+k}"
    A(f"    buffer_load_dword v{10+k}, v1, s[24:27], {so} offen")
    A(f"    buffer_load_dword v{15+k}, v1, s[20:23], {so} offen")
srd(16, 4, 5, N * 6)
srd(28, 12, 13, WS_USED)
for c in range(3):
    A(f"    buffer_load_ushort v{40+c}, v45, s[16:19], 0 offen offset:{2*c}")
if NPS:
    srd(64, 40, 41, N * 128)
    srd(68, 42, 43, E * 32)
    A(f"    s_mul_i32 s40, s2, {BN*128}")
    A(f"    s_mul_i32 s41, s2, {PFS*10240}")
    for i in range(max(PFS, PFSH)):
        if i < PFSH:
            A(f"    buffer_load_dwordx4 v[84:87], v82, s[64:67], s40 offen")
            A(f"    s_add_u32 s40, s40, 10240")
        if i < PFS:
            A(f"    buffer_load_dwordx4 v[84:87], v82, s[68:71], s41 offen")
            A(f"    s_add_u32 s41, s41, 10240")
A("    s_barrier")
A("    s_mov_b32 s14, 83887")
A("    v_mov_b32 v3, 1")
A(f"    s_mul_i32 s3, s2, {C}")
A("    v_add_u32 v46, s3, v0")
for k in range(SL):
    A(f"    s_waitcnt vmcnt({NPS + 3 + 2*(SL-1-k)})")
    d, s = 10 + k, 15 + k
    A(f"    v_mul_u32_u24 v4, s14, v{d}")
    A(f"    v_lshrrev_b32 v4, 21, v4             ; key = dst/25")
    A(f"    v_lshlrev_b32 v{20+k}, 2, v4")
    A(f"    ds_add_rtn_u32 v{30+k}, v{20+k}, v3 offset:{S_HIST}")
    A(f"    v_mul_u32_u24 v5, {FBN}, v4")
    A(f"    v_sub_u32 v7, v{d}, v5               ; nb")
    A(f"    v_lshl_or_b32 v{50+2*k}, v{s}, 7, v7   ; w0")
    A(f"    v_add_u32 v8, {k*640}, v46")
    A(f"    v_lshlrev_b32 v{51+2*k}, 5, v8         ; w1")
A(f"    s_waitcnt vmcnt({NPS})")
A("    v_lshl_or_b32 v40, v41, 16, v40")
A("    v_lshlrev_b32 v41, 16, v42")
A("    v_lshlrev_b32 v44, 3, v44")
A(f"    v_add_u32 v44, {P4_OFF}, v44")
A(f"    v_cmp_gt_u32 vcc, {BN}, v0")
A("    s_and_saveexec_b64 s[44:45], vcc")
A("    s_cbranch_execz LS_nop4")
A("    buffer_store_dwordx2 v[40:41], v44, s[28:31], 0 offen" + SST)
A("LS_nop4:")
A("    s_mov_b64 exec, s[44:45]")
A("    s_waitcnt lgkmcnt(0)")
A("    s_barrier")
SSTAMP()
A("    v_lshrrev_b32 v81, 6, v0")
A("    v_lshlrev_b32 v2, 4, v0")
A("    v_readfirstlane_b32 s6, v81          ; wave")
A("    s_cmp_ge_u32 s6, 8")
A("    s_cbranch_scc1 LS_noscan1")
A(f"    ds_read_b128 v[4:7], v2 offset:{S_HIST}")
A("    s_waitcnt lgkmcnt(0)")
A("    v_add_u32 v8, v4, v5")
A("    v_add_u32 v9, v8, v6")
A("    v_add_u32 v70, v9, v7                ; total")
A("    v_mov_b32 v71, v70")
wave_scan(71)
A("    v_readlane_b32 s7, v71, 63")
A("    v_lshlrev_b32 v81, 2, v81")
A("    v_mov_b32 v72, s7")
A(f"    ds_write_b32 v81, v72 offset:{S_WT}")
A("    s_waitcnt lgkmcnt(0)")
A("LS_noscan1:")
A("    s_barrier")
A("    s_cmp_ge_u32 s6, 8")
A("    s_cbranch_scc1 LS_noscan")
A("    v_mov_b32 v81, 0")
A(f"    ds_read_b128 v[72:75], v81 offset:{S_WT}")
A(f"    ds_read_b128 v[76:79], v81 offset:{S_WT+16}")
A("    v_sub_u32 v71, v71, v70            ; exclusive")
A("    s_waitcnt lgkmcnt(0)")
for j in range(7):
    A(f"    s_cmp_gt_u32 s6, {j}")
    A(f"    s_cselect_b32 s7, -1, 0")
    A(f"    v_and_b32 v{72+j}, s7, v{72+j}")
    A(f"    v_add_u32 v71, v71, v{72+j}")
A("    v_mov_b32 v72, v71")
A("    v_add_u32 v73, v71, v4")
A("    v_add_u32 v74, v71, v8")
A("    v_add_u32 v75, v71, v9")
A(f"    ds_write_b128 v2, v[72:75] offset:{S_OFF}")
A("    v_lshl_or_b32 v76, v4, 16, v72")
A("    v_lshl_or_b32 v77, v5, 16, v73")
A("    v_lshl_or_b32 v78, v6, 16, v74")
A("    v_lshl_or_b32 v79, v7, 16, v75")
A("    s_and_b32 s3, s2, 3")
A("    s_lshl_b32 s3, s3, 6")
A("    s_lshr_b32 s7, s2, 2")
A("    s_add_u32 s3, s3, s7                 ; slot")
A("    s_lshl_b32 s3, s3, 5")
A(f"    s_add_u32 s3, s3, {TBL_OFF}")
A("    v_lshrrev_b32 v80, 1, v0")
A("    v_lshlrev_b32 v80, 13, v80")
A("    v_and_b32 v81, 1, v0")
A("    v_lshl_add_u32 v80, v81, 4, v80")
A("    buffer_store_dwordx4 v[76:79], v80, s[28:31], s3 offen" + SST)
A("    s_waitcnt lgkmcnt(0)")
A("LS_noscan:")
A("    s_barrier")
for k in range(SL):
    A(f"    ds_read_b32 v{35+k}, v{20+k} offset:{S_OFF}")
SSTAMP()
A("    s_waitcnt lgkmcnt(0)")
for k in range(SL):
    A(f"    v_add_u32 v2, v{35+k}, v{30+k}")
    A(f"    v_lshlrev_b32 v2, 3, v2")
    A(f"    ds_write_b64 v2, v[{50+2*k}:{51+2*k}] offset:{S_STAGE}")
A("    s_waitcnt lgkmcnt(0)")
A("    s_barrier")
SSTAMP()
A("    v_lshlrev_b32 v1, 3, v0")
for k in range(SL):
    A(f"    ds_read_b64 v[{50+2*k}:{51+2*k}], v1 offset:{S_STAGE + k*5120}")
A(f"    s_mul_i32 s3, s2, {C*8}")
A("    v_add_u32 v2, s3, v1")
for k in range(1, SL):
    A(f"    s_mov_b32 s{35+k}, {k*5120}")
for k in range(SL):
    A(f"    s_waitcnt lgkmcnt({SL-1-k})")
    so = "0" if k == 0 else f"s{35+k}"
    A(f"    buffer_store_dwordx2 v[{50+2*k}:{51+2*k}], v2, s[28:31], {so} offen" + SST)
if PROF:
    A("    v_lshrrev_b32 v1, 6, v0")
    A("    s_nop 0")
    A("    v_readfirstlane_b32 s74, v1")
    prof_dump("LQ", "LS_end", 74, 46, _sst[0])
A("    s_branch LS_end")
A("LS_weights:")
A("    s_load_dwordx2 s[4:5], s[0:1], 40     ; w_e")
A("    s_load_dwordx2 s[6:7], s[0:1], 56     ; w_h")
A("    s_load_dwordx2 s[26:27], s[0:1], 48   ; w_x")
A("    s_load_dwordx2 s[12:13], s[0:1], 80   ; ws")
A("    v_lshrrev_b32 v1, 6, v0")
A("    s_nop 0")
A("    v_readfirstlane_b32 s3, v1")
A(f"    s_sub_u32 s8, s2, {G}")
A("    s_mul_i32 s8, s8, 10")
A("    s_add_u32 s8, s8, s3")
A("    s_cmp_eq_u32 s8, 23")
A("    s_cbranch_scc1 LS_end")
A("    s_waitcnt lgkmcnt(0)")
srd(16, 4, 5, 145 * 128)
srd(20, 6, 7, 128 * 128)
srd(28, 12, 13, WS_USED)
A("    s_and_b32 s14, s8, 1")
A("    s_lshr_b32 s15, s8, 1                  ; ks / q")
A("    s_mov_b32 s10, 8")
A("    s_mov_b32 s11, 4")
A("    s_mov_b32 s24, 1.0")
A("    s_cmp_ge_u32 s8, 24")
A("    s_cbranch_scc1 LS_wh")
A("    s_cmp_eq_u32 s8, 22")
A("    s_cbranch_scc1 LS_wd")
A("    s_cmp_ge_u32 s8, 18")
A("    s_cbranch_scc1 LS_wx")
A("    s_lshl_b32 s9, s15, 4")
A("    s_cmp_ge_u32 s15, 8")
A("    s_cselect_b32 s9, 129, s9")
A("    s_cmp_ge_u32 s15, 4")
A(f"    s_cselect_b32 s24, 0x{LOG2E:08x}, s24")
A("    s_branch LS_wgo")
A("LS_wh:")
A("    s_sub_u32 s15, s15, 12")
A("    s_lshl_b32 s9, s15, 4")
A("    s_cmp_ge_u32 s15, 4")
A("    s_cselect_b32 s10, 4, 8")
A("    s_cselect_b32 s11, 8, 4")
A("    s_mov_b32 s16, s20")
A("    s_mov_b32 s17, s21")
A("    s_mov_b32 s18, s22")
A("LS_wgo:")
A("    v_and_b32 v1, 31, v0")
A("    v_bfe_u32 v2, v0, 5, 1")
A("    v_mul_u32_u24 v2, s10, v2")
A("    v_add_u32 v2, s9, v2")
A("    v_lshlrev_b32 v2, 7, v2")
A("    v_lshl_add_u32 v2, v1, 1, v2")
A("    s_lshl_b32 s3, s14, 6")
A("    v_add_u32 v2, s3, v2")
A("    s_lshl_b32 s3, s11, 7")
A("    v_add_u32 v3, s3, v2                   ; j=4")
for j in range(4):
    A(f"    buffer_load_ushort v{10+j}, v2, s[16:19], 0 offen offset:{128*j}")
for j in range(4):
    A(f"    buffer_load_ushort v{14+j}, v3, s[16:19], 0 offen offset:{128*j}")
A("    s_waitcnt vmcnt(0)")
for j in range(8):
    A(f"    v_lshlrev_b32 v{10+j}, 16, v{10+j}")
    A(f"    v_mul_f32 v{10+j}, s24, v{10+j}")
for j in range(4):
    A(f"    v_cvt_pk_bf16_f32 v{20+j}, v{10+2*j}, v{11+2*j}")
A("LS_wst:")
A("    v_and_b32 v1, 63, v0")
A("    v_lshlrev_b32 v1, 4, v1")
A("    s_lshl_b32 s3, s8, 10")
A(f"    s_add_u32 s3, s3, {WF_OFF}")
A("    v_add_u32 v1, s3, v1")
A("    buffer_store_dwordx4 v[20:23], v1, s[28:31], 0 offen" + SST)
A("    s_branch LS_end")
A("LS_wx:")
srd(16, 26, 27, 128)
A("    s_sub_u32 s3, s8, 18")
A("    s_lshl_b32 s3, s3, 5")
A("    v_bfe_u32 v2, v0, 5, 1")
A("    v_lshlrev_b32 v2, 3, v2")
A("    v_add_u32 v2, s3, v2")
A("    buffer_load_dwordx2 v[20:21], v2, s[16:19], 0 offen")
A("    buffer_load_dwordx2 v[22:23], v2, s[16:19], 0 offen offset:16")
A(f"    s_mov_b32 s14, {(1<<8)|(1<<28)}")
A(f"    s_mov_b32 s15, {(1<<8)|(1<<28)}")
A("    s_waitcnt vmcnt(0)")
for j in range(4):
    A(f"    v_cndmask_b32 v{20+j}, 0, v{20+j}, s[14:15]")
    if F16:
        A(f"    v_lshlrev_b32 v3, 16, v{20+j}")
        A(f"    v_and_b32 v{20+j}, 0xffff0000, v{20+j}")
        A(f"    v_cvt_pk_f16_f32 v{20+j}, v3, v{20+j}")
A("    s_branch LS_wst")
A("LS_wd:")
A("    v_and_b32 v1, 31, v0")
A("    v_lshlrev_b32 v1, 1, v1")
A(f"    v_add_u32 v1, {128*128}, v1")
A("    buffer_load_ushort v20, v1, s[16:19], 0 offen")
A("    buffer_load_ushort v21, v1, s[16:19], 0 offen offset:64")
A(f"    s_mov_b32 s3, 0x{LOG2E:08x}")
A("    v_mov_b32 v22, 0")
A("    v_mov_b32 v23, 0")
A("    s_waitcnt vmcnt(0)")
for t in range(2):
    A(f"    v_lshlrev_b32 v{20+t}, 16, v{20+t}")
    A(f"    v_mul_f32 v{20+t}, s3, v{20+t}")
    A(f"    v_cvt_pk_bf16_f32 v{20+t}, v{20+t}, v{20+t}")
A("    s_branch LS_wst")
A("LS_pf:")
if PFW:
    A(f"    s_cmp_ge_u32 s2, {G+GW+PFW}")
    A("    s_cbranch_scc1 LS_end")
    A("    s_load_dwordx2 s[4:5], s[0:1], 0      ; h")
    A("    s_load_dwordx2 s[6:7], s[0:1], 16     ; e_attr")
    A(f"    s_sub_u32 s3, s2, {G+GW}")
    A(f"    s_mul_i32 s3, s3, 640")
    A("    v_add_u32 v1, s3, v0")
    A("    v_lshlrev_b32 v2, 7, v1               ; h line")
    A("    v_lshrrev_b32 v3, 6, v1")
    A(f"    v_mul_u32_u24 v3, {PFI*64}, v3")
    A("    v_and_b32 v4, 63, v0")
    A("    v_add_u32 v3, v3, v4")
    A("    v_lshlrev_b32 v3, 7, v3")
    A("    s_waitcnt lgkmcnt(0)")
    srd(16, 4, 5, N * 128)
    srd(20, 6, 7, E * 32)
    for i in range(PFI):
        A(f"    s_mov_b32 s3, {i*8192}")
        A(f"    buffer_load_dword v{8+i}, v3, s[20:23], s3 offen")
    if PFH:
        A(f"    buffer_load_dword v7, v2, s[16:19], 0 offen")
A("LS_end:")
A("    s_endpgm")

S_H, S_EA, S_WS, S_P4, S_WE, S_WX, S_OUT = 8, 12, 16, 20, 24, 28, 32
sW, sT, sBASE, sCNT, sLB, sNT, sNODE, sSTG = 40, 41, 42, 43, 44, 45, 46, 47
sHIGH = 50
sM25 = 52
sHI = 54
sAM = 55
sLN2 = 56
sP4O = 57
sIDRS = 58
sPAB = 59
sONE2 = 60
sPGW, sPGR, sPGP = 62, 63, 76
sINC, sDEL, sTAIL, sTMP, sWH = 24, 25, 26, 27, 28
FT = int(os.environ.get("FT", "1"))

_next = [1]
def alloc(n, align=1):
    while _next[0] % align:
        _next[0] += 1
    r = _next[0]; _next[0] += n
    return r
WSF = alloc(32, 4)
WAE = alloc(8, 4)
ATF = alloc(16, 4)
WX = alloc(16, 4)
ACC = alloc(32, 4)
SEG = alloc(32, 4)
HB = alloc(16, 4)
EA = alloc(4, 4)
SO = alloc(8, 4)
PK = alloc(16, 4)
TRM = alloc(8, 4)
TRS = alloc(8, 4)
CS = alloc(4, 4)
TMP = alloc(8, 4)
W0D = alloc(4, 4)
PAC = alloc(4, 4)
PS0 = alloc(3, 2); vW0E = alloc(1)
PS1 = alloc(3, 2); vNB = alloc(1)
PD = alloc(3, 2); vSA = alloc(1)
PS = (PS0, PS1)
DX = (alloc(3), alloc(3))
vW1P = alloc(1); vW0E3 = alloc(1)
vSWZ = (alloc(1), alloc(1))
vEAO = alloc(1)
vHBA = [alloc(1) for _ in range(4)]
vEAR, vIDB, vSWL, vMWL, vTRL = [alloc(1) for _ in range(5)]
assert _next[0] <= 256, _next[0]
vTRP, vL0E, vL0D = 1, 2, 3
vL1P, vONE, vZERO, vMASK = [alloc(1) for _ in range(4)]
assert _next[0] <= 256, _next[0]
NVGPR = _next[0]
def wsf(s, t): return WSF + (2 * s + t) * 4
def atf(u, t): return ATF + (2 * u + t) * 4
X = PK
assert W0D + 4 - PK == 48

A(".globl egnn_main_kernel")
A(".p2align 8")
A(".type egnn_main_kernel,@function")
A("egnn_main_kernel:")
A(f"    s_cmp_ge_u32 s2, {os.environ.get('LIMWG', NBK)}")
A("    s_cbranch_scc1 LM_end")
STAMP(0)
if PALL:
    A("    s_memrealtime s[98:99]")
A("    s_load_dwordx2 s[80:81], s[0:1], 80    ; ws")
A("    s_load_dwordx2 s[64:65], s[0:1], 0     ; h")
A("    s_load_dwordx2 s[66:67], s[0:1], 16    ; e_attr")
A("    s_load_dwordx2 s[78:79], s[0:1], 64    ; out")
xLANE, xE32, xHH, xH16, xL16, xT4 = X + 40, X + 41, X + 42, X + 43, X + 44, X + 45
def lane_consts():
    A(f"    v_and_b32 v{xLANE}, 63, v0")
    A(f"    v_and_b32 v{xE32}, 31, v0")
    A(f"    v_bfe_u32 v{xHH}, v0, 5, 1")
    A(f"    v_lshlrev_b32 v{xH16}, 4, v{xHH}")
    A(f"    v_lshlrev_b32 v{xL16}, 4, v{xLANE}")
    A(f"    v_lshlrev_b32 v{xT4}, 2, v0")
lane_consts()
A(f"    v_lshrrev_b32 v{X}, 6, v0")
A(f"    s_mov_b32 s{sHIGH}, 0")
A(f"    v_readfirstlane_b32 s{sW}, v{X}")
A(f"    s_mov_b32 s{sHIGH+1}, -1")
A(f"    s_mov_b32 s{sM25}, 0x01ffffff")
A(f"    s_mov_b32 s{sM25+1}, 0x01ffffff")
A(f"    s_mov_b32 s{sHI}, 0xffff0000")
A(f"    s_mov_b32 s{sAM}, {os.environ.get('HOTH', '0x007fff80')}")
sHOT = 61
A(f"    s_mov_b32 s{sHOT}, {os.environ.get('HOTEA', '0')}")
A(f"    s_mov_b32 s{sLN2}, 0x{LN2:08x}")
A(f"    s_mov_b32 s{sP4O}, {P4_OFF}")
A(f"    s_mov_b32 s{sIDRS}, {ID_RS}")
A(f"    s_mov_b32 s{sONE2}, 0x3c003c00")
A(f"    s_lshl_b32 s{sPGW}, s{sW}, 2")
A(f"    s_add_u32 s{sPGW}, s{sPGW}, {L_PRG}")
A(f"    s_xor_b32 s{sPGR}, s{sPGW}, 16")
sBIAS, sPUB = 36, 37
if BAL >= 2:
    A(f"    s_cmp_lt_u32 s{sW}, 4")
    A(f"    s_cselect_b32 s{sBIAS}, {1 if BAL == 2 else 0}, {0 if BAL == 2 else 1}")
A(f"    s_lshl_b32 s3, s2, 13")
A(f"    s_add_u32 s3, s3, {TBL_OFF}")
A(f"    v_lshlrev_b32 v{X+1}, 4, v0")
A(f"    s_lshl_b32 s4, s{sW}, 10")
A(f"    s_add_u32 m0, s4, {L_TB}")
A(f"    s_mov_b32 s5, {WF_OFF}")
A(f"    s_mul_i32 s{sSTG}, s{sW}, {2*ST_SZ}")
A(f"    s_add_u32 s{sSTG}, s{sSTG}, {L_ST}")
A(f"    s_mul_i32 s6, s2, {BN}")
A(f"    s_mul_i32 s4, s{sW}, {FBN}")
A(f"    s_add_u32 s{sNODE}, s6, s4")
A("    s_waitcnt lgkmcnt(0)")
STAMP(2)
srd(S_WS, 80, 81, WS_USED)
A(f"    buffer_load_dwordx4 v{X+1}, s[{S_WS}:{S_WS+3}], s3 offen lds")
A(f"    s_lshl_b32 s4, s{sW}, 10")
A(f"    s_add_u32 s5, s5, s4")
for i in range(3):
    A(f"    s_add_u32 m0, s4, {L_WF + 8192*i}")
    A(f"    s_add_u32 s3, s5, {8192*i}")
    A(f"    buffer_load_dwordx4 v{xL16}, s[{S_WS}:{S_WS+3}], s3 offen lds")
srd(S_H, 64, 65, N * 128)
NPF = 0
if PF:
    per_wg = -(-PFN // PF)
    per_w = -(-per_wg // 8)
    NPF = -(-per_w // 64)
    A(f"    s_mul_i32 s3, s2, {(1 << 20) // PF + 1}")
    A(f"    s_lshr_b32 s3, s3, 20")
    A(f"    s_mul_i32 s3, s3, {PF}")
    A(f"    s_sub_u32 s3, s2, s3                  ; slice")
    A(f"    s_mul_i32 s3, s3, {per_wg}")
    A(f"    s_mul_i32 s4, s{sW}, {per_w}")
    A(f"    s_add_u32 s3, s3, s4")
    A(f"    v_add_u32 v{X+2}, s3, v{xLANE}")
    A(f"    v_lshlrev_b32 v{X+2}, 7, v{X+2}")
    A(f"    s_mov_b32 m0, {L_W0}")
    for i in range(NPF):
        A(f"    s_mov_b32 s3, {i * 64 * 128}")
        A(f"    buffer_load_dword v{X+2}, s[{S_H}:{S_H+3}], s3 offen lds")
srd(S_P4, 80, 81, N, stride=8)
srd(S_EA, 66, 67, E * 32)
srd(S_OUT, 78, 79, N * 128 + N * 6)
STAMP(2)
def own_loads(X=X):
    A(f"    v_add_u32 v{X}, s{sNODE}, v{xE32}")
    A(f"    v_lshl_add_u32 v{X+1}, v{X}, 7, v{xH16}")
    for s in range(4):
        A(f"    buffer_load_dwordx4 {vr(HB+4*s,4)}, v{X+1}, s[{S_H}:{S_H+3}], 0 offen offset:{32*s}")
    A(f"    buffer_load_dwordx2 {vr(PD,2)}, v{X}, s[{S_P4}:{S_P4+3}], s{sP4O} idxen")
NOWN = 4 + 1
STAMP(2)
A(f"    s_mul_i32 s4, s{sW}, {MS_W}")
A(f"    s_add_u32 s4, s4, {L_MS}")
A(f"    v_mul_u32_u24 v{X}, {MS_RS}, v{xE32}")
A(f"    v_add_u32 v{X}, s4, v{X}")
A(f"    v_lshl_add_u32 v{vMWL}, v{xHH}, 3, v{X}")
A(f"    v_add_u32 v{vSWL}, 64, v{X}")
A(f"    v_bfe_u32 v{X}, v{xLANE}, 2, 2")
A(f"    v_lshlrev_b32 v{X}, 2, v{X}")
A(f"    v_add_u32 v{X}, v{X}, v{xHH}")
A(f"    v_mul_u32_u24 v{X}, {2*MS_RS}, v{X}")
A(f"    v_bfe_u32 v{X+1}, v{xLANE}, 4, 1")
A(f"    v_lshl_add_u32 v{X}, v{X+1}, 5, v{X}")
A(f"    v_and_b32 v{X+1}, 3, v{xLANE}")
A(f"    v_lshl_add_u32 v{X}, v{X+1}, 3, v{X}")
A(f"    v_add_u32 v{vTRL}, s4, v{X}")
A(f"    v_bfe_u32 v{X}, v{xLANE}, 2, 2")
A(f"    v_lshlrev_b32 v{X}, 2, v{X}")
A(f"    v_add_u32 v{X}, v{X}, v{xHH}")
A(f"    v_mul_u32_u24 v{X}, {2*MS_RS}, v{X}")
A(f"    v_add_u32 v{X}, s4, v{X}")
A(f"    v_add_u32 v{X}, 128, v{X}")
A(f"    v_bfe_u32 v{X+1}, v{xLANE}, 4, 1")
A(f"    v_and_b32 v{X+2}, 3, v{xLANE}")
A(f"    v_cmp_eq_u32 vcc, v{X+1}, v{X+2}")
A(f"    v_mov_b32 v{vTRP}, {L_Z}")
A(f"    s_lshl_b32 s{sPAB}, s{sW}, 9")
A(f"    v_cndmask_b32 v{vTRP}, v{vTRP}, v{X}, vcc")
A(f"    s_add_u32 s{sPAB}, s{sPAB}, {L_PA}")
A(f"    v_add_u32 v{vIDB}, {L_ID}, v{xH16}")
A(f"    v_mov_b32 v{vONE}, 0x3f80")
A(f"    v_mov_b32 v{vZERO}, 0")
A(f"    v_mul_u32_u24 v{vMASK}, 0xffff, v{xHH}")
A(f"    v_lshlrev_b32 v{vMASK}, 16, v{vMASK}")
A(f"    v_lshrrev_b32 v{X}, 3, v{xLANE}")
A(f"    v_and_b32 v{X+1}, 7, v{xLANE}")
A(f"    v_xor_b32 v{X+1}, v{X+1}, v{X}")
A(f"    v_lshlrev_b32 v{vSWZ[0]}, 4, v{X+1}")
A(f"    v_xor_b32 v{vSWZ[1]}, 16, v{vSWZ[0]}")
A(f"    v_and_b32 v{vEAO}, 1, v{xLANE}")
A(f"    v_lshlrev_b32 v{vEAO}, 4, v{vEAO}")
A(f"    v_lshrrev_b32 v{X}, 3, v{xE32}          ; i")
A(f"    v_and_b32 v{X+1}, 7, v{xE32}            ; r")
A(f"    v_and_b32 v{X+2}, 1, v{X}")
A(f"    v_xor_b32 v{X+2}, v{X+2}, v{X+1}        ; x")
A(f"    v_xor_b32 v{X+2}, v{X+2}, v{xHH}        ; x ^ hh")
A(f"    v_lshlrev_b32 v{X+3}, 10, v{X}")
A(f"    v_lshl_add_u32 v{X+3}, v{X+1}, 7, v{X+3}")
A(f"    v_add_u32 v{X+3}, s{sSTG}, v{X+3}")
for s in range(4):
    A(f"    v_xor_b32 v{vHBA[s]}, {2*s}, v{X+2}")
    A(f"    v_lshl_add_u32 v{vHBA[s]}, v{vHBA[s]}, 4, v{X+3}")
A(f"    v_lshl_add_u32 v{vEAR}, v{xE32}, 5, v{xH16}")
A(f"    v_add_u32 v{vEAR}, s{sSTG}, v{vEAR}")
A(f"    v_add_u32 v{vEAR}, 4096, v{vEAR}")
for j in range(4):
    A(f"    v_mov_b32 v{X+8+j}, 0")
A(f"    ds_write_b128 v{xL16}, {vr(X+8,4)} offset:{L_Z}")
A("    v_cmp_gt_u32 vcc, 32, v0")
A("    s_and_saveexec_b64 s[48:49], vcc")
A(f"    v_mul_u32_u24 v{X}, {ID_RS}, v0")
for j in range(5):
    A(f"    ds_write_b128 v{X}, {vr(X+8,4)} offset:{L_ID + 16*j}")
A(f"    v_lshrrev_b32 v{X+1}, 4, v0")
A(f"    v_lshl_add_u32 v{X}, v{X+1}, 5, v{X}")
A(f"    v_bfe_u32 v{X+1}, v0, 2, 1")
A(f"    v_lshl_add_u32 v{X}, v{X+1}, 4, v{X}")
A(f"    v_bfe_u32 v{X+1}, v0, 3, 1")
A(f"    v_lshl_add_u32 v{X}, v{X+1}, 3, v{X}")
A(f"    v_and_b32 v{X+1}, 3, v0")
A(f"    v_lshl_add_u32 v{X}, v{X+1}, 1, v{X}")
A("    v_cmp_gt_u32 vcc, 31, v0")
A("    s_and_b64 exec, exec, vcc")
A(f"    ds_write_b16 v{X}, v{vONE} offset:{L_ID}")
A("    s_mov_b64 exec, s[48:49]")
OWNE = int(os.environ.get("OWNE", "0"))
if F16:
    A(f"    v_mov_b32 v{vONE}, 0x3c00")
if OWNE == 1:
    own_loads()
T_ = X + 4
A(f"    s_lshl_b32 s3, s{sW}, 2")
A(f"    s_add_u32 s3, s3, {L_TB}")
A(f"    v_lshl_add_u32 v{X}, v{xLANE}, 5, s3")
A(f"    s_lshl_b32 s{sLB}, s{sW}, 11")
A(f"    s_mov_b32 s{sBASE}, 0")
A("    s_mov_b32 s96, 0")
sFAST = 77
F_, L_, DF, BS = SEG, SEG + 4, SEG + 8, X + 36
A(f"    v_lshrrev_b32 v{X+3}, 4, v{xLANE}")
A(f"    s_lshl_b32 s3, s{sW}, 8")
A(f"    s_add_u32 s3, s3, {L_TB}")
A(f"    v_lshl_add_u32 v{X+1}, v{X+3}, 11, s3")
A(f"    v_mul_u32_u24 v{X+2}, {C*8}, v{X+3}")
A(f"    v_and_b32 v{X+3}, 15, v{xLANE}")
A(f"    v_lshl_add_u32 v{X+2}, v{X+3}, 4, v{X+2}")
A(f"    s_mul_i32 s3, s{sW}, {32*C*8}")
A(f"    v_add_u32 v{X+2}, s3, v{X+2}")
A(f"    v_lshlrev_b32 v{X+3}, 5, v{xLANE}")
A(f"    v_add_u32 v{X+3}, {L_TB}, v{X+3}")
A(f"    s_lshl_b32 s4, s{sW}, 13")
A(f"    s_add_u32 s4, s4, {L_RAW}")
STAMP(2)
A(f"    s_waitcnt vmcnt({NOWN if OWNE == 1 else 0}) lgkmcnt(0)")
STAMP(2)
A("    s_barrier")
STAMP(0)
RMASK = int(os.environ.get("RMASK", "1"))
if not RMASK:
    for i in range(8):
        A(f"    ds_read_b32 v{DF+i}, v{X+1} offset:{32*i}")
    for j in range(4):
        A(f"    ds_read_b32 v{T_+j}, v{X} offset:{2048*j}")
    for i in range(8):
        A(f"    s_add_u32 m0, s4, {1024*i}")
        A(f"    s_mov_b32 s3, {4*C*8*i}")
        A(f"    s_waitcnt lgkmcnt({11-i})")
        A(f"    v_and_b32 v{DF+i}, 0xfffe, v{DF+i}")
        A(f"    v_lshl_add_u32 v{DF+i}, v{DF+i}, 3, v{X+2}")
        A(f"    buffer_load_dwordx4 v{DF+i}, s[{S_WS}:{S_WS+3}], s3 offen lds")
else:
    for i in range(8):
        A(f"    ds_read2_b32 v[{DF+2*i}:{DF+2*i+1}], v{X+1} offset0:{8*i} offset1:{8*i+7}")
    for j in range(4):
        A(f"    ds_read_b32 v{T_+j}, v{X} offset:{2048*j}")
    A(f"    v_and_b32 v{BS}, 15, v{xLANE}")
    A(f"    v_lshlrev_b32 v{BS}, 1, v{BS}              ; 2p")
    A(f"    v_mov_b32 v{BS+1}, -16")
    for i in range(8):
        f, l = DF + 2 * i, DF + 2 * i + 1
        A(f"    s_add_u32 m0, s4, {1024*i}")
        A(f"    s_mov_b32 s3, {4*C*8*i}")
        A(f"    s_waitcnt lgkmcnt({11-i})")
        A(f"    v_and_b32 v{f}, 0xfffe, v{f}")
        A(f"    v_add_u32_sdwa v{l}, v{l}, v{l} dst_sel:DWORD dst_unused:UNUSED_PAD src0_sel:WORD_0 src1_sel:WORD_1")
        A(f"    v_sub_u32 v{l}, v{l}, v{f}")
        A(f"    v_cmp_lt_i32 vcc, v{BS}, v{l}")
        A(f"    v_lshl_add_u32 v{f}, v{f}, 3, v{X+2}")
        A(f"    s_nop 0")
        A(f"    v_cndmask_b32 v{f}, v{BS+1}, v{f}, vcc")
        A(f"    buffer_load_dwordx4 v{f}, s[{S_WS}:{S_WS+3}], s3 offen lds")
for j in range(4):
    A(f"    ds_read2_b32 v[{F_+2*j}:{F_+2*j+1}], v{X+3} offset0:0 offset1:7")
    if j < 3:
        A(f"    v_add_u32 v{X+3}, 2048, v{X+3}")
if not OWNE:
    own_loads()
STAMP(2)
A(f"    v_cmp_gt_u32 vcc, 62, v{xLANE}")
A(f"    v_cmp_gt_u32 s[48:49], 63, v{xLANE}")
A(f"    v_lshlrev_b32 v{X}, 7, v{xLANE}")
A("    s_waitcnt lgkmcnt(0)")
for j in range(4):
    f, l = F_ + 2 * j, F_ + 2 * j + 1
    A(f"    v_and_b32 v{f}, 0xfffe, v{f}")
    A(f"    v_lshrrev_b32 v{X+1}, 16, v{l}")
    A(f"    v_and_b32 v{l}, 0xffff, v{l}")
    A(f"    v_add_u32 v{l}, v{l}, v{X+1}")
    A(f"    v_sub_u32 v{l}, v{l}, v{f}")
    A(f"    v_cndmask_b32 v{l}, 0, v{l}, {'s[48:49]' if j < 2 else 'vcc'}")
    A(f"    v_sub_u32 v{BS+j}, v{X}, v{f}")
    A(f"    v_add_u32 v{BS+j}, {32*j + L_RAW//8}, v{BS+j}")
A(f"    v_max_u32 v{F_+1}, v{F_+1}, v{F_+3}")
A(f"    v_max3_u32 v{F_+1}, v{F_+1}, v{F_+5}, v{F_+7}")
A(f"    v_cmp_lt_u32 vcc, {int(os.environ.get('WIN', '32'))}, v{F_+1}")
A(f"    s_mov_b32 s{sFAST}, {L_Z}")
A("    s_cmp_eq_u64 vcc, 0")
A("    s_cbranch_scc1 LM_round")
A("LM_slowbase:")
A(f"    s_mov_b32 s{sFAST}, -128")
A(f"    v_mul_u32_u24 v{BS}, {4*C}, v{xLANE}")
for j in range(1, 4):
    A(f"    v_add_u32 v{BS+j}, {j*C}, v{BS}")
A("LM_round:")
CN, SM, PP, DL, MK = X + 8, X + 12, X + 16, X + 20, X + 24
xMKA, xI = X + 32, X + 33
A(f"    v_lshl_add_u32 v{xMKA}, v{xLANE}, 5, s{sLB}")
for j in range(4):
    A(f"    v_mov_b32 v{MK+j}, 0")
A(f"    ds_write_b128 v{xMKA}, {vr(MK,4)} offset:{L_W1}")
A(f"    ds_write_b128 v{xMKA}, {vr(MK,4)} offset:{L_W1+16}")
A(f"    v_cmp_gt_u32 vcc, 62, v{xLANE}")
A(f"    v_cmp_gt_u32 s[48:49], 63, v{xLANE}")
A("    s_nop 0")
A(f"    v_cndmask_b32 v{T_+2}, 0, v{T_+2}, vcc")
A(f"    v_cndmask_b32 v{T_+3}, 0, v{T_+3}, vcc")
A(f"    v_cndmask_b32 v{T_}, 0, v{T_}, s[48:49]")
A(f"    v_cndmask_b32 v{T_+1}, 0, v{T_+1}, s[48:49]")
for k in range(4):
    A(f"    v_lshrrev_b32 v{CN+k}, 16, v{T_+k}")
for k in range(4):
    A(f"    v_and_b32 v{T_+k}, 0xffff, v{T_+k}")
A(f"    v_add_u32 v{SM}, v{CN}, v{CN+1}")
A(f"    v_add_u32 v{SM+1}, v{SM}, v{CN+2}")
A(f"    v_add_u32 v{SM+2}, v{SM+1}, v{CN+3}")
A(f"    v_mov_b32 v{SM+3}, v{SM+2}")
wave_scan(SM + 3)
A(f"    v_readlane_b32 s{sT}, v{SM+3}, 63")
A(f"    v_sub_u32 v{PP}, v{SM+3}, v{SM+2}")
A(f"    v_add_u32 v{PP+1}, v{PP}, v{CN}")
A(f"    v_add_u32 v{PP+2}, v{PP}, v{SM}")
A(f"    v_add_u32 v{PP+3}, v{PP}, v{SM+1}")
for k in range(4):
    A(f"    v_add_u32 v{DL+k}, v{BS+k}, v{T_+k}")
    A(f"    v_sub_u32 v{DL+k}, v{DL+k}, v{PP+k}")
A(f"    s_add_u32 s3, s{sLB}, {L_W1}")
A(f"    s_add_u32 s4, s{sLB}, {L_W0}")
A(f"    v_mov_b32 v{SM+1}, s4")
for k in range(4):
    A(f"    v_subrev_u32 v{PP+k}, s{sBASE}, v{PP+k}     ; q")
    A(f"    v_add_u32 v{CN+k}, v{CN+k}, v{PP+k}         ; e")
    A(f"    v_max_i32 v{PP+k}, 0, v{PP+k}")
    A(f"    v_min_i32 v{CN+k}, {CAP}, v{CN+k}")
    A(f"    v_cmp_lt_i32 vcc, v{PP+k}, v{CN+k}")
    A(f"    v_lshl_add_u32 v{PP+k}, v{PP+k}, 2, s3")
    A("    s_nop 0")
    A(f"    v_cndmask_b32 v{PP+k}, v{SM+1}, v{PP+k}, vcc")
    A(f"    ds_write_b32 v{PP+k}, v{DL+k}")
A(f"    ds_read_b128 {vr(MK,4)}, v{xMKA} offset:{L_W1}")
A(f"    ds_read_b128 {vr(MK+4,4)}, v{xMKA} offset:{L_W1+16}")
xEM, xNEG = X + 34, X + 35
A(f"    v_lshl_add_u32 v{xI}, v{xLANE}, 3, s{sBASE}")
A(f"    v_mov_b32 v{xNEG}, s{sFAST}")
A(f"    v_mov_b32 v{xEM}, 0")
A("    s_waitcnt lgkmcnt(0)")
for k in range(1, 8):
    A(f"    v_max_u32 v{MK+k}, v{MK+k}, v{MK+k-1}")
A("    s_nop 1")
A(f"    v_mov_b32_dpp v{xEM}, v{MK+7} wave_shr:1 row_mask:0xf bank_mask:0xf")
for sh in (1, 2, 4, 8):
    A("    s_nop 1")
    A(f"    v_max_u32_dpp v{xEM}, v{xEM}, v{xEM} row_shr:{sh} row_mask:0xf bank_mask:0xf bound_ctrl:0")
A("    s_nop 1")
A(f"    v_max_u32_dpp v{xEM}, v{xEM}, v{xEM} row_bcast:15 row_mask:0xa bank_mask:0xf")
A("    s_nop 1")
A(f"    v_max_u32_dpp v{xEM}, v{xEM}, v{xEM} row_bcast:31 row_mask:0xc bank_mask:0xf")
RR, W0C, W1C = X, X + 16, X + 24
NS = 8
for k in range(NS):
    A(f"    s_sub_u32 s3, s{sT}, {k}")
    A(f"    v_max_u32 v{MK+k}, v{MK+k}, v{xEM}")
    A(f"    v_cmp_gt_i32 vcc, s3, v{xI}")
    A(f"    v_add_u32 v{MK+k}, v{MK+k}, v{xI}")
    A(f"    v_lshlrev_b32 v{MK+k}, 3, v{MK+k}")
    A(f"    v_cndmask_b32 v{MK+k}, v{xNEG}, v{MK+k}, vcc")
A(f"    s_cmp_ge_i32 s{sFAST}, 0")
A("    s_cbranch_scc1 LM_fast1")
for k in range(NS):
    A(f"    buffer_load_dwordx2 {vr(RR+2*k,2)}, v{MK+k}, s[{S_WS}:{S_WS+3}], 0 offen offset:{8*k}")
A("LM_fast1:")
A(f"    s_sub_u32 s{sCNT}, s{sT}, s{sBASE}")
A(f"    s_min_u32 s{sCNT}, s{sCNT}, {CAP}")
A(f"    s_add_u32 s3, s{sCNT}, 31")
A(f"    s_lshr_b32 s{sNT}, s3, 5               ; ntiles")
RG = W0C
A(f"    v_and_b32 v{RG}, 7, v{xE32}")
A(f"    v_lshrrev_b32 v{RG+1}, 3, v{xE32}")
A(f"    v_lshl_add_u32 v{RG}, v{RG}, 2, v{RG+1}     ; p(e)")
A(f"    v_lshl_add_u32 v{vL0E}, v{RG}, 2, s{sLB}")
A(f"    v_lshrrev_b32 v{RG}, 3, v{xLANE}")
A(f"    v_lshl_add_u32 v{vL0D}, v{RG}, 4, s{sLB}")
A(f"    v_bfe_u32 v{RG}, v{xLANE}, 1, 3            ; (l/2)%8")
A(f"    v_lshrrev_b32 v{RG+1}, 4, v{xLANE}         ; (l/2)/8")
A(f"    v_lshl_add_u32 v{RG}, v{RG}, 2, v{RG+1}")
A(f"    v_lshl_add_u32 v{vL1P}, v{RG}, 2, s{sLB}")
A(f"    s_lshl_b32 s3, s{sW}, 7")
A(f"    s_add_u32 s3, s3, {L_PS}")
A(f"    s_sub_u32 s3, s3, s{sLB}")
A(f"    v_add_u32 v{RG}, s3, v{vL0E}")
A(f"    v_add_u32 v{RG+1}, s{sNODE}, v{xE32}")
A(f"    v_lshlrev_b32 v{RG+1}, 7, v{RG+1}")
A(f"    ds_write_b32 v{RG}, v{RG+1}")
A(f"    s_lshl_b32 s4, s{sNT}, 7")
A(f"    s_sub_u32 s3, s3, s4")
A(f"    s_sub_u32 s{sDEL}, s3, {L_W0}")
A(f"    s_add_u32 s3, s{sBASE}, {CAP}")
A(f"    s_cmp_ge_u32 s3, s{sT}")
A(f"    s_cselect_b32 s{sTAIL}, {1 if FT else 0}, 0")
A(f"    s_cmp_ge_u32 s{sNT}, 2")
A(f"    s_cselect_b32 s{sTAIL}, s{sTAIL}, 0")
A(f"    s_cmp_lg_u32 s{sBASE}, 0")
A("    s_cbranch_scc1 LM_noat")
A(f"    v_add_u32 v{RG}, {L_WF}, v{xL16}")
for f in range(8):
    A(f"    ds_read_b128 {vr(ACC+4*f,4)}, v{RG} offset:{1024*f}")
for f in range(10):
    A(f"    ds_read_b128 {vr(WSF+4*f,4)}, v{RG} offset:{8192+1024*f}")
for f in range(4):
    A(f"    ds_read_b128 {vr(WX+4*f,4)}, v{RG} offset:{8192+1024*(10+f)}")
A(f"    ds_read_b64 {vr(EA,2)}, v{RG} offset:{8192+1024*14}")
A(f"    s_waitcnt vmcnt({0 if OWNE else NOWN}) lgkmcnt(0)")
A("    s_barrier")
STAMP()
if OWNE == 2:
    own_loads(SEG + 24)
A("LM_noat:")
A(f"    s_cmp_ge_i32 s{sFAST}, 0")
A("    s_cbranch_scc1 LM_fast2")
A("    s_waitcnt vmcnt(0)")
A("    s_branch LM_recs")
A("LM_fast2:")
for k in range(NS):
    A(f"    ds_read_b64 {vr(RR+2*k,2)}, v{MK+k} offset:{8*k}")
A("LM_recs:")
if not PH:
    A(f"    v_mov_b32 v{xNEG}, {PADNB}")
    for k in range(NS):
        A(f"    s_sub_u32 s3, s{sT}, {k}")
        A(f"    v_cmp_gt_i32 vcc, s3, v{xI}")
        A(f"    s_waitcnt lgkmcnt({NS-1-k})")
        A(f"    v_mov_b32 v{W1C+k}, v{RR+2*k+1}")
        A(f"    v_cndmask_b32 v{W0C+k}, v{xNEG}, v{RR+2*k}, vcc")
    A(f"    ds_write_b128 v{xMKA}, {vr(W0C,4)} offset:{L_W0}")
    A(f"    ds_write_b128 v{xMKA}, {vr(W0C+4,4)} offset:{L_W0+16}")
    A(f"    ds_write_b128 v{xMKA}, {vr(W1C,4)} offset:{L_W1}")
    A(f"    ds_write_b128 v{xMKA}, {vr(W1C+4,4)} offset:{L_W1+16}")
else:
    FS = (64, 66, 68, 70, 72, 74, 78, 80)
    RK = SO
    SC, BA, BB, TB = BS, BS + 1, BS + 2, BS + 3
    TA = W1C
    A(f"    v_mov_b32 v{xNEG}, 0x{0x007fff80 | PADNB:x}")
    A(f"    s_mov_b32 s4, {TH << 7}")
    A(f"    v_mov_b32 v{RK}, 0")
    for k in range(NS):
        A(f"    s_sub_u32 s3, s{sT}, {k}")
        A(f"    v_cmp_gt_i32 vcc, s3, v{xI}")
        A(f"    s_waitcnt lgkmcnt({NS-1-k})")
        A(f"    s_nop 0")
        A(f"    v_cndmask_b32 v{W0C+k}, v{xNEG}, v{RR+2*k}, vcc")
        A(f"    v_cmp_le_u32 s[{FS[k]}:{FS[k]+1}], s4, v{W0C+k}")
        A(f"    s_nop 1")
        A(f"    v_addc_co_u32 v{RK+k+1 if k < 7 else BA}, vcc, v{RK+k}, 0, s[{FS[k]}:{FS[k]+1}]")
    A(f"    v_mov_b32 v{SC}, v{BA}")
    wave_scan(SC)
    A(f"    v_readlane_b32 s3, v{SC}, 63")
    A(f"    v_sub_u32 v{SC}, v{SC}, v{BA}        ; P")
    A(f"    s_sub_u32 s3, {CAP}, s3               ; N0")
    A(f"    s_lshl_b32 s3, s3, 2")
    A(f"    s_add_u32 s5, s{sLB}, {L_W0}")
    A(f"    s_add_u32 s3, s3, s5")
    A(f"    v_lshl_add_u32 v{BA}, v{SC}, 2, s3")
    A(f"    v_lshlrev_b32 v{BB}, 3, v{xLANE}")
    A(f"    v_sub_u32 v{BB}, v{BB}, v{SC}")
    A(f"    v_lshl_add_u32 v{BB}, v{BB}, 2, s5")
    assert L_W1 - L_W0 == 64 * 256
    for k in range(NS):
        A(f"    v_lshl_add_u32 v{TA+k}, v{RK+k}, 2, v{BA}")
        A(f"    v_sub_u32 v{TB}, {k}, v{RK+k}")
        A(f"    v_lshl_add_u32 v{TB}, v{TB}, 2, v{BB}")
        A(f"    v_cndmask_b32 v{TA+k}, v{TB}, v{TA+k}, s[{FS[k]}:{FS[k]+1}]")
        A(f"    ds_write2st64_b32 v{TA+k}, v{W0C+k}, v{RR+2*k+1} offset0:0 offset1:64")
A(f"    s_cmp_lg_u32 s{sBASE}, 0")
A("    s_cbranch_scc1 LM_nob3")
A("    s_barrier")
A("LM_nob3:")
STAMP()
def at_block():
    A(f"    v_mov_b32 v{RG+2}, 0")
    A(f"    v_mov_b32 v{RG+3}, 0")
    A(f"    v_lshl_add_u32 v{RG}, v{xHH}, 5, v{vSWL}")
    for j in range(4):
        A(f"    ds_write_b64 v{RG}, {vr(RG+2,2)} offset:{8*j}")
    for t in range(2):
        for s_ in range(4):
            c = "0" if s_ == 0 else vr(SEG+16*t,16)
            A(f"    v_mfma_f32_32x32x16_bf16 {vr(SEG+16*t,16)}, {vr(HB+4*s_,4)}, {vr(ACC+4*(2*s_+t),4)}, {c}")
    A(f"    v_lshl_add_u32 v{RG}, v{xE32}, 4, s{sPAB}")
    A(f"    v_mov_b32 v{PD+2}, v{PD+1}")
    A(f"    v_and_b32 v{PD+1}, s{sHI}, v{PD}")
    A(f"    v_lshlrev_b32 v{PD}, 16, v{PD}")
    A(f"    ds_write_b96 v{RG}, {vr(PD,3)}")
    for j in range(4):
        A(f"    v_mov_b32 v{PAC+j}, 0")
    A(f"    s_mov_b32 s3, 0x{LOG2E:08x}")
    A("    s_nop 7")
    for r in range(32):
        A(f"    v_mul_f32 v{SEG+r}, s3, v{SEG+r}")
    for t in range(2):
        for u in range(2):
            for j in range(4):
                A(f"    v_cvt_pk_bf16_f32 v{atf(u,t)+j}, v{SEG+16*t+8*u+2*j}, v{SEG+16*t+8*u+2*j+1}")
        A(f"    v_bfi_b32 v{atf(1,t)+3}, v{vMASK}, v{EA+t}, v{atf(1,t)+3}")
    for r in range(32):
        A(f"    v_mov_b32 v{SEG+r}, 0")


def V(t): return ('v', t, None)
def M(t): return ('m', t, None)
def DS(t, tag=None): return ('ds', t, tag)
def VM(t): return ('vm', t, None)
def S(t): return ('s', t, None)
def WL(tag): return ('wl', None, tag)
def WV(n): return ('s', f"s_waitcnt vmcnt({n})", None)

def mf(d, a, b, c0=False, ty="bf16"):
    return M(f"v_mfma_f32_32x32x16_{ty} {vr(d,16)}, {vr(a,4)}, {vr(b,4)}, {'0' if c0 else vr(d,16)}")
def chain(t):
    d = ACC + 16 * t
    l = [mf(d, wsf(s, t), HB + 4 * s, s == 0) for s in range(4)]
    l.append(mf(d, WAE + 4 * t, EA))
    l += [mf(d, atf(u, t), SO + 4 * u) for u in range(2)]
    return l
def seg(t, s):
    return mf(SEG + 16 * t, TRM + 4 * s, TRS + 4 * s, ty=MT)
def csm(t, u):
    c = '0' if (t == 0 and u == 0) else vr(CS, 4)
    return M(f"v_mfma_f32_16x16x32_{MT} {vr(CS,4)}, {vr(WX+8*t+4*u,4)}, {vr(PK+8*t+4*u,4)}, {c}")
def list_reads(k):
    return [DS(f"ds_read_b128 {vr(W0D,4)}, v{vL0D} offset:{L_W0 + 128*k}"),
            DS(f"ds_read_b32 v{vW1P}, v{vL1P} offset:{L_W1 + 128*k}"),
            DS(f"ds_read_b32 v{vW0E3}, v{vL0E} offset:{L_W0 + 128*k}", 'L3')]
def list_reads_loop(par):
    k = par + 3
    return [S(f"s_cmp_eq_u32 s{sNT}, 2"), S(f"s_cselect_b32 s{sINC}, s{sDEL}, 128"),
            V(f"v_add_u32 v{vL0D}, s{sINC}, v{vL0D}"),
            DS(f"ds_read_b128 {vr(W0D,4)}, v{vL0D} offset:{L_W0 + 256}"),
            DS(f"ds_read_b32 v{vW1P}, v{vL1P} offset:{L_W1 + 128*k}"),
            DS(f"ds_read_b32 v{vW0E3}, v{vL0E} offset:{L_W0 + 128*k}", 'L3')]
def srd_ops():
    return [S(f"s_cmp_lt_u32 s{sNT}, 4"), S(f"s_cselect_b32 s{sTMP}, 0, {N*128}"),
            S(f"s_cselect_b32 s{S_EA+2}, 0, s{S_EA+2}"), S(f"s_cselect_b32 s{S_P4+2}, 0, s{S_P4+2}"),
            S(f"s_cmp_eq_u32 s{sNT}, 2"), S(f"s_cselect_b32 s{S_H+2}, {N*128}, s{sTMP}")]
def dma_addr():
    l = [V(f"v_and_or_b32 v{W0D+i}, v{W0D+i}, s{sAM}, v{vSWZ[i&1]}") for i in range(4)]
    if os.environ.get("HOTEA"):
        l.append(V(f"v_and_or_b32 v{vW1P}, v{vW1P}, s{sHOT}, v{vEAO}"))
    else:
        l.append(V(f"v_add_u32 v{vW1P}, v{vW1P}, v{vEAO}"))
    l.append(V(f"v_bfe_u32 v{vW0E3}, v{vW0E3}, 7, 16"))
    return l
def dma_pairs(q):
    l = []
    for i in range(4):
        l.append((S(f"s_add_u32 m0, s{sSTG}, {q*ST_SZ + i*1024}"),
                  VM(f"buffer_load_dwordx4 v{W0D+i}, s[{S_H}:{S_H+3}], 0 offen lds")))
    l.append((S(f"s_add_u32 m0, s{sSTG}, {q*ST_SZ + 4096}"),
              VM(f"buffer_load_dwordx4 v{vW1P}, s[{S_EA}:{S_EA+3}], 0 offen{EANT} lds")))
    pos = [S(f"s_mov_b64 exec, s[{sHIGH}:{sHIGH+1}]"),
           VM(f"buffer_load_dwordx2 {vr(PS[q],2)}, v{vW0E3}, s[{S_P4}:{S_P4+3}], s{sP4O} idxen"),
           S("s_mov_b64 exec, -1")]
    return l, pos
def stage_reads(q):
    l = [DS(f"ds_read_b128 {vr(HB+4*s,4)}, v{vHBA[s]} offset:{q*ST_SZ}") for s in range(4)]
    l.append(DS(f"ds_read_b128 {vr(EA,4)}, v{vEAR} offset:{q*ST_SZ}"))
    return l
def nb_ops(q):
    return [V(f"v_and_b32 v{vNB}, 31, v{vW0E}"),
            V(f"v_mad_u32_u24 v{vW0E}, v{vNB}, s{sIDRS}, v{vIDB}"),
            V(f"v_lshl_add_u32 v{PD}, v{vNB}, 4, s{sPAB}")]
def so_reads(q):
    return [DS(f"ds_read_b128 {vr(SO,4)}, v{vW0E}"),
            DS(f"ds_read_b128 {vr(SO+4,4)}, v{vW0E} offset:32"),
            DS(f"ds_read_b96 {vr(PD,3)}, v{PD}", 'PD')]
def pre_ops(q):
    d = DX[q]; p = PS[q]
    return [V(f"v_sub_f32 v{PD}, v{PD}, v{p+2}"),
            V(f"v_sub_f32 v{PD+1}, v{PD+1}, v{p}"),
            V(f"v_sub_f32 v{PD+2}, v{PD+2}, v{p+1}"),
            V(f"v_cvt_pk_bf16_f32 v{PD}, v{PD}, v{PD+1}"),
            V(f"v_cvt_pk_bf16_f32 v{PD+2}, v{PD+2}, v{PD+2}"),
            V(f"v_lshlrev_b32 v{d}, 16, v{PD}"),
            V(f"v_and_b32 v{d+1}, s{sHI}, v{PD}"),
            V(f"v_lshlrev_b32 v{d+2}, 16, v{PD+2}"),
            V(f"v_mul_f32 v{PD+1}, v{d}, v{d}"),
            V(f"v_fma_f32 v{PD+1}, v{d+1}, v{d+1}, v{PD+1}"),
            V(f"v_fma_f32 v{PD+1}, v{d+2}, v{d+2}, v{PD+1}"),
            V(f"v_cvt_pk_bf16_f32 v{PD+1}, v{PD+1}, v{PD+1}"),
            V(f"v_bfi_b32 v{SO+7}, v{vMASK}, v{PD+1}, v{SO+7}")]
def unp_ops(q):
    p = PS[q]
    return [V(f"v_lshlrev_b32 v{p+2}, 16, v{p}"),
            V(f"v_and_b32 v{p}, s{sHI}, v{p}")]
def post_ops(q):
    d = DX[q]
    va = [V(f"v_mul_f32 v{CS}, s{sLN2}, v{CS}"),
          V(f"v_cvt_pk_bf16_f32 v{CS}, v{CS}, v{CS}"),
          V(f"v_and_b32 v{CS}, s{sHI}, v{CS}"),
          V(f"v_mul_f32 v{d}, v{d}, v{CS}"),
          V(f"v_mul_f32 v{d+1}, v{d+1}, v{CS}"),
          V(f"v_mul_f32 v{d+2}, v{d+2}, v{CS}"),
          V(f"{CVT} v{CS+2}, v{d}, v{d+1}"),
          V(f"{CVT} v{CS+3}, v{d+2}, v{d+2}")]
    da = [S(f"s_mov_b64 exec, s[{sHIGH}:{sHIGH+1}]"),
          DS(f"ds_write_b64 v{vSWL}, {vr(CS+2,2)} offset:64"),
          S("s_mov_b64 exec, -1")]
    da += [DS(f"ds_read_b64_tr_b16 {vr(TRM+4*s+2*p,2)}, v{vTRP} offset:{(4*s+p)*MS_RS}", 'TRP' if (s, p) == (1, 1) else None)
           for s in range(2) for p in range(2)]
    pm = [M(f"v_mfma_f32_16x16x32_{MT} {vr(PAC,4)}, {vr(TRM+4*s,4)}, {vr(TRS+4*s,4)}, {vr(PAC,4)}") for s in range(2)]
    return va, da, pm
def m_write(t, qs):
    return [DS(f"ds_write_b64 v{vMWL}, {vr(PK+8*t+2*q,2)} offset:{16*q}") for q in qs]
def trm_reads(tag):
    l = [DS(f"ds_read_b64_tr_b16 {vr(TRM+4*s+2*p,2)}, v{vTRL} offset:{(4*s+p)*MS_RS}") for s in range(2) for p in range(2)]
    l[-1] = (l[-1][0], l[-1][1], tag)
    return l
def trs_reads():
    l = [DS(f"ds_read_b64_tr_b16 {vr(TRS+4*s+2*p,2)}, v{vTRL} offset:{(4*s+p)*MS_RS+64}") for s in range(2) for p in range(2)]
    l[-1] = (l[-1][0], l[-1][1], 'TRS')
    return l
SA_OP = V(f"v_lshl_add_u32 v{vSA}, v{vNB}, 1, v{vSWL}")

def silu_stream(t):
    a = ACC + 16 * t
    l = []
    if F16:
        LO = "dst_sel:WORD_0 dst_unused:UNUSED_PRESERVE src0_sel:WORD_0"
        HI = "dst_sel:WORD_1 dst_unused:UNUSED_PRESERVE src0_sel:WORD_1"
        for g in range(2):
            js = range(4)
            pk = lambda j: PK + 8 * t + 4 * g + j
            tm = lambda j: TMP + 4 * g + j
            l += [V(f"v_cvt_pk_f16_f32 v{pk(j)}, v{a+8*g+2*j}, v{a+8*g+2*j+1}") for j in js]
            l += [V(f"v_exp_f16 v{tm(j)}, v{pk(j)}") for j in js]
            l += [V(f"v_exp_f16_sdwa v{tm(j)}, v{pk(j)} {HI}") for j in js]
            l += [V(f"v_pk_add_f16 v{tm(j)}, v{tm(j)}, s{sONE2}") for j in js]
            l += [V(f"v_rcp_f16_sdwa v{tm(j)}, v{tm(j)} {LO}") for j in js]
            l += [V(f"v_rcp_f16_sdwa v{tm(j)}, v{tm(j)} {HI}") for j in js]
            l += [V(f"v_pk_mul_f16 v{pk(j)}, v{pk(j)}, v{tm(j)}") for j in js]
        return l
    for g in range(2):
        rs = range(8 * g, 8 * g + 8)
        l += [V(f"v_exp_f32 v{TMP+r%8}, v{a+r}") for r in rs]
        l += [V(f"v_add_f32 v{TMP+r%8}, 1.0, v{TMP+r%8}") for r in rs]
        l += [V(f"v_rcp_f32 v{TMP+r%8}, v{TMP+r%8}") for r in rs]
        l += [V(f"v_mul_f32 v{a+r}, v{a+r}, v{TMP+r%8}") for r in rs]
        l += [V(f"v_cvt_pk_bf16_f32 v{PK+8*t+4*g+j}, v{a+8*g+2*j}, v{a+8*g+2*j+1}") for j in range(4)]
    return l

def remap(p):
    g, r = divmod(p, 36)
    if r < 8: n = r
    elif r < 16: n = 8 + (r - 8) // 2
    elif r < 24: n = 12 + (r - 16)
    elif r < 32: n = 20 + (r - 24) // 2
    else: n = 24 + (r - 32)
    return 28 * g + n
def merge(main, side):
    res = []
    if F16:
        side = [((p * 28 + 35) // 36, o) for p, o in side]
    side = sorted(enumerate(side), key=lambda x: (x[1][0], x[0]))
    k = 0
    for i in range(len(main) + 1):
        while k < len(side) and side[k][1][0] <= i:
            ops = side[k][1][1]
            res += ops if isinstance(ops, list) else [ops]
            k += 1
        if i < len(main):
            res.append(main[i])
    assert k == len(side)
    return res

VMW = int(os.environ.get("VMW", "0"))
def wv6():
    if not VMW:
        return [WV(6)]
    l = [WV(6)] if VMW == 2 else []
    l += [S("s_memtime s[64:65]"), S("s_waitcnt lgkmcnt(0)"), WV(6), S("s_memtime s[66:67]"), S("s_waitcnt lgkmcnt(0)"),
          S("s_sub_u32 s64, s66, s64"), S("s_add_u32 s96, s96, s64")]
    return l
SPREAD = int(os.environ.get("SPREAD", "0"))
SPOS = [int(x) for x in os.environ.get("SPOS", "12,23,34,45,56,67").split(",")]
def phaseA(par):
    q = 1 - par
    ch = chain(1)
    pv, pd, pm = post_ops(q)
    nb = nb_ops(q)
    sd = [(0, DS(f"ds_read_b32 v{vW0E}, v{vL0E} offset:{L_W0 + 128*(par+1)}", 'W0E')),
          (0, ch[0]), (5, [WL('TRM1'), seg(1, 0)]), (8, ch[1]), (12, seg(1, 1)), (16, ch[2]),
          (20, csm(1, 0)), (24, ch[3]), (27, csm(1, 1)), (30, ch[4]),
          (36, m_write(0, (0, 1))), (36, ch[5]),
          (38, wv6() + stage_reads(q)), (42, ch[6]),
          (39, pv[0]), (40, pv[1]), (41, pv[2]), (43, pv[3]), (44, pv[4]), (45, pv[5]), (46, pv[6]), (47, [pv[7]] + pd),
          (48, [WL('W0E'), nb[0]]), (49, nb[1]), (50, nb[2]), (51, so_reads(q)),
          (53, unp_ops(q)[0]), (55, unp_ops(q)[1]),
          (64, [WL('TRP'), pm[0]]), (67, pm[1]),
          (60, DS(f"ds_write_b16 v{vSA}, v{vONE}")),
          (72, m_write(0, (2, 3)) + trm_reads('TRM0') + trs_reads() + [DS(f"ds_write_b16 v{vSA}, v{vZERO}")])]
    if SPREAD:
        sd += [(57, list_reads_loop(par))]
    if BAL:
        sd += [(2, V(f"v_mov_b32 v{W0D}, s{sNT}") if BAL == 1 else [S(f"s_sub_u32 s{sPUB}, s{sNT}, s{sBIAS}"), V(f"v_mov_b32 v{W0D}, s{sPUB}")]), (3, V(f"v_mov_b32 v{W0D+1}, s{sPGW}")),
               (4, V(f"v_mov_b32 v{W0D+2}, s{sPGR}")),
               (6, [DS(f"ds_write_b32 v{W0D+1}, v{W0D}"), DS(f"ds_read_b32 v{W0D+3}, v{W0D+2}", 'PG')]),
               (33, [WL('PG'), V(f"v_readfirstlane_b32 s{sPGP}, v{W0D+3}")]),
               (35, [S("s_setprio 0"), S(f"s_cmp_gt_u32 s{sNT}, s{sPGP}"), S(f"s_cbranch_scc0 LM_pg{par}"),
                     S("s_setprio 1"), S(f"LM_pg{par}:")])]
    return merge(silu_stream(0), sd)

def phaseB(par):
    q = 1 - par
    ch = chain(0)
    pr = pre_ops(q)
    da = dma_addr()
    dp, dpos = dma_pairs(q)
    sd = [(0, list_reads_loop(par)),
          (31, srd_ops()),
          (2, [WL('PD'), pr[0]]), (3, pr[1]), (4, pr[2]), (6, pr[3]), (7, pr[4]), (9, pr[5]), (10, pr[6]),
          (11, pr[7]), (13, pr[8]), (14, pr[9]), (15, pr[10]), (17, pr[11]), (18, pr[12]),
          (4, ch[0]), (8, [WL('TRS'), seg(0, 0)]), (12, ch[1]), (16, seg(0, 1)), (20, ch[2]),
          (23, csm(0, 0)), (27, ch[3]), (30, csm(0, 1)), (33, ch[4]),
          (36, m_write(1, (0, 1))), (19, SA_OP), (39, ch[5]), (46, ch[6]),
          (21, [WL('L3'), da[0]]), (22, da[1]), (24, da[2]), (25, da[3]), (26, da[4]), (28, da[5]),
          (39, dp[0][0]), (41, dp[0][1]), (43, dp[1][0]), (44, dp[1][1]), (47, dp[2][0]), (48, dp[2][1]),
          (49, dp[3][0]), (51, dp[3][1]), (52, dp[4][0]), (54, dp[4][1]), (56, dpos),
          (72, m_write(1, (2, 3)) + trm_reads('TRM1'))]
    if SPREAD:
        sd = [(0, srd_ops()),
          (2, [WL('L3'), pr[0]]), (3, pr[1]), (4, pr[2]), (6, pr[3]), (7, pr[4]), (13, pr[5]), (14, pr[6]),
          (15, pr[7]), (17, pr[8]), (18, pr[9]), (21, pr[10]), (22, pr[11]), (24, pr[12]),
          (4, ch[0]), (8, [WL('TRS'), seg(0, 0)]), (12, ch[1]), (16, seg(0, 1)), (20, ch[2]),
          (23, csm(0, 0)), (27, ch[3]), (30, csm(0, 1)), (33, ch[4]),
          (36, m_write(1, (0, 1))), (25, SA_OP), (39, ch[5]), (46, ch[6]),
          (5, da[0]), (9, da[1]), (10, da[2]), (11, da[3]), (26, da[4]), (28, da[5]),
          (72, m_write(1, (2, 3)) + trm_reads('TRM1'))]
        for i in range(5):
            sd += [(SPOS[i] - 2, dp[i][0]), (SPOS[i], dp[i][1])]
        sd += [(SPOS[5], dpos)]
    if par == 1 and not MB:
        sd += [(60, V(f"v_add_u32 v{vL0E}, 256, v{vL0E}")),
               (64, V(f"v_add_u32 v{vL1P}, 256, v{vL1P}"))]
    return merge(silu_stream(1), sd)

def resolve(body):
    n = len(body)
    res = []
    for i, op in enumerate(body):
        if op[0] != 'wl':
            res.append(op[1]); continue
        cnt = 0
        for d in range(1, n + 1):
            o = body[(i - d) % n]
            if o[0] == 'ds':
                if o[2] == op[2]:
                    break
                cnt += 1
        else:
            raise Exception("tag not found " + op[2])
        res.append(f"s_waitcnt lgkmcnt({min(cnt, 15)})")
    return res

def resolve_lin(body, start):
    res = []
    for i in range(start, len(body)):
        op = body[i]
        if op[0] != 'wl':
            res.append(op[1]); continue
        cnt = 0
        for d in range(1, i + 1):
            o = body[i - d]
            if o[0] == 'ds':
                if o[2] == op[2]:
                    break
                cnt += 1
        else:
            raise Exception("tag not found " + op[2])
        res.append(f"s_waitcnt lgkmcnt({min(cnt, 15)})")
    return res
eE32, eHH, eH16, eL16, eNODE, eSTO, ePOFF, eT = PS0, PS0 + 1, PS0 + 2, W0D, W0D + 1, W0D + 2, W0D + 3, PS1
def whreg(f):
    return WSF + 4 * f if f < 14 else SO + 4 * (f - 14)
WHORD = (8, 9, 10, 11, 12, 13, 14, 15, 0, 1, 2, 3, 4, 5, 6, 7)
def wh_pre():
    return [V(f"v_and_b32 v{eL16}, 63, v0"), V(f"v_lshlrev_b32 v{eL16}, 4, v{eL16}")] + \
           [S(f"s_mov_b32 s{sWH+j}, {WF_OFF + 24*1024 + 4096*j}") for j in range(4)]
def wh_load(f):
    return VM(f"buffer_load_dwordx4 {vr(whreg(f),4)}, v{eL16}, s[{S_WS}:{S_WS+3}], s{sWH + f//4} offen offset:{(f%4)*1024}")
def tailB(par):
    sd = [(0, wh_pre() + [S(f"s_mov_b32 s{sTMP}, {par*ST_SZ}")]),
          (8, [WL('TRS'), seg(0, 0)]), (16, seg(0, 1)), (23, csm(0, 0)), (30, csm(0, 1)),
          (36, m_write(1, (0, 1))),
          (52, [WV(16)] + stage_reads(par)[:4]),
          (72, m_write(1, (2, 3)) + trm_reads('TRM1'))]
    for i, f in enumerate(WHORD):
        sd.append((2 + 2 * i + (0 if i < 3 else 2), wh_load(f)))
    return merge(silu_stream(1), sd)
def emit(ops):
    for o in ops:
        assert o[0] != 'wl'
        A("    " + o[1])
def emit_dma(q):
    dp, dpos = dma_pairs(q)
    for a, b in dp:
        emit([a, S("s_nop 0"), b])
    emit(dpos)

fill_start = len(out)
A(f"    s_cmp_lg_u32 s{sNT}, 0")
A("    s_cbranch_scc1 LM_g01")
A("    s_waitcnt vmcnt(0)")
A("    s_branch LM_nog")
A("LM_g01:")
for k in range(2):
    emit(list_reads(k))
    A("    s_waitcnt lgkmcnt(0)")
    emit(dma_addr())
    emit_dma(k)
A("LM_nog:")
A(f"    s_cmp_lg_u32 s{sBASE}, 0")
A("    s_cbranch_scc1 LM_noat2")
A("    s_waitcnt vmcnt(12)")
at_block()
A("LM_noat2:")
A(f"    s_cmp_eq_u32 s{sNT}, 0")
A("    s_cbranch_scc1 LM_tiles_done")
A(f"    ds_read_b32 v{vW0E}, v{vL0E} offset:{L_W0}")
emit(list_reads(2))
for r in list(range(TRM, TRM + 16)) + list(range(PK + 8, PK + 16)) + list(range(CS, CS + 4)) + list(range(DX[1], DX[1] + 3)):
    A(f"    v_mov_b32 v{r}, 0")
A("    s_waitcnt lgkmcnt(0)")
emit(nb_ops(0))
emit([SA_OP])
emit(dma_addr())
A("    s_waitcnt vmcnt(6)")
emit(stage_reads(0))
emit(so_reads(0))
emit(unp_ops(0))
A("    s_waitcnt lgkmcnt(0)")
emit(pre_ops(0))
emit_dma(0)
emit(chain(0))
A("    s_nop 15")
if MB:
    A(f"    s_mov_b32 s{sNT}, 400")
    STAMP()
HALF = None
body = []
marks = []
for par in range(2):
    body += phaseA(par)
    body.append(('br', 2 + par, None))
    body += phaseB(par)
    body.append(('br', par, None))
XF = os.environ.get("XF", "").split(",")
def keep(o):
    if o[0] in ('br', 'wl'): return True
    t = o[1]
    if 'nodma' in XF and o[0] == 'vm': return False
    if 'noea' in XF and o[0] == 'vm' and f"s[{S_EA}:" in t: return False
    if 'noh' in XF and o[0] == 'vm' and f"s[{S_H}:" in t: return False
    if 'nopos' in XF and o[0] == 'vm' and f"s[{S_P4}:" in t: return False
    if 'noadd' in XF and t.startswith('ds_add'): return False
    if 'nomw' in XF and t.startswith('ds_write'): return False
    if 'notrans' in XF and (t.startswith('v_exp') or t.startswith('v_rcp')): return False
    if 'novalu' in XF and o[0] == 'v': return False
    if 'nomfma' in XF and o[0] == 'm': return False
    if 'nods' in XF and o[0] == 'ds' and o[2] is None: return False
    return True
body = [o for o in body if keep(o)]
flat = [o for o in body if o[0] != 'br']
txt = resolve(flat)
A("LM_loop:")
k = 0
loop_lines = []
for o in body:
    if o[0] == 'br':
        l = [f"s_sub_u32 s{sNT}, s{sNT}, 1"]
        if o[1] >= 2:
            l = [f"s_cmp_eq_u32 s{sNT}, s{sTAIL}", f"s_cbranch_scc1 LM_tail{o[1]-2}"]
        elif o[1] == 0:
            l += [f"s_cmp_eq_u32 s{sNT}, 0", "s_cbranch_scc1 LM_drain0"]
        else:
            l += [f"s_cmp_lg_u32 s{sNT}, 0", "s_cbranch_scc1 LM_loop"]
        for x in l:
            A("    " + x); loop_lines.append(x)
    else:
        A("    " + txt[k]); loop_lines.append(txt[k]); k += 1
def drain(par):
    l = [S("s_waitcnt lgkmcnt(0)"), seg(1, 0), seg(1, 1), csm(1, 0), csm(1, 1), S("s_nop 9")]
    pv, pd, pm = post_ops(par)
    return l + pv + pd + [S("s_waitcnt lgkmcnt(0)")] + pm
tail_txt = {}
for par in range(2):
    pre = phaseA(1 - par) + phaseB(1 - par) + phaseA(par)
    pre = [o for o in pre if keep(o)]
    tl = [o for o in tailB(par) if keep(o)]
    tail_txt[par] = resolve_lin(pre + tl, len(pre)) + [o[1] for o in drain(par)]
emit(drain(1))
A("    s_branch LM_tiles_done")
for par in range(2):
    A(f"LM_tail{par}:")
    for x in tail_txt[par]:
        A("    " + x)
    A("    s_branch LM_epif")
A("LM_drain0:")
emit(drain(0))
A("LM_tiles_done:")
A(f"    s_mov_b32 s{S_H+2}, {N*128}")
A(f"    s_mov_b32 s{S_EA+2}, {E*32}")
A(f"    s_mov_b32 s{S_P4+2}, {N}")
errs = lint(out[fill_start:out.index("LM_loop:")] + loop_lines + loop_lines + [o[1] for o in drain(1)], "loop")
half = loop_lines.index("s_cbranch_scc1 LM_drain0") + 1
errs += lint(loop_lines[:half] + [o[1] for o in drain(0)], "drain0")
for par in range(2):
    cut = loop_lines.index(f"s_cbranch_scc1 LM_tail{par}") + 1
    errs += lint(loop_lines + loop_lines[:cut] + tail_txt[par], f"tail{par}")
for e in errs:
    print("LINT", e)
nv = sum(1 for l in loop_lines if l.startswith("v_") and not l.startswith("v_mfma"))
print("loop: instrs", len(loop_lines), "valu", nv, "per tile", nv / 2)

A("    s_waitcnt vmcnt(0) lgkmcnt(0)")
A(f"    s_add_u32 s{sBASE}, s{sBASE}, {CAP}")
A(f"    s_cmp_ge_u32 s{sBASE}, s{sT}")
A("    s_cbranch_scc1 LM_epi")
lane_consts()
A(f"    s_lshl_b32 s3, s2, 13")
A(f"    s_lshl_b32 s4, s{sW}, 2")
A(f"    s_add_u32 s3, s3, s4")
A(f"    s_add_u32 s3, s3, {TBL_OFF}")
A(f"    v_lshlrev_b32 v{X}, 5, v{xLANE}")
A(f"    v_add_u32 v{X+1}, 4096, v{X}")
for j in range(4):
    A(f"    buffer_load_dword v{T_+j}, v{X+j//2}, s[{S_WS}:{S_WS+3}], s3 offen offset:{2048*(j%2)}")
A("    s_waitcnt vmcnt(0)")
A("    s_branch LM_slowbase")
HD = TRM
def whf(q, tp):
    return whreg(2 * q + tp)
def epilogue(fast):
    epi_start = len(out)
    A(f"    v_and_b32 v{eE32}, 31, v0")
    A(f"    v_bfe_u32 v{eHH}, v0, 5, 1")
    A(f"    v_add_u32 v{eNODE}, s{sNODE}, v{eE32}")
    A(f"    v_lshlrev_b32 v{eSTO}, 7, v{eNODE}")
    A(f"    v_lshl_add_u32 v{eSTO}, v{eHH}, 3, v{eSTO}")
    if not fast:
        A(f"    v_lshlrev_b32 v{eH16}, 4, v{eHH}")
        emit(wh_pre())
        for f in WHORD:
            emit([wh_load(f)])
        A(f"    v_lshl_add_u32 v{eT}, v{eNODE}, 7, v{eH16}")
        for s in range(4):
            A(f"    buffer_load_dwordx4 {vr(HB+4*s,4)}, v{eT}, s[{S_H}:{S_H+3}], 0 offen offset:{32*s}")
        for t in range(2):
            for q in range(4):
                A(f"    buffer_load_dwordx2 {vr(HD+8*t+2*q,2)}, v{eSTO}, s[{S_H}:{S_H+3}], 0 offen offset:{64*t+16*q}")
    else:
        A(f"    s_add_u32 s{sTMP}, s{sTMP}, s{sSTG}")
    if fast or LOUT:
        if not fast:
            A(f"    s_mov_b32 s{sTMP}, s{sSTG}")
        A(f"    v_lshrrev_b32 v{eT}, 3, v{eE32}          ; i")
        A(f"    v_and_b32 v{eH16}, 7, v{eE32}            ; r")
        A(f"    v_lshl_add_u32 v{ePOFF}, v{eT}, 10, s{sTMP}")
        A(f"    v_lshl_add_u32 v{ePOFF}, v{eH16}, 7, v{ePOFF}")
        A(f"    v_lshl_add_u32 v{ePOFF}, v{eHH}, 3, v{ePOFF}")
        A(f"    v_and_b32 v{eT}, 1, v{eT}")
        A(f"    v_xor_b32 v{eT}, v{eT}, v{eH16}          ; x")
        A(f"    v_lshl_add_u32 v{ePOFF}, v{eT}, 4, v{ePOFF}")
        for c in range(8):
            A(f"    v_xor_b32 v{WX+c}, {16*c}, v{ePOFF}")
    if fast:
        for c in range(8):
            A(f"    ds_read_b64 {vr(HD+2*c,2)}, v{WX+c}")
    if LOUT:
        A(f"    v_and_b32 v{WX+8}, 63, v0")
        A(f"    v_lshl_add_u32 v{WX+9}, v{WX+8}, 4, s{sTMP}      ; lds read addr")
        A(f"    v_lshrrev_b32 v{WX+8}, 3, v{WX+8}")
        A(f"    v_add_u32 v{WX+8}, s{sNODE}, v{WX+8}")
        A(f"    v_lshl_add_u32 v{WX+10}, v{WX+8}, 7, v{vSWZ[0]}")
        A(f"    v_lshl_add_u32 v{WX+11}, v{WX+8}, 7, v{vSWZ[1]}")
    for r in range(32):
        A(f"    v_mul_f32 v{SEG+r}, s{sLN2}, v{SEG+r}")
    for j in range(16):
        A(f"    v_cvt_pk_bf16_f32 v{PK+j}, v{SEG+2*j}, v{SEG+2*j+1}")
    NL = 0 if fast else 12
    def mm():
        A(f"    s_waitcnt vmcnt({8 + NL + (0 if fast else 3)})")
        for tp in range(2):
            for i, q in enumerate((4, 5, 6, 7)):
                c = "0" if i == 0 else vr(ACC+16*tp,16)
                A(f"    v_mfma_f32_32x32x16_bf16 {vr(ACC+16*tp,16)}, {vr(whf(q,tp),4)}, {vr(PK+4*(q-4),4)}, {c}")
        A(f"    s_waitcnt vmcnt({0 if fast else 8 + 3})")
        for tp in range(2):
            for q in range(4):
                A(f"    v_mfma_f32_32x32x16_bf16 {vr(ACC+16*tp,16)}, {vr(whf(q,tp),4)}, {vr(HB+4*q,4)}, {vr(ACC+16*tp,16)}")
    if fast:
        A("    s_nop 0")
        mm()
    A("    s_mov_b64 exec, 0x01ffffff")
    A(f"    v_lshl_add_u32 v{eT}, v{eE32}, 4, s{sPAB}")
    A(f"    ds_read_b96 {vr(TMP+4,3)}, v{eT}")
    A(f"    v_mul_u32_u24 v{ePOFF}, 6, v{eNODE}")
    A(f"    v_add_u32 v{ePOFF}, {N*128}, v{ePOFF}")
    A(f"    v_cvt_pk_bf16_f32 v{CS}, v{PAC}, v{PAC+1}")
    A(f"    v_cvt_pk_bf16_f32 v{CS+1}, v{PAC+2}, v{PAC+2}")
    A(f"    v_lshlrev_b32 v{TMP}, 16, v{CS}")
    A(f"    v_and_b32 v{TMP+1}, s{sHI}, v{CS}")
    A(f"    v_lshlrev_b32 v{TMP+2}, 16, v{CS+1}")
    A("    s_waitcnt lgkmcnt(0)")
    for c in range(3):
        A(f"    v_add_f32 v{TMP+c}, v{TMP+c}, v{TMP+4+c}")
    for c in range(3):
        A(f"    v_cvt_pk_bf16_f32 v{CS+c}, v{TMP+c}, v{TMP+c}")
    for c in range(3):
        A(f"    buffer_store_short v{CS+c}, v{ePOFF}, s[{S_OUT}:{S_OUT+3}], 0 offen offset:{2*c}" + PST)
    A("    s_mov_b64 exec, -1")
    if not fast:
        mm()
        A("    s_nop 15")
    for j in range(16):
        a0, a1 = ACC + 2 * j, ACC + 2 * j + 1
        A(f"    v_cvt_pk_bf16_f32 v{TMP}, v{a0}, v{a1}")
        A(f"    v_lshlrev_b32 v{a0}, 16, v{TMP}")
        A(f"    v_and_b32 v{a1}, s{sHI}, v{TMP}")
    A(f"    s_mov_b32 s3, 0x{LOG2E:08x}")
    for g0 in range(0, 32, 8):
        rs = range(g0, g0 + 8)
        for r in rs: A(f"    v_mul_f32 v{TMP+r%8}, s3, v{ACC+r}")
        for r in rs: A(f"    v_exp_f32 v{TMP+r%8}, v{TMP+r%8}")
        for r in rs: A(f"    v_add_f32 v{TMP+r%8}, 1.0, v{TMP+r%8}")
        for r in rs: A(f"    v_rcp_f32 v{TMP+r%8}, v{TMP+r%8}")
        for r in rs: A(f"    v_mul_f32 v{ACC+r}, v{ACC+r}, v{TMP+r%8}")
    if not fast:
        A("    s_waitcnt vmcnt(3)")
    for j in range(16):
        a0, a1 = ACC + 2 * j, ACC + 2 * j + 1
        hv = HD + j
        A(f"    v_cvt_pk_bf16_f32 v{TMP}, v{a0}, v{a1}")
        A(f"    v_lshlrev_b32 v{a0}, 16, v{TMP}")
        A(f"    v_and_b32 v{a1}, s{sHI}, v{TMP}")
        A(f"    v_lshlrev_b32 v{TMP+1}, 16, v{hv}")
        A(f"    v_and_b32 v{TMP+2}, s{sHI}, v{hv}")
        A(f"    v_add_f32 v{a0}, v{a0}, v{TMP+1}")
        A(f"    v_add_f32 v{a1}, v{a1}, v{TMP+2}")
        A(f"    v_cvt_pk_bf16_f32 v{PK+j}, v{a0}, v{a1}")
        if LOUT and j % 2 == 1:
            A(f"    ds_write_b64 v{WX+j//2}, {vr(PK+j-1,2)}")
    if LOUT:
        for i in range(4):
            A(f"    ds_read_b128 {vr(SEG+4*i,4)}, v{WX+9} offset:{1024*i}")
        for i in range(4):
            if i == 3:
                A("    s_mov_b64 exec, 0xff")
            A(f"    s_waitcnt lgkmcnt({3-i})")
            A(f"    buffer_store_dwordx4 {vr(SEG+4*i,4)}, v{WX+10+(i&1)}, s[{S_OUT}:{S_OUT+3}], 0 offen offset:{1024*i}" + OST)
    else:
        A(f"    s_mov_b64 exec, s[{sM25}:{sM25+1}]")
        for t in range(2):
            for q in range(4):
                A(f"    buffer_store_dwordx2 {vr(PK+8*t+2*q,2)}, v{eSTO}, s[{S_OUT}:{S_OUT+3}], 0 offen offset:{64*t+16*q}" + OST)
    pre = tail_txt[0][-30:] if fast else []
    for e in lint(pre + out[epi_start:], "epi"):
        print("LINT", e)
A("LM_epi:")
_sv = _stamp[0]
STAMP()
epilogue(0)
A("    s_branch LM_fin")
A("LM_epif:")
_stamp[0] = _sv
STAMP()
epilogue(1)
A("LM_fin:")
if PROF:
    A("    s_mov_b64 exec, -1")
    prof_dump("LP", "LM_end", sW, 82, _stamp[0])
A("LM_end:")
A("    s_endpgm")

A('.section .rodata,"a"')
for name, nv in (("egnn_sort_kernel", 88), ("egnn_main_kernel", 256)):
    A(".p2align 6")
    A(f".amdhsa_kernel {name}")
    A(f"  .amdhsa_next_free_vgpr {nv}")
    A("  .amdhsa_next_free_sgpr 100")
    A(f"  .amdhsa_accum_offset {nv}")
    A("  .amdhsa_group_segment_fixed_size 0")
    A("  .amdhsa_kernarg_size 88")
    A("  .amdhsa_user_sgpr_count 2")
    A("  .amdhsa_user_sgpr_kernarg_segment_ptr 1")
    A("  .amdhsa_system_sgpr_workgroup_id_x 1")
    A(".end_amdhsa_kernel")

path = sys.argv[1] if len(sys.argv) > 1 else f"cdna_kernels/{NAME}.s"
open(path, "w").write("\n".join(out) + "\n")
print("wrote", path, len(out), "lines; sort lds", SORT_LDS, "main lds", MAIN_LDS, "vgprs", NVGPR)
```

```python
import sys, os
sys.path.insert(0, os.path.dirname(os.path.abspath(__file__)))
from lint import lint
PROF = int(os.environ.get("PROF", "0"))
MB = int(os.environ.get("MB", "0"))
EANT = os.environ.get("EANT", "")
BAL = int(os.environ.get("BAL", "1"))
PH = int(os.environ.get("PH", "1"))
F16 = int(os.environ.get("F16", "1"))
MT = "f16" if F16 else "bf16"
CVT = "v_cvt_pk_f16_f32" if F16 else "v_cvt_pk_bf16_f32"
PF = int(os.environ.get("PF", "0"))
PFN = int(os.environ.get("PFN", "25000"))
TH = int(os.environ.get("TH", "25000"))

PFW = int(os.environ.get("PFW", "0"))
PFS = int(os.environ.get("PFS", "0"))
PFSH = int(os.environ.get("PFSH", "0"))
L2P = int(os.environ.get("L2P", "0"))
L2C = int(os.environ.get("L2C", "2"))
L2R = -(-L2P // 40)
L2I = -(-L2R // 640)
TLBW = int(os.environ.get("TLBW", "0"))
NPS = PFS + PFSH + (L2C * L2I if L2P else 0) + (3 if TLBW else 0)
RNT = os.environ.get("RNT", "")
RNT = (" " + RNT.replace(",", " ")) if RNT else ""
PFI = int(os.environ.get("PFI", "2"))
PFH = int(os.environ.get("PFH", "1"))
SST = os.environ.get("SST", "sc1")
SST = (" " + SST.replace(",", " ")) if SST else ""
OST = os.environ.get("OST", "sc1")
OST = (" " + OST.replace(",", " ")) if OST else ""
PST = os.environ.get("PST", "sc1")
PST = (" " + PST.replace(",", " ")) if PST else ""
LOUT = int(os.environ.get("LOUT", "1"))
TST = os.environ.get("TST", "sc1")
TST = (" " + TST.replace(",", " ")) if TST else ""
TROW = int(os.environ.get("TROW", "0"))
NAME = "gather_scatter__cheap_equivariant_egnn__graph"
N = 50000
E = 800000
G = 250
GW = 4
C = 3200
NBK = 250
BN = 200
FBN = 25
REC_OFF = 0
TBL_OFF = E * 8
TRS_ = int(os.environ.get("TRS", "8320"))
WF_OFF = TBL_OFF + 256 * 8704
P4_OFF = WF_OFF + 40 * 1024
WS_USED = P4_OFF + N * 8
LOG2E = 0xbfb8aa3b
LN2 = 0xbf317218
PADNB = 30

out = []
def A(s=""):
    out.append(s)

_stamp = [0]
def STAMP(lvl=1):
    if PROF != lvl and lvl != 0:
        return
    if not PROF:
        return
    i = _stamp[0]; _stamp[0] += 1
    assert i < 7
    A(f"    s_memtime s[{82+2*i}:{83+2*i}]")
_sst = [0]
def SSTAMP():
    if not PROF:
        return
    i = _sst[0]; _sst[0] += 1
    assert i < 7
    A(f"    s_memtime s[{46+2*i}:{47+2*i}]")

def srd(base, lo, hi, nbytes, stride=0):
    A(f"    s_mov_b32 s{base}, s{lo}")
    A(f"    s_and_b32 s{base+1}, s{hi}, 0xffff")
    if stride:
        A(f"    s_or_b32 s{base+1}, s{base+1}, {stride << 16}")
    A(f"    s_mov_b32 s{base+2}, {nbytes}")
    A(f"    s_mov_b32 s{base+3}, 0x00020000")

def vr(a, n):
    return f"v[{a}:{a+n-1}]"

def wave_scan(x):
    for sh in (1, 2, 4, 8):
        A("    s_nop 1")
        A(f"    v_add_u32_dpp v{x}, v{x}, v{x} row_shr:{sh} row_mask:0xf bank_mask:0xf bound_ctrl:0")
    A("    s_nop 1")
    A(f"    v_add_u32_dpp v{x}, v{x}, v{x} row_bcast:15 row_mask:0xa bank_mask:0xf")
    A("    s_nop 1")
    A(f"    v_add_u32_dpp v{x}, v{x}, v{x} row_bcast:31 row_mask:0xc bank_mask:0xf")
    A("    s_nop 1")

PALL = int(os.environ.get("PALL", "0"))
def prof_all(wreg, base, n, off, rt0):
    A("    s_waitcnt vmcnt(0)")
    A(f"    s_memtime s[{base+2*n}:{base+2*n+1}]")
    A(f"    s_memrealtime s[66:67]")
    A("    s_load_dwordx2 s[64:65], s[0:1], 80")
    A("    s_getreg_b32 s75, hwreg(HW_REG_HW_ID)")
    A("    s_getreg_b32 s77, hwreg(HW_REG_XCC_ID)")
    A("    s_waitcnt lgkmcnt(0)")
    srd(68, 64, 65, 256 << 20)
    A("    s_lshl_b32 s72, s2, 4")
    A(f"    s_add_u32 s72, s72, s{wreg}")
    A("    s_lshl_b32 s72, s72, 6")
    A(f"    s_add_u32 s72, s72, {off}")
    A("    s_mov_b64 exec, 1")
    A("    v_mov_b32 v1, s72")
    for i in range(1, n + 1):
        A(f"    s_sub_u32 s73, s{base+2*i}, s{base}")
        A(f"    v_mov_b32 v2, s73")
        A(f"    buffer_store_dword v2, v1, s[68:71], 0 offen offset:{4*i}")
    for j, r in enumerate((rt0, 66, 75, 77, 96)):
        A(f"    v_mov_b32 v2, s{r}")
        A(f"    buffer_store_dword v2, v1, s[68:71], 0 offen offset:{32+4*j}")
def prof_dump(lbl, endlbl, wreg, base, n):
    if PALL:
        return prof_all(wreg, base, n, (200 << 20) + (0 if lbl == "LP" else 1 << 20), 98 if lbl == "LP" else 62)
    A("    s_waitcnt vmcnt(0)")
    A(f"    s_memtime s[{base+2*n}:{base+2*n+1}]")
    A("    s_load_dwordx2 s[64:65], s[0:1], 72")
    A("    s_waitcnt lgkmcnt(0)")
    srd(68, 64, 65, 256)
    A("    s_mov_b32 s72, 0")
    A("    s_cmp_eq_u32 s2, 0")
    A(f"    s_cbranch_scc1 {lbl}_a")
    A("    s_mov_b32 s72, 2")
    A("    s_cmp_eq_u32 s2, 137")
    A(f"    s_cbranch_scc0 {endlbl}")
    A(f"{lbl}_a:")
    A(f"    s_cmp_eq_u32 s{wreg}, 0")
    A(f"    s_cbranch_scc1 {lbl}_b")
    A("    s_add_u32 s72, s72, 1")
    A(f"    s_cmp_eq_u32 s{wreg}, 7")
    A(f"    s_cbranch_scc0 {endlbl}")
    A(f"{lbl}_b:")
    A("    s_lshl_b32 s72, s72, 5")
    A("    s_mov_b64 exec, 1")
    A("    v_mov_b32 v1, s72")
    for i in range(1, n + 1):
        A(f"    s_sub_u32 s73, s{base+2*i}, s{base}")
        A(f"    v_mov_b32 v2, s73")
        A(f"    buffer_store_dword v2, v1, s[68:71], 0 offen offset:{4*i}")

S_HIST = 0
S_OFF = 8192
S_WT = 16384
S_STAGE = 16384 + 64
SORT_LDS = S_STAGE + C * 8
CAP = 512
ST_SZ = 5120
L_ID = 0
ID_RS = 80
L_PA = L_ID + 32 * ID_RS
L_Z = L_PA + 8 * 512
L_PRG = L_Z + 1024
L_PS = L_PRG + 256
L_CNT = L_PS + 1024
L_W0 = L_CNT + 2048
NBIN = int(os.environ.get("NBIN", "32"))
BINM = NBIN * 65536 // N
assert L_CNT % 256 == 0, L_CNT
L_W1 = L_W0 + 8 * CAP * 4
L_MS = L_W1 + 8 * CAP * 4
MS_RS = 136
MS_W = 32 * MS_RS
L_ST = L_MS + 8 * MS_W
assert L_PRG % 32 == 0
assert L_ST % 128 == 0 and L_PA % 16 == 0 and L_ID % 16 == 0
L_TB = L_MS
L_WF = L_MS + 8192
assert L_WF + 24576 <= L_ST
L_RAW = L_ST
MAIN_LDS = L_ST + 16 * ST_SZ
assert MAIN_LDS <= 163840, MAIN_LDS

A(f"; @launch kernel=egnn_sort_kernel grid=({G+GW+PFW},1,1) block=(640,1,1) lds={SORT_LDS}")
A(f"; @launch kernel=egnn_main_kernel grid=({NBK},1,1) block=(512,1,1) lds={MAIN_LDS}")
A('.amdgcn_target "amdgcn-amd-amdhsa--gfx950"')
A(".text")

A(".globl egnn_sort_kernel")
A(".p2align 8")
A(".type egnn_sort_kernel,@function")
A("egnn_sort_kernel:")
A(f"    s_cmp_ge_u32 s2, {G+GW}")
A("    s_cbranch_scc1 LS_pf")
A(f"    s_cmp_ge_u32 s2, {G}")
A("    s_cbranch_scc1 LS_weights")
SSTAMP()
if PALL:
    A("    s_memrealtime s[62:63]")
A("    s_load_dwordx2 s[4:5], s[0:1], 8      ; pos")
A("    s_load_dwordx4 s[8:11], s[0:1], 24    ; src, dst")
A("    s_load_dwordx2 s[12:13], s[0:1], 80   ; ws")
if NPS:
    A("    s_load_dwordx2 s[40:41], s[0:1], 0     ; h")
    A("    s_load_dwordx2 s[42:43], s[0:1], 16    ; e_attr")
    A("    s_load_dwordx2 s[76:77], s[0:1], 64    ; out")
A("    v_lshlrev_b32 v1, 4, v0")
if NPS:
    A("    v_mov_b32 v82, v1")
for j in range(4):
    A(f"    v_mov_b32 v{4+j}, 0")
A("    v_cmp_gt_u32 vcc, 512, v0")
A("    s_and_saveexec_b64 s[14:15], vcc")
A(f"    ds_write_b128 v1, v[4:7] offset:{S_HIST}")
A("    s_mov_b64 exec, s[14:15]")
A("    v_lshlrev_b32 v1, 2, v0")
A(f"    s_mul_i32 s3, s2, {C * 4}")
A("    v_add_u32 v1, s3, v1")
SL = 5
for k in range(1, SL):
    A(f"    s_mov_b32 s{35+k}, {k*2560}")
A(f"    s_mul_i32 s3, s2, {BN}")
A("    v_add_u32 v44, s3, v0                ; node")
A("    v_mul_u32_u24 v45, 6, v44")
A("    s_waitcnt lgkmcnt(0)")
SSTAMP()
srd(24, 10, 11, E * 4)
srd(20, 8, 9, E * 4)
for k in range(SL):
    so = "0" if k == 0 else f"s{35+k}"
    A(f"    buffer_load_dword v{10+k}, v1, s[24:27], {so} offen")
    A(f"    buffer_load_dword v{15+k}, v1, s[20:23], {so} offen")
srd(16, 4, 5, N * 6)
srd(28, 12, 13, WS_USED)
for c in range(3):
    A(f"    buffer_load_ushort v{40+c}, v45, s[16:19], 0 offen offset:{2*c}")
if TLBW:
    srd(64, 40, 41, N * 128)
    srd(68, 42, 43, E * 32)
    srd(72, 76, 77, N * 134)
    A(f"    v_mul_u32_u24 v82, {TLBW * 1024}, v0")
    A(f"    v_mul_u32_u24 v83, {TLBW * 256}, v0")
    A("    s_barrier")
    A("    buffer_load_dword v84, v82, s[68:71], 0 offen")
    A("    buffer_load_dword v84, v83, s[64:67], 0 offen")
    A("    buffer_load_dword v84, v83, s[72:75], 0 offen")
elif L2P:
    srd(64, 40, 41, L2P * 128)
    A("    s_getreg_b32 s42, hwreg(HW_REG_HW_ID)")
    A("    s_bfe_u32 s43, s42, 0x40008          ; cu")
    A("    s_bfe_u32 s42, s42, 0x2000d          ; se")
    A("    s_mul_i32 s42, s42, 10")
    A("    s_add_u32 s42, s42, s43              ; slot")
    A("    v_lshlrev_b32 v82, 7, v0")
    for i in range(L2I):
        if (i + 1) * 640 > L2R:
            A(f"    v_cmp_gt_u32 vcc, {L2R - i*640}, v0")
            A("    v_mov_b32 v83, -1")
            A("    s_nop 0")
            A("    v_cndmask_b32 v83, v83, v82, vcc")
    A("    s_barrier")
    for c in range(L2C):
        if c:
            A(f"    s_add_u32 s42, s42, {(17, 0, 17, 13)[L2C] if L2C < 4 else 11}")
            A("    s_cmp_ge_u32 s42, 40")
            A("    s_cselect_b32 s43, 40, 0")
            A("    s_sub_u32 s42, s42, s43")
        A(f"    s_mul_i32 s43, s42, {L2R*128}")
        for i in range(L2I):
            A(f"    buffer_load_dword v84, v{83 if (i + 1) * 640 > L2R else 82}, s[64:67], s43 offen")
            if i + 1 < L2I:
                A(f"    s_add_u32 s43, s43, {640*128}")
elif NPS:
    srd(64, 40, 41, N * 128)
    srd(68, 42, 43, E * 32)
    A(f"    s_mul_i32 s40, s2, {BN*128}")
    A(f"    s_mul_i32 s41, s2, {PFS*10240}")
    for i in range(max(PFS, PFSH)):
        if i < PFSH:
            A(f"    buffer_load_dwordx4 v[84:87], v82, s[64:67], s40 offen")
            A(f"    s_add_u32 s40, s40, 10240")
        if i < PFS:
            A(f"    buffer_load_dwordx4 v[84:87], v82, s[68:71], s41 offen")
            A(f"    s_add_u32 s41, s41, 10240")
if not L2P and not TLBW:
    A("    s_barrier")
A("    s_mov_b32 s14, 83887")
A("    v_mov_b32 v3, 1")
A(f"    s_mul_i32 s3, s2, {C}")
A("    v_add_u32 v46, s3, v0")
for k in range(SL):
    A(f"    s_waitcnt vmcnt({NPS + 3 + 2*(SL-1-k)})")
    d, s = 10 + k, 15 + k
    A(f"    v_mul_u32_u24 v4, s14, v{d}")
    A(f"    v_lshrrev_b32 v4, 21, v4             ; key = dst/25")
    A(f"    v_lshlrev_b32 v{20+k}, 2, v4")
    A(f"    ds_add_rtn_u32 v{30+k}, v{20+k}, v3 offset:{S_HIST}")
    A(f"    v_mul_u32_u24 v5, {FBN}, v4")
    A(f"    v_sub_u32 v7, v{d}, v5               ; nb")
    A(f"    v_lshl_or_b32 v{50+2*k}, v{s}, 7, v7   ; w0")
    A(f"    v_add_u32 v8, {k*640}, v46")
    A(f"    v_lshlrev_b32 v{51+2*k}, 5, v8         ; w1")
A(f"    s_waitcnt vmcnt({NPS})")
A("    v_lshl_or_b32 v40, v41, 16, v40")
A("    v_lshlrev_b32 v41, 16, v42")
A("    v_lshlrev_b32 v44, 3, v44")
A(f"    v_add_u32 v44, {P4_OFF}, v44")
A(f"    v_cmp_gt_u32 vcc, {BN}, v0")
A("    s_and_saveexec_b64 s[44:45], vcc")
A("    s_cbranch_execz LS_nop4")
A("    buffer_store_dwordx2 v[40:41], v44, s[28:31], 0 offen" + SST)
A("LS_nop4:")
A("    s_mov_b64 exec, s[44:45]")
A("    s_waitcnt lgkmcnt(0)")
A("    s_barrier")
SSTAMP()
A("    v_lshrrev_b32 v81, 6, v0")
A("    v_lshlrev_b32 v2, 4, v0")
A("    v_readfirstlane_b32 s6, v81          ; wave")
A("    s_cmp_ge_u32 s6, 8")
A("    s_cbranch_scc1 LS_noscan1")
A(f"    ds_read_b128 v[4:7], v2 offset:{S_HIST}")
A("    s_waitcnt lgkmcnt(0)")
A("    v_add_u32 v8, v4, v5")
A("    v_add_u32 v9, v8, v6")
A("    v_add_u32 v70, v9, v7                ; total")
A("    v_mov_b32 v71, v70")
wave_scan(71)
A("    v_readlane_b32 s7, v71, 63")
A("    v_lshlrev_b32 v81, 2, v81")
A("    v_mov_b32 v72, s7")
A(f"    ds_write_b32 v81, v72 offset:{S_WT}")
A("    s_waitcnt lgkmcnt(0)")
A("LS_noscan1:")
A("    s_barrier")
A("    s_cmp_ge_u32 s6, 8")
A("    s_cbranch_scc1 LS_noscan")
A("    v_mov_b32 v81, 0")
A(f"    ds_read_b128 v[72:75], v81 offset:{S_WT}")
A(f"    ds_read_b128 v[76:79], v81 offset:{S_WT+16}")
A("    v_sub_u32 v71, v71, v70            ; exclusive")
A("    s_waitcnt lgkmcnt(0)")
for j in range(7):
    A(f"    s_cmp_gt_u32 s6, {j}")
    A(f"    s_cselect_b32 s7, -1, 0")
    A(f"    v_and_b32 v{72+j}, s7, v{72+j}")
    A(f"    v_add_u32 v71, v71, v{72+j}")
A("    v_mov_b32 v72, v71")
A("    v_add_u32 v73, v71, v4")
A("    v_add_u32 v74, v71, v8")
A("    v_add_u32 v75, v71, v9")
A(f"    ds_write_b128 v2, v[72:75] offset:{S_OFF}")
A("    v_lshl_or_b32 v76, v4, 16, v72")
A("    v_lshl_or_b32 v77, v5, 16, v73")
A("    v_lshl_or_b32 v78, v6, 16, v74")
A("    v_lshl_or_b32 v79, v7, 16, v75")
if TROW:
    A(f"    s_mul_i32 s3, s2, {TRS_}")
    A(f"    s_add_u32 s3, s3, {TBL_OFF}")
    A("    v_mov_b32 v80, v2")
else:
    A("    s_and_b32 s3, s2, 3")
    A("    s_lshl_b32 s3, s3, 6")
    A("    s_lshr_b32 s7, s2, 2")
    A("    s_add_u32 s3, s3, s7                 ; slot")
    A("    s_lshl_b32 s3, s3, 5")
    A(f"    s_add_u32 s3, s3, {TBL_OFF}")
    A("    v_lshrrev_b32 v80, 1, v0")
    A("    v_lshlrev_b32 v80, 13, v80")
    A("    v_and_b32 v81, 1, v0")
    A("    v_lshl_add_u32 v80, v81, 4, v80")
A("    buffer_store_dwordx4 v[76:79], v80, s[28:31], s3 offen" + TST)
A("    s_waitcnt lgkmcnt(0)")
A("LS_noscan:")
A("    s_barrier")
for k in range(SL):
    A(f"    ds_read_b32 v{35+k}, v{20+k} offset:{S_OFF}")
SSTAMP()
A("    s_waitcnt lgkmcnt(0)")
for k in range(SL):
    A(f"    v_add_u32 v2, v{35+k}, v{30+k}")
    A(f"    v_lshlrev_b32 v2, 3, v2")
    A(f"    ds_write_b64 v2, v[{50+2*k}:{51+2*k}] offset:{S_STAGE}")
A("    s_waitcnt lgkmcnt(0)")
A("    s_barrier")
SSTAMP()
A("    v_lshlrev_b32 v1, 3, v0")
for k in range(SL):
    A(f"    ds_read_b64 v[{50+2*k}:{51+2*k}], v1 offset:{S_STAGE + k*5120}")
A(f"    s_mul_i32 s3, s2, {C*8}")
A("    v_add_u32 v2, s3, v1")
for k in range(1, SL):
    A(f"    s_mov_b32 s{35+k}, {k*5120}")
for k in range(SL):
    A(f"    s_waitcnt lgkmcnt({SL-1-k})")
    so = "0" if k == 0 else f"s{35+k}"
    A(f"    buffer_store_dwordx2 v[{50+2*k}:{51+2*k}], v2, s[28:31], {so} offen" + SST)
if PROF:
    A("    v_lshrrev_b32 v1, 6, v0")
    A("    s_nop 0")
    A("    v_readfirstlane_b32 s74, v1")
    prof_dump("LQ", "LS_end", 74, 46, _sst[0])
A("    s_branch LS_end")
A("LS_weights:")
A("    s_load_dwordx2 s[4:5], s[0:1], 40     ; w_e")
A("    s_load_dwordx2 s[6:7], s[0:1], 56     ; w_h")
A("    s_load_dwordx2 s[26:27], s[0:1], 48   ; w_x")
A("    s_load_dwordx2 s[12:13], s[0:1], 80   ; ws")
A("    v_lshrrev_b32 v1, 6, v0")
A("    s_nop 0")
A("    v_readfirstlane_b32 s3, v1")
A(f"    s_sub_u32 s8, s2, {G}")
A("    s_mul_i32 s8, s8, 10")
A("    s_add_u32 s8, s8, s3")
A("    s_cmp_eq_u32 s8, 23")
A("    s_cbranch_scc1 LS_end")
A("    s_waitcnt lgkmcnt(0)")
srd(16, 4, 5, 145 * 128)
srd(20, 6, 7, 128 * 128)
srd(28, 12, 13, WS_USED)
A("    s_and_b32 s14, s8, 1")
A("    s_lshr_b32 s15, s8, 1                  ; ks / q")
A("    s_mov_b32 s10, 8")
A("    s_mov_b32 s11, 4")
A("    s_mov_b32 s24, 1.0")
A("    s_cmp_ge_u32 s8, 24")
A("    s_cbranch_scc1 LS_wh")
A("    s_cmp_eq_u32 s8, 22")
A("    s_cbranch_scc1 LS_wd")
A("    s_cmp_ge_u32 s8, 18")
A("    s_cbranch_scc1 LS_wx")
A("    s_lshl_b32 s9, s15, 4")
A("    s_cmp_ge_u32 s15, 8")
A("    s_cselect_b32 s9, 129, s9")
A("    s_cmp_ge_u32 s15, 4")
A(f"    s_cselect_b32 s24, 0x{LOG2E:08x}, s24")
A("    s_branch LS_wgo")
A("LS_wh:")
A("    s_sub_u32 s15, s15, 12")
A("    s_lshl_b32 s9, s15, 4")
A("    s_cmp_ge_u32 s15, 4")
A("    s_cselect_b32 s10, 4, 8")
A("    s_cselect_b32 s11, 8, 4")
A("    s_mov_b32 s16, s20")
A("    s_mov_b32 s17, s21")
A("    s_mov_b32 s18, s22")
A("LS_wgo:")
A("    v_and_b32 v1, 31, v0")
A("    v_bfe_u32 v2, v0, 5, 1")
A("    v_mul_u32_u24 v2, s10, v2")
A("    v_add_u32 v2, s9, v2")
A("    v_lshlrev_b32 v2, 7, v2")
A("    v_lshl_add_u32 v2, v1, 1, v2")
A("    s_lshl_b32 s3, s14, 6")
A("    v_add_u32 v2, s3, v2")
A("    s_lshl_b32 s3, s11, 7")
A("    v_add_u32 v3, s3, v2                   ; j=4")
for j in range(4):
    A(f"    buffer_load_ushort v{10+j}, v2, s[16:19], 0 offen offset:{128*j}")
for j in range(4):
    A(f"    buffer_load_ushort v{14+j}, v3, s[16:19], 0 offen offset:{128*j}")
A("    s_waitcnt vmcnt(0)")
for j in range(8):
    A(f"    v_lshlrev_b32 v{10+j}, 16, v{10+j}")
    A(f"    v_mul_f32 v{10+j}, s24, v{10+j}")
for j in range(4):
    A(f"    v_cvt_pk_bf16_f32 v{20+j}, v{10+2*j}, v{11+2*j}")
A("LS_wst:")
A("    v_and_b32 v1, 63, v0")
A("    v_lshlrev_b32 v1, 4, v1")
A("    s_lshl_b32 s3, s8, 10")
A(f"    s_add_u32 s3, s3, {WF_OFF}")
A("    v_add_u32 v1, s3, v1")
A("    buffer_store_dwordx4 v[20:23], v1, s[28:31], 0 offen" + SST)
A("    s_branch LS_end")
A("LS_wx:")
srd(16, 26, 27, 128)
A("    s_sub_u32 s3, s8, 18")
A("    s_lshl_b32 s3, s3, 5")
A("    v_bfe_u32 v2, v0, 5, 1")
A("    v_lshlrev_b32 v2, 3, v2")
A("    v_add_u32 v2, s3, v2")
A("    buffer_load_dwordx2 v[20:21], v2, s[16:19], 0 offen")
A("    buffer_load_dwordx2 v[22:23], v2, s[16:19], 0 offen offset:16")
A(f"    s_mov_b32 s14, {(1<<8)|(1<<28)}")
A(f"    s_mov_b32 s15, {(1<<8)|(1<<28)}")
A("    s_waitcnt vmcnt(0)")
for j in range(4):
    A(f"    v_cndmask_b32 v{20+j}, 0, v{20+j}, s[14:15]")
    if F16:
        A(f"    v_lshlrev_b32 v3, 16, v{20+j}")
        A(f"    v_and_b32 v{20+j}, 0xffff0000, v{20+j}")
        A(f"    v_cvt_pk_f16_f32 v{20+j}, v3, v{20+j}")
A("    s_branch LS_wst")
A("LS_wd:")
A("    v_and_b32 v1, 31, v0")
A("    v_lshlrev_b32 v1, 1, v1")
A(f"    v_add_u32 v1, {128*128}, v1")
A("    buffer_load_ushort v20, v1, s[16:19], 0 offen")
A("    buffer_load_ushort v21, v1, s[16:19], 0 offen offset:64")
A(f"    s_mov_b32 s3, 0x{LOG2E:08x}")
A("    v_mov_b32 v22, 0")
A("    v_mov_b32 v23, 0")
A("    s_waitcnt vmcnt(0)")
for t in range(2):
    A(f"    v_lshlrev_b32 v{20+t}, 16, v{20+t}")
    A(f"    v_mul_f32 v{20+t}, s3, v{20+t}")
    A(f"    v_cvt_pk_bf16_f32 v{20+t}, v{20+t}, v{20+t}")
A("    s_branch LS_wst")
A("LS_pf:")
if PFW:
    A(f"    s_cmp_ge_u32 s2, {G+GW+PFW}")
    A("    s_cbranch_scc1 LS_end")
    A("    s_load_dwordx2 s[4:5], s[0:1], 0      ; h")
    A("    s_load_dwordx2 s[6:7], s[0:1], 16     ; e_attr")
    A(f"    s_sub_u32 s3, s2, {G+GW}")
    A(f"    s_mul_i32 s3, s3, 640")
    A("    v_add_u32 v1, s3, v0")
    A("    v_lshlrev_b32 v2, 7, v1               ; h line")
    A("    v_lshrrev_b32 v3, 6, v1")
    A(f"    v_mul_u32_u24 v3, {PFI*64}, v3")
    A("    v_and_b32 v4, 63, v0")
    A("    v_add_u32 v3, v3, v4")
    A("    v_lshlrev_b32 v3, 7, v3")
    A("    s_waitcnt lgkmcnt(0)")
    srd(16, 4, 5, N * 128)
    srd(20, 6, 7, E * 32)
    for i in range(PFI):
        A(f"    s_mov_b32 s3, {i*8192}")
        A(f"    buffer_load_dword v{8+i}, v3, s[20:23], s3 offen")
    if PFH:
        A(f"    buffer_load_dword v7, v2, s[16:19], 0 offen")
A("LS_end:")
A("    s_endpgm")

S_H, S_EA, S_WS, S_P4, S_WE, S_WX, S_OUT = 8, 12, 16, 20, 24, 28, 32
sW, sT, sBASE, sCNT, sLB, sNT, sNODE, sSTG = 40, 41, 42, 43, 44, 45, 46, 47
sHIGH = 50
sM25 = 52
sHI = 54
sAM = 55
sLN2 = 56
sP4O = 57
sIDRS = 58
sPAB = 59
sONE2 = 60
sPGW, sPGR, sPGP = 62, 63, 76
sINC, sDEL, sTAIL, sTMP, sWH = 24, 25, 26, 27, 28
FT = int(os.environ.get("FT", "1"))

_next = [1]
def alloc(n, align=1):
    while _next[0] % align:
        _next[0] += 1
    r = _next[0]; _next[0] += n
    return r
WSF = alloc(32, 4)
WAE = alloc(8, 4)
ATF = alloc(16, 4)
WX = alloc(16, 4)
ACC = alloc(32, 4)
SEG = alloc(32, 4)
HB = alloc(16, 4)
EA = alloc(4, 4)
SO = alloc(8, 4)
PK = alloc(16, 4)
TRM = alloc(8, 4)
TRS = alloc(8, 4)
CS = alloc(4, 4)
TMP = alloc(8, 4)
W0D = alloc(4, 4)
PAC = alloc(4, 4)
PS0 = alloc(3, 2); vW0E = alloc(1)
PS1 = alloc(3, 2); vNB = alloc(1)
PD = alloc(3, 2); vSA = alloc(1)
PS = (PS0, PS1)
DX = (alloc(3), alloc(3))
vW1P = alloc(1); vW0E3 = alloc(1)
vSWZ = (alloc(1), alloc(1))
vEAO = alloc(1)
vHBA = [alloc(1) for _ in range(4)]
vEAR, vIDB, vSWL, vMWL, vTRL = [alloc(1) for _ in range(5)]
assert _next[0] <= 256, _next[0]
vTRP, vL0E, vL0D = 1, 2, 3
vL1P, vONE, vZERO, vMASK = [alloc(1) for _ in range(4)]
assert _next[0] <= 256, _next[0]
NVGPR = _next[0]
def wsf(s, t): return WSF + (2 * s + t) * 4
def atf(u, t): return ATF + (2 * u + t) * 4
X = PK
assert W0D + 4 - PK == 48

A(".globl egnn_main_kernel")
A(".p2align 8")
A(".type egnn_main_kernel,@function")
A("egnn_main_kernel:")
A(f"    s_cmp_ge_u32 s2, {os.environ.get('LIMWG', NBK)}")
A("    s_cbranch_scc1 LM_end")
STAMP(0)
if PALL:
    A("    s_memrealtime s[98:99]")
A("    s_load_dwordx2 s[80:81], s[0:1], 80    ; ws")
A("    s_load_dwordx2 s[64:65], s[0:1], 0     ; h")
A("    s_load_dwordx2 s[66:67], s[0:1], 16    ; e_attr")
A("    s_load_dwordx2 s[78:79], s[0:1], 64    ; out")
xLANE, xE32, xHH, xH16, xL16, xT4 = X + 40, X + 41, X + 42, X + 43, X + 44, X + 45
def lane_consts():
    A(f"    v_and_b32 v{xLANE}, 63, v0")
    A(f"    v_and_b32 v{xE32}, 31, v0")
    A(f"    v_bfe_u32 v{xHH}, v0, 5, 1")
    A(f"    v_lshlrev_b32 v{xH16}, 4, v{xHH}")
    A(f"    v_lshlrev_b32 v{xL16}, 4, v{xLANE}")
    A(f"    v_lshlrev_b32 v{xT4}, 2, v0")
lane_consts()
A(f"    v_lshrrev_b32 v{X}, 6, v0")
A(f"    s_mov_b32 s{sHIGH}, 0")
A(f"    v_readfirstlane_b32 s{sW}, v{X}")
A(f"    s_mov_b32 s{sHIGH+1}, -1")
A(f"    s_mov_b32 s{sM25}, 0x01ffffff")
A(f"    s_mov_b32 s{sM25+1}, 0x01ffffff")
A(f"    s_mov_b32 s{sHI}, 0xffff0000")
A(f"    s_mov_b32 s{sAM}, {os.environ.get('HOTH', '0x007fff80')}")
sHOT = 61
A(f"    s_mov_b32 s{sHOT}, {os.environ.get('HOTEA', '0')}")
A(f"    s_mov_b32 s{sLN2}, 0x{LN2:08x}")
A(f"    s_mov_b32 s{sP4O}, {P4_OFF}")
A(f"    s_mov_b32 s{sIDRS}, {ID_RS}")
A(f"    s_mov_b32 s{sONE2}, 0x3c003c00")
A(f"    s_lshl_b32 s{sPGW}, s{sW}, 2")
A(f"    s_add_u32 s{sPGW}, s{sPGW}, {L_PRG}")
A(f"    s_xor_b32 s{sPGR}, s{sPGW}, 16")
sBIAS, sPUB = 36, 37
if BAL >= 2:
    A(f"    s_cmp_lt_u32 s{sW}, 4")
    A(f"    s_cselect_b32 s{sBIAS}, {1 if BAL == 2 else 0}, {0 if BAL == 2 else 1}")
if TROW:
    A(f"    s_lshl_b32 s3, s2, 5")
    A(f"    s_add_u32 s3, s3, {TBL_OFF}")
    A(f"    v_bfe_u32 v{X+1}, v0, 1, 6              ; slot & 63")
    A(f"    v_lshrrev_b32 v{X+2}, 7, v0             ; slot >> 6")
    A(f"    v_lshl_add_u32 v{X+1}, v{X+1}, 2, v{X+2}   ; chunk")
    A(f"    v_and_b32 v{X+2}, 1, v0")
    A(f"    v_lshlrev_b32 v{X+2}, 4, v{X+2}")
    A(f"    v_mul_u32_u24 v{X+1}, {TRS_}, v{X+1}")
    A(f"    v_add_u32 v{X+1}, v{X+1}, v{X+2}")
else:
    A(f"    s_lshl_b32 s3, s2, 13")
    A(f"    s_add_u32 s3, s3, {TBL_OFF}")
    A(f"    v_lshlrev_b32 v{X+1}, 4, v0")
A(f"    s_lshl_b32 s4, s{sW}, 10")
A(f"    s_add_u32 m0, s4, {L_TB}")
A(f"    s_mov_b32 s5, {WF_OFF}")
A(f"    s_mul_i32 s{sSTG}, s{sW}, {2*ST_SZ}")
A(f"    s_add_u32 s{sSTG}, s{sSTG}, {L_ST}")
A(f"    s_mul_i32 s6, s2, {BN}")
A(f"    s_mul_i32 s4, s{sW}, {FBN}")
A(f"    s_add_u32 s{sNODE}, s6, s4")
A("    s_waitcnt lgkmcnt(0)")
STAMP(2)
srd(S_WS, 80, 81, WS_USED)
A(f"    buffer_load_dwordx4 v{X+1}, s[{S_WS}:{S_WS+3}], s3 offen lds")
A(f"    s_lshl_b32 s4, s{sW}, 10")
A(f"    s_add_u32 s5, s5, s4")
for i in range(3):
    A(f"    s_add_u32 m0, s4, {L_WF + 8192*i}")
    A(f"    s_add_u32 s3, s5, {8192*i}")
    A(f"    buffer_load_dwordx4 v{xL16}, s[{S_WS}:{S_WS+3}], s3 offen lds")
srd(S_H, 64, 65, N * 128)
NPF = 0
if PF:
    per_wg = -(-PFN // PF)
    per_w = -(-per_wg // 8)
    NPF = -(-per_w // 64)
    A(f"    s_mul_i32 s3, s2, {(1 << 20) // PF + 1}")
    A(f"    s_lshr_b32 s3, s3, 20")
    A(f"    s_mul_i32 s3, s3, {PF}")
    A(f"    s_sub_u32 s3, s2, s3                  ; slice")
    A(f"    s_mul_i32 s3, s3, {per_wg}")
    A(f"    s_mul_i32 s4, s{sW}, {per_w}")
    A(f"    s_add_u32 s3, s3, s4")
    A(f"    v_add_u32 v{X+2}, s3, v{xLANE}")
    A(f"    v_lshlrev_b32 v{X+2}, 7, v{X+2}")
    A(f"    s_mov_b32 m0, {L_W0}")
    for i in range(NPF):
        A(f"    s_mov_b32 s3, {i * 64 * 128}")
        A(f"    buffer_load_dword v{X+2}, s[{S_H}:{S_H+3}], s3 offen lds")
srd(S_P4, 80, 81, N, stride=8)
srd(S_EA, 66, 67, E * 32)
srd(S_OUT, 78, 79, N * 128 + N * 6)
STAMP(2)
def own_loads(X=X):
    A(f"    v_add_u32 v{X}, s{sNODE}, v{xE32}")
    A(f"    v_lshl_add_u32 v{X+1}, v{X}, 7, v{xH16}")
    for s in range(4):
        A(f"    buffer_load_dwordx4 {vr(HB+4*s,4)}, v{X+1}, s[{S_H}:{S_H+3}], 0 offen offset:{32*s}")
    A(f"    buffer_load_dwordx2 {vr(PD,2)}, v{X}, s[{S_P4}:{S_P4+3}], s{sP4O} idxen")
NOWN = 4 + 1
STAMP(2)
A(f"    s_mul_i32 s4, s{sW}, {MS_W}")
A(f"    s_add_u32 s4, s4, {L_MS}")
A(f"    v_mul_u32_u24 v{X}, {MS_RS}, v{xE32}")
A(f"    v_add_u32 v{X}, s4, v{X}")
A(f"    v_lshl_add_u32 v{vMWL}, v{xHH}, 3, v{X}")
A(f"    v_add_u32 v{vSWL}, 64, v{X}")
A(f"    v_bfe_u32 v{X}, v{xLANE}, 2, 2")
A(f"    v_lshlrev_b32 v{X}, 2, v{X}")
A(f"    v_add_u32 v{X}, v{X}, v{xHH}")
A(f"    v_mul_u32_u24 v{X}, {2*MS_RS}, v{X}")
A(f"    v_bfe_u32 v{X+1}, v{xLANE}, 4, 1")
A(f"    v_lshl_add_u32 v{X}, v{X+1}, 5, v{X}")
A(f"    v_and_b32 v{X+1}, 3, v{xLANE}")
A(f"    v_lshl_add_u32 v{X}, v{X+1}, 3, v{X}")
A(f"    v_add_u32 v{vTRL}, s4, v{X}")
A(f"    v_bfe_u32 v{X}, v{xLANE}, 2, 2")
A(f"    v_lshlrev_b32 v{X}, 2, v{X}")
A(f"    v_add_u32 v{X}, v{X}, v{xHH}")
A(f"    v_mul_u32_u24 v{X}, {2*MS_RS}, v{X}")
A(f"    v_add_u32 v{X}, s4, v{X}")
A(f"    v_add_u32 v{X}, 128, v{X}")
A(f"    v_bfe_u32 v{X+1}, v{xLANE}, 4, 1")
A(f"    v_and_b32 v{X+2}, 3, v{xLANE}")
A(f"    v_cmp_eq_u32 vcc, v{X+1}, v{X+2}")
A(f"    v_mov_b32 v{vTRP}, {L_Z}")
A(f"    s_lshl_b32 s{sPAB}, s{sW}, 9")
A(f"    v_cndmask_b32 v{vTRP}, v{vTRP}, v{X}, vcc")
A(f"    s_add_u32 s{sPAB}, s{sPAB}, {L_PA}")
A(f"    v_add_u32 v{vIDB}, {L_ID}, v{xH16}")
A(f"    v_mov_b32 v{vONE}, 0x3f80")
A(f"    v_mov_b32 v{vZERO}, 0")
A(f"    v_mul_u32_u24 v{vMASK}, 0xffff, v{xHH}")
A(f"    v_lshlrev_b32 v{vMASK}, 16, v{vMASK}")
A(f"    v_lshrrev_b32 v{X}, 3, v{xLANE}")
A(f"    v_and_b32 v{X+1}, 7, v{xLANE}")
A(f"    v_xor_b32 v{X+1}, v{X+1}, v{X}")
A(f"    v_lshlrev_b32 v{vSWZ[0]}, 4, v{X+1}")
A(f"    v_xor_b32 v{vSWZ[1]}, 16, v{vSWZ[0]}")
A(f"    v_and_b32 v{vEAO}, 1, v{xLANE}")
A(f"    v_lshlrev_b32 v{vEAO}, 4, v{vEAO}")
A(f"    v_lshrrev_b32 v{X}, 3, v{xE32}          ; i")
A(f"    v_and_b32 v{X+1}, 7, v{xE32}            ; r")
A(f"    v_and_b32 v{X+2}, 1, v{X}")
A(f"    v_xor_b32 v{X+2}, v{X+2}, v{X+1}        ; x")
A(f"    v_xor_b32 v{X+2}, v{X+2}, v{xHH}        ; x ^ hh")
A(f"    v_lshlrev_b32 v{X+3}, 10, v{X}")
A(f"    v_lshl_add_u32 v{X+3}, v{X+1}, 7, v{X+3}")
A(f"    v_add_u32 v{X+3}, s{sSTG}, v{X+3}")
for s in range(4):
    A(f"    v_xor_b32 v{vHBA[s]}, {2*s}, v{X+2}")
    A(f"    v_lshl_add_u32 v{vHBA[s]}, v{vHBA[s]}, 4, v{X+3}")
A(f"    v_lshl_add_u32 v{vEAR}, v{xE32}, 5, v{xH16}")
A(f"    v_add_u32 v{vEAR}, s{sSTG}, v{vEAR}")
A(f"    v_add_u32 v{vEAR}, 4096, v{vEAR}")
for j in range(4):
    A(f"    v_mov_b32 v{X+8+j}, 0")
A(f"    ds_write_b128 v{xL16}, {vr(X+8,4)} offset:{L_Z}")
A("    v_cmp_gt_u32 vcc, 32, v0")
A("    s_and_saveexec_b64 s[48:49], vcc")
A(f"    v_mul_u32_u24 v{X}, {ID_RS}, v0")
for j in range(5):
    A(f"    ds_write_b128 v{X}, {vr(X+8,4)} offset:{L_ID + 16*j}")
A(f"    v_lshrrev_b32 v{X+1}, 4, v0")
A(f"    v_lshl_add_u32 v{X}, v{X+1}, 5, v{X}")
A(f"    v_bfe_u32 v{X+1}, v0, 2, 1")
A(f"    v_lshl_add_u32 v{X}, v{X+1}, 4, v{X}")
A(f"    v_bfe_u32 v{X+1}, v0, 3, 1")
A(f"    v_lshl_add_u32 v{X}, v{X+1}, 3, v{X}")
A(f"    v_and_b32 v{X+1}, 3, v0")
A(f"    v_lshl_add_u32 v{X}, v{X+1}, 1, v{X}")
A("    v_cmp_gt_u32 vcc, 31, v0")
A("    s_and_b64 exec, exec, vcc")
A(f"    ds_write_b16 v{X}, v{vONE} offset:{L_ID}")
A("    s_mov_b64 exec, s[48:49]")
OWNE = int(os.environ.get("OWNE", "0"))
if F16:
    A(f"    v_mov_b32 v{vONE}, 0x3c00")
if OWNE == 1:
    own_loads()
T_ = X + 4
A(f"    s_lshl_b32 s3, s{sW}, 2")
A(f"    s_add_u32 s3, s3, {L_TB}")
A(f"    v_lshl_add_u32 v{X}, v{xLANE}, 5, s3")
A(f"    s_lshl_b32 s{sLB}, s{sW}, 11")
A(f"    s_mov_b32 s{sBASE}, 0")
A("    s_mov_b32 s96, 0")
sFAST = 77
F_, L_, DF, BS = SEG, SEG + 4, SEG + 8, X + 36
A(f"    v_lshrrev_b32 v{X+3}, 4, v{xLANE}")
A(f"    s_lshl_b32 s3, s{sW}, 8")
A(f"    s_add_u32 s3, s3, {L_TB}")
A(f"    v_lshl_add_u32 v{X+1}, v{X+3}, 11, s3")
A(f"    v_mul_u32_u24 v{X+2}, {C*8}, v{X+3}")
A(f"    v_and_b32 v{X+3}, 15, v{xLANE}")
A(f"    v_lshl_add_u32 v{X+2}, v{X+3}, 4, v{X+2}")
A(f"    s_mul_i32 s3, s{sW}, {32*C*8}")
A(f"    v_add_u32 v{X+2}, s3, v{X+2}")
A(f"    v_lshlrev_b32 v{X+3}, 5, v{xLANE}")
A(f"    v_add_u32 v{X+3}, {L_TB}, v{X+3}")
A(f"    s_lshl_b32 s4, s{sW}, 13")
A(f"    s_add_u32 s4, s4, {L_RAW}")
STAMP(2)
A(f"    s_waitcnt vmcnt({NOWN if OWNE == 1 else 0}) lgkmcnt(0)")
STAMP(2)
A("    s_barrier")
STAMP(0)
RMASK = int(os.environ.get("RMASK", "1"))
if not RMASK:
    for i in range(8):
        A(f"    ds_read_b32 v{DF+i}, v{X+1} offset:{32*i}")
    for j in range(4):
        A(f"    ds_read_b32 v{T_+j}, v{X} offset:{2048*j}")
    for i in range(8):
        A(f"    s_add_u32 m0, s4, {1024*i}")
        A(f"    s_mov_b32 s3, {4*C*8*i}")
        A(f"    s_waitcnt lgkmcnt({11-i})")
        A(f"    v_and_b32 v{DF+i}, 0xfffe, v{DF+i}")
        A(f"    v_lshl_add_u32 v{DF+i}, v{DF+i}, 3, v{X+2}")
        A(f"    buffer_load_dwordx4 v{DF+i}, s[{S_WS}:{S_WS+3}], s3 offen lds")
else:
    for i in range(8):
        A(f"    ds_read2_b32 v[{DF+2*i}:{DF+2*i+1}], v{X+1} offset0:{8*i} offset1:{8*i+7}")
    for j in range(4):
        A(f"    ds_read_b32 v{T_+j}, v{X} offset:{2048*j}")
    A(f"    v_and_b32 v{BS}, 15, v{xLANE}")
    A(f"    v_lshlrev_b32 v{BS}, 1, v{BS}              ; 2p")
    A(f"    v_mov_b32 v{BS+1}, -16")
    for i in range(8):
        f, l = DF + 2 * i, DF + 2 * i + 1
        A(f"    s_add_u32 m0, s4, {1024*i}")
        A(f"    s_mov_b32 s3, {4*C*8*i}")
        A(f"    s_waitcnt lgkmcnt({11-i})")
        A(f"    v_and_b32 v{f}, 0xfffe, v{f}")
        A(f"    v_add_u32_sdwa v{l}, v{l}, v{l} dst_sel:DWORD dst_unused:UNUSED_PAD src0_sel:WORD_0 src1_sel:WORD_1")
        A(f"    v_sub_u32 v{l}, v{l}, v{f}")
        RH = int(os.environ.get("RHACK", "0"))
        if RH == 1:
            A(f"    v_min_i32 v{l}, 4, v{l}")
        if RH == 2:
            A(f"    v_lshl_add_u32 v{f}, v{f}, 3, v{X+2}")
            A(f"    v_cmp_lt_i32 vcc, v{BS}, v{l}")
            A(f"    s_and_b64 exec, exec, vcc")
            A(f"    s_cbranch_execz LM_rsk{i}")
            A(f"    buffer_load_dwordx4 v{f}, s[{S_WS}:{S_WS+3}], s3 offen{RNT} lds")
            A(f"LM_rsk{i}:")
            A(f"    s_mov_b64 exec, -1")
            continue
        A(f"    v_cmp_lt_i32 vcc, v{BS}, v{l}")
        A(f"    v_lshl_add_u32 v{f}, v{f}, 3, v{X+2}")
        A(f"    s_nop 0")
        A(f"    v_cndmask_b32 v{f}, v{BS+1}, v{f}, vcc")
        A(f"    buffer_load_dwordx4 v{f}, s[{S_WS}:{S_WS+3}], s3 offen{RNT} lds")
for j in range(4):
    A(f"    ds_read2_b32 v[{F_+2*j}:{F_+2*j+1}], v{X+3} offset0:0 offset1:7")
    if j < 3:
        A(f"    v_add_u32 v{X+3}, 2048, v{X+3}")
if not OWNE:
    own_loads()
MPR = int(os.environ.get("MPR", "0"))
MPI = int(os.environ.get("MPI", "2")) if MPR else 0
MPW = int(os.environ.get("MPW", "0"))
MPB = int(os.environ.get("MPB", "0"))
def main_pf(vt):
    A("    s_getreg_b32 s3, hwreg(HW_REG_HW_ID)")
    A("    s_bfe_u32 s5, s3, 0x40008          ; cu")
    A("    s_bfe_u32 s3, s3, 0x2000d          ; se")
    A("    s_mul_i32 s3, s3, 10")
    A("    s_add_u32 s3, s3, s5              ; slot")
    A(f"    s_mul_i32 s3, s3, {MPR*128}")
    if MPB:
        A(f"    s_add_u32 s3, s3, {MPB*128}")
    A(f"    s_mov_b32 m0, {L_CNT}")
    A(f"    v_lshlrev_b32 v{vt}, 7, v0")
    for i in range(MPI):
        A(f"    buffer_load_dword v{vt}, s[{S_H}:{S_H+3}], s3 offen lds")
        if i + 1 < MPI:
            A(f"    s_add_u32 s3, s3, {512*128}")
if MPR and MPW == 0:
    main_pf(X + 2)
STAMP(2)
STAMP(3)
A(f"    v_cmp_gt_u32 vcc, 62, v{xLANE}")
A(f"    v_cmp_gt_u32 s[48:49], 63, v{xLANE}")
A(f"    v_lshlrev_b32 v{X}, 7, v{xLANE}")
A("    s_waitcnt lgkmcnt(0)")
for j in range(4):
    f, l = F_ + 2 * j, F_ + 2 * j + 1
    A(f"    v_and_b32 v{f}, 0xfffe, v{f}")
    A(f"    v_lshrrev_b32 v{X+1}, 16, v{l}")
    A(f"    v_and_b32 v{l}, 0xffff, v{l}")
    A(f"    v_add_u32 v{l}, v{l}, v{X+1}")
    A(f"    v_sub_u32 v{l}, v{l}, v{f}")
    A(f"    v_cndmask_b32 v{l}, 0, v{l}, {'s[48:49]' if j < 2 else 'vcc'}")
    A(f"    v_sub_u32 v{BS+j}, v{X}, v{f}")
    A(f"    v_add_u32 v{BS+j}, {32*j + L_RAW//8}, v{BS+j}")
A(f"    v_max_u32 v{F_+1}, v{F_+1}, v{F_+3}")
A(f"    v_max3_u32 v{F_+1}, v{F_+1}, v{F_+5}, v{F_+7}")
A(f"    v_cmp_lt_u32 vcc, {int(os.environ.get('WIN', '32'))}, v{F_+1}")
A(f"    s_mov_b32 s{sFAST}, {L_Z}")
A("    s_cmp_eq_u64 vcc, 0")
A("    s_cbranch_scc1 LM_round")
A("LM_slowbase:")
A(f"    s_mov_b32 s{sFAST}, -128")
A(f"    v_mul_u32_u24 v{BS}, {4*C}, v{xLANE}")
for j in range(1, 4):
    A(f"    v_add_u32 v{BS+j}, {j*C}, v{BS}")
A("LM_round:")
CN, SM, PP, DL, MK = X + 8, X + 12, X + 16, X + 20, X + 24
xMKA, xI = X + 32, X + 33
A(f"    v_lshl_add_u32 v{xMKA}, v{xLANE}, 5, s{sLB}")
for j in range(4):
    A(f"    v_mov_b32 v{MK+j}, 0")
A(f"    ds_write_b128 v{xMKA}, {vr(MK,4)} offset:{L_W1}")
A(f"    ds_write_b128 v{xMKA}, {vr(MK,4)} offset:{L_W1+16}")
if PH == 2:
    A(f"    s_lshl_b32 s3, s{sW}, 8")
    A(f"    s_add_u32 s3, s3, {L_CNT}")
    A(f"    v_lshl_add_u32 v{xI}, v{xLANE}, 2, s3")
    A(f"    ds_write_b32 v{xI}, v{MK}")
A(f"    v_cmp_gt_u32 vcc, 62, v{xLANE}")
A(f"    v_cmp_gt_u32 s[48:49], 63, v{xLANE}")
A("    s_nop 0")
A(f"    v_cndmask_b32 v{T_+2}, 0, v{T_+2}, vcc")
A(f"    v_cndmask_b32 v{T_+3}, 0, v{T_+3}, vcc")
A(f"    v_cndmask_b32 v{T_}, 0, v{T_}, s[48:49]")
A(f"    v_cndmask_b32 v{T_+1}, 0, v{T_+1}, s[48:49]")
for k in range(4):
    A(f"    v_lshrrev_b32 v{CN+k}, 16, v{T_+k}")
for k in range(4):
    A(f"    v_and_b32 v{T_+k}, 0xffff, v{T_+k}")
A(f"    v_add_u32 v{SM}, v{CN}, v{CN+1}")
A(f"    v_add_u32 v{SM+1}, v{SM}, v{CN+2}")
A(f"    v_add_u32 v{SM+2}, v{SM+1}, v{CN+3}")
A(f"    v_mov_b32 v{SM+3}, v{SM+2}")
wave_scan(SM + 3)
A(f"    v_readlane_b32 s{sT}, v{SM+3}, 63")
A(f"    v_sub_u32 v{PP}, v{SM+3}, v{SM+2}")
A(f"    v_add_u32 v{PP+1}, v{PP}, v{CN}")
A(f"    v_add_u32 v{PP+2}, v{PP}, v{SM}")
A(f"    v_add_u32 v{PP+3}, v{PP}, v{SM+1}")
for k in range(4):
    A(f"    v_add_u32 v{DL+k}, v{BS+k}, v{T_+k}")
    A(f"    v_sub_u32 v{DL+k}, v{DL+k}, v{PP+k}")
A(f"    s_add_u32 s3, s{sLB}, {L_W1}")
A(f"    s_add_u32 s4, s{sLB}, {L_W0}")
A(f"    v_mov_b32 v{SM+1}, s4")
for k in range(4):
    A(f"    v_subrev_u32 v{PP+k}, s{sBASE}, v{PP+k}     ; q")
    A(f"    v_add_u32 v{CN+k}, v{CN+k}, v{PP+k}         ; e")
    A(f"    v_max_i32 v{PP+k}, 0, v{PP+k}")
    A(f"    v_min_i32 v{CN+k}, {CAP}, v{CN+k}")
    A(f"    v_cmp_lt_i32 vcc, v{PP+k}, v{CN+k}")
    A(f"    v_lshl_add_u32 v{PP+k}, v{PP+k}, 2, s3")
    A("    s_nop 0")
    A(f"    v_cndmask_b32 v{PP+k}, v{SM+1}, v{PP+k}, vcc")
    A(f"    ds_write_b32 v{PP+k}, v{DL+k}")
A(f"    ds_read_b128 {vr(MK,4)}, v{xMKA} offset:{L_W1}")
A(f"    ds_read_b128 {vr(MK+4,4)}, v{xMKA} offset:{L_W1+16}")
xEM, xNEG = X + 34, X + 35
A(f"    v_lshl_add_u32 v{xI}, v{xLANE}, 3, s{sBASE}")
A(f"    v_mov_b32 v{xNEG}, s{sFAST}")
A(f"    v_mov_b32 v{xEM}, 0")
A("    s_waitcnt lgkmcnt(0)")
for k in range(1, 8):
    A(f"    v_max_u32 v{MK+k}, v{MK+k}, v{MK+k-1}")
A("    s_nop 1")
A(f"    v_mov_b32_dpp v{xEM}, v{MK+7} wave_shr:1 row_mask:0xf bank_mask:0xf")
for sh in (1, 2, 4, 8):
    A("    s_nop 1")
    A(f"    v_max_u32_dpp v{xEM}, v{xEM}, v{xEM} row_shr:{sh} row_mask:0xf bank_mask:0xf bound_ctrl:0")
A("    s_nop 1")
A(f"    v_max_u32_dpp v{xEM}, v{xEM}, v{xEM} row_bcast:15 row_mask:0xa bank_mask:0xf")
A("    s_nop 1")
A(f"    v_max_u32_dpp v{xEM}, v{xEM}, v{xEM} row_bcast:31 row_mask:0xc bank_mask:0xf")
RR, W0C, W1C = X, X + 16, X + 24
NS = 8
for k in range(NS):
    A(f"    s_sub_u32 s3, s{sT}, {k}")
    A(f"    v_max_u32 v{MK+k}, v{MK+k}, v{xEM}")
    A(f"    v_cmp_gt_i32 vcc, s3, v{xI}")
    A(f"    v_add_u32 v{MK+k}, v{MK+k}, v{xI}")
    A(f"    v_lshlrev_b32 v{MK+k}, 3, v{MK+k}")
    A(f"    v_cndmask_b32 v{MK+k}, v{xNEG}, v{MK+k}, vcc")
A(f"    s_cmp_ge_i32 s{sFAST}, 0")
A("    s_cbranch_scc1 LM_fast1")
for k in range(NS):
    A(f"    buffer_load_dwordx2 {vr(RR+2*k,2)}, v{MK+k}, s[{S_WS}:{S_WS+3}], 0 offen offset:{8*k}")
A("LM_fast1:")
STAMP(3)
A(f"    s_sub_u32 s{sCNT}, s{sT}, s{sBASE}")
A(f"    s_min_u32 s{sCNT}, s{sCNT}, {CAP}")
A(f"    s_add_u32 s3, s{sCNT}, 31")
A(f"    s_lshr_b32 s{sNT}, s3, 5               ; ntiles")
RG = W0C
A(f"    v_and_b32 v{RG}, 7, v{xE32}")
A(f"    v_lshrrev_b32 v{RG+1}, 3, v{xE32}")
A(f"    v_lshl_add_u32 v{RG}, v{RG}, 2, v{RG+1}     ; p(e)")
A(f"    v_lshl_add_u32 v{vL0E}, v{RG}, 2, s{sLB}")
A(f"    v_lshrrev_b32 v{RG}, 3, v{xLANE}")
A(f"    v_lshl_add_u32 v{vL0D}, v{RG}, 4, s{sLB}")
A(f"    v_bfe_u32 v{RG}, v{xLANE}, 1, 3            ; (l/2)%8")
A(f"    v_lshrrev_b32 v{RG+1}, 4, v{xLANE}         ; (l/2)/8")
A(f"    v_lshl_add_u32 v{RG}, v{RG}, 2, v{RG+1}")
A(f"    v_lshl_add_u32 v{vL1P}, v{RG}, 2, s{sLB}")
A(f"    s_lshl_b32 s3, s{sW}, 7")
A(f"    s_add_u32 s3, s3, {L_PS}")
A(f"    s_sub_u32 s3, s3, s{sLB}")
A(f"    v_add_u32 v{RG}, s3, v{vL0E}")
A(f"    v_add_u32 v{RG+1}, s{sNODE}, v{xE32}")
A(f"    v_lshlrev_b32 v{RG+1}, 7, v{RG+1}")
A(f"    ds_write_b32 v{RG}, v{RG+1}")
A(f"    s_lshl_b32 s4, s{sNT}, 7")
A(f"    s_sub_u32 s3, s3, s4")
A(f"    s_sub_u32 s{sDEL}, s3, {L_W0}")
A(f"    s_add_u32 s3, s{sBASE}, {CAP}")
A(f"    s_cmp_ge_u32 s3, s{sT}")
A(f"    s_cselect_b32 s{sTAIL}, {1 if FT else 0}, 0")
A(f"    s_cmp_ge_u32 s{sNT}, 2")
A(f"    s_cselect_b32 s{sTAIL}, s{sTAIL}, 0")
A(f"    s_cmp_lg_u32 s{sBASE}, 0")
A("    s_cbranch_scc1 LM_noat")
A(f"    v_add_u32 v{RG}, {L_WF}, v{xL16}")
for f in range(8):
    A(f"    ds_read_b128 {vr(ACC+4*f,4)}, v{RG} offset:{1024*f}")
for f in range(10):
    A(f"    ds_read_b128 {vr(WSF+4*f,4)}, v{RG} offset:{8192+1024*f}")
for f in range(4):
    A(f"    ds_read_b128 {vr(WX+4*f,4)}, v{RG} offset:{8192+1024*(10+f)}")
A(f"    ds_read_b64 {vr(EA,2)}, v{RG} offset:{8192+1024*14}")
STAMP(3)
if PROF == 3:
    A("    s_waitcnt lgkmcnt(0)")
    STAMP(3)
if MPR and MPW == 1:
    main_pf(RG + 1)
A(f"    s_waitcnt vmcnt({(0 if OWNE else NOWN) + MPI}) lgkmcnt(0)")
STAMP(3)
A("    s_barrier")
STAMP()
if OWNE == 2:
    own_loads(SEG + 24)
A("LM_noat:")
A(f"    s_cmp_ge_i32 s{sFAST}, 0")
A("    s_cbranch_scc1 LM_fast2")
A("    s_waitcnt vmcnt(0)")
A("    s_branch LM_recs")
A("LM_fast2:")
for k in range(NS):
    A(f"    ds_read_b64 {vr(RR+2*k,2)}, v{MK+k} offset:{8*k}")
A("LM_recs:")
if not PH:
    A(f"    v_mov_b32 v{xNEG}, {PADNB}")
    for k in range(NS):
        A(f"    s_sub_u32 s3, s{sT}, {k}")
        A(f"    v_cmp_gt_i32 vcc, s3, v{xI}")
        A(f"    s_waitcnt lgkmcnt({NS-1-k})")
        A(f"    v_mov_b32 v{W1C+k}, v{RR+2*k+1}")
        A(f"    v_cndmask_b32 v{W0C+k}, v{xNEG}, v{RR+2*k}, vcc")
    A(f"    ds_write_b128 v{xMKA}, {vr(W0C,4)} offset:{L_W0}")
    A(f"    ds_write_b128 v{xMKA}, {vr(W0C+4,4)} offset:{L_W0+16}")
    A(f"    ds_write_b128 v{xMKA}, {vr(W1C,4)} offset:{L_W1}")
    A(f"    ds_write_b128 v{xMKA}, {vr(W1C+4,4)} offset:{L_W1+16}")
elif PH == 2:
    RK = SO
    SC, BA, BB, TB = BS, BS + 1, BS + 2, BS + 3
    TA = W1C
    A(f"    v_mov_b32 v{xNEG}, 0x{0x007fff80 | PADNB:x}")
    A(f"    s_lshl_b32 s4, s{sW}, 8")
    A(f"    s_add_u32 s4, s4, {L_CNT}")
    A(f"    v_mov_b32 v{SC}, 1")
    A(f"    v_mov_b32 v{TB}, 0xfc")
    A(f"    v_lshl_add_u32 v{BA}, v{xLANE}, 2, s4")
    A(f"    s_add_u32 s5, s{sLB}, {L_W0}")
    A(f"    v_lshlrev_b32 v{BB}, 3, v{xLANE}")
    for k in range(NS):
        A(f"    s_sub_u32 s3, s{sT}, {k}")
        A(f"    v_cmp_gt_i32 vcc, s3, v{xI}")
        A(f"    v_add_u32 v{RK+k}, {k}, v{BB}")
        if k < 2:
            A(f"    s_waitcnt lgkmcnt({NS-1 if k == 0 else 0})")
        A(f"    v_mov_b32 v{TA+k}, s4")
        A(f"    v_cndmask_b32 v{W0C+k}, v{xNEG}, v{RR+2*k}, vcc")
        A(f"    s_mov_b64 exec, vcc")
        A(f"    v_mul_u32_u24 v{TA+k}, {BINM}, v{W0C+k}")
        A(f"    v_lshrrev_b32 v{TA+k}, 21, v{TA+k}")
        A(f"    v_and_or_b32 v{TA+k}, v{TA+k}, v{TB}, s4")
        A(f"    ds_add_rtn_u32 v{RK+k}, v{TA+k}, v{SC}")
        A(f"    s_mov_b64 exec, -1")
    A(f"    ds_read_b32 v{BB}, v{BA}")
    A("    s_waitcnt lgkmcnt(0)")
    A(f"    v_mov_b32 v{SC}, v{BB}")
    wave_scan(SC)
    A(f"    v_sub_u32 v{SC}, v{SC}, v{BB}")
    A(f"    v_lshl_add_u32 v{SC}, v{SC}, 2, s5")
    A(f"    ds_write_b32 v{BA}, v{SC}")
    for k in range(NS):
        A(f"    ds_read_b32 v{RR+2*k}, v{TA+k}")
    assert L_W1 - L_W0 == 64 * 256
    for k in range(NS):
        A(f"    s_waitcnt lgkmcnt({NS-1})")
        A(f"    v_lshl_add_u32 v{TA+k}, v{RK+k}, 2, v{RR+2*k}")
        A(f"    ds_write2st64_b32 v{TA+k}, v{W0C+k}, v{RR+2*k+1} offset0:0 offset1:64")
else:
    FS = (64, 66, 68, 70, 72, 74, 78, 80)
    RK = SO
    SC, BA, BB, TB = BS, BS + 1, BS + 2, BS + 3
    TA = W1C
    A(f"    v_mov_b32 v{xNEG}, 0x{0x007fff80 | PADNB:x}")
    A(f"    s_mov_b32 s4, {TH << 7}")
    A(f"    v_mov_b32 v{RK}, 0")
    for k in range(NS):
        A(f"    s_sub_u32 s3, s{sT}, {k}")
        A(f"    v_cmp_gt_i32 vcc, s3, v{xI}")
        A(f"    s_waitcnt lgkmcnt({NS-1-k})")
        A(f"    s_nop 0")
        A(f"    v_cndmask_b32 v{W0C+k}, v{xNEG}, v{RR+2*k}, vcc")
        A(f"    v_cmp_le_u32 s[{FS[k]}:{FS[k]+1}], s4, v{W0C+k}")
        A(f"    s_nop 1")
        A(f"    v_addc_co_u32 v{RK+k+1 if k < 7 else BA}, vcc, v{RK+k}, 0, s[{FS[k]}:{FS[k]+1}]")
    A(f"    v_mov_b32 v{SC}, v{BA}")
    wave_scan(SC)
    A(f"    v_readlane_b32 s3, v{SC}, 63")
    A(f"    v_sub_u32 v{SC}, v{SC}, v{BA}        ; P")
    A(f"    s_sub_u32 s3, {CAP}, s3               ; N0")
    A(f"    s_lshl_b32 s3, s3, 2")
    A(f"    s_add_u32 s5, s{sLB}, {L_W0}")
    A(f"    s_add_u32 s3, s3, s5")
    A(f"    v_lshl_add_u32 v{BA}, v{SC}, 2, s3")
    A(f"    v_lshlrev_b32 v{BB}, 3, v{xLANE}")
    A(f"    v_sub_u32 v{BB}, v{BB}, v{SC}")
    A(f"    v_lshl_add_u32 v{BB}, v{BB}, 2, s5")
    assert L_W1 - L_W0 == 64 * 256
    for k in range(NS):
        A(f"    v_lshl_add_u32 v{TA+k}, v{RK+k}, 2, v{BA}")
        A(f"    v_sub_u32 v{TB}, {k}, v{RK+k}")
        A(f"    v_lshl_add_u32 v{TB}, v{TB}, 2, v{BB}")
        A(f"    v_cndmask_b32 v{TA+k}, v{TB}, v{TA+k}, s[{FS[k]}:{FS[k]+1}]")
        A(f"    ds_write2st64_b32 v{TA+k}, v{W0C+k}, v{RR+2*k+1} offset0:0 offset1:64")
A(f"    s_cmp_lg_u32 s{sBASE}, 0")
A("    s_cbranch_scc1 LM_nob3")
A("    s_barrier")
A("LM_nob3:")
STAMP()
STAMP(4)
PRB = [int(x) for x in os.environ.get("PRB", "10,7,4").split(",")]
PRS = []
if PROF == 4:
    for _ in PRB:
        PRS.append(_stamp[0]); _stamp[0] += 1
def at_block():
    A(f"    v_mov_b32 v{RG+2}, 0")
    A(f"    v_mov_b32 v{RG+3}, 0")
    A(f"    v_lshl_add_u32 v{RG}, v{xHH}, 5, v{vSWL}")
    for j in range(4):
        A(f"    ds_write_b64 v{RG}, {vr(RG+2,2)} offset:{8*j}")
    for t in range(2):
        for s_ in range(4):
            c = "0" if s_ == 0 else vr(SEG+16*t,16)
            A(f"    v_mfma_f32_32x32x16_bf16 {vr(SEG+16*t,16)}, {vr(HB+4*s_,4)}, {vr(ACC+4*(2*s_+t),4)}, {c}")
    A(f"    v_lshl_add_u32 v{RG}, v{xE32}, 4, s{sPAB}")
    A(f"    v_mov_b32 v{PD+2}, v{PD+1}")
    A(f"    v_and_b32 v{PD+1}, s{sHI}, v{PD}")
    A(f"    v_lshlrev_b32 v{PD}, 16, v{PD}")
    A(f"    ds_write_b96 v{RG}, {vr(PD,3)}")
    for j in range(4):
        A(f"    v_mov_b32 v{PAC+j}, 0")
    A(f"    s_mov_b32 s3, 0x{LOG2E:08x}")
    A("    s_nop 7")
    for r in range(32):
        A(f"    v_mul_f32 v{SEG+r}, s3, v{SEG+r}")
    for t in range(2):
        for u in range(2):
            for j in range(4):
                A(f"    v_cvt_pk_bf16_f32 v{atf(u,t)+j}, v{SEG+16*t+8*u+2*j}, v{SEG+16*t+8*u+2*j+1}")
        A(f"    v_bfi_b32 v{atf(1,t)+3}, v{vMASK}, v{EA+t}, v{atf(1,t)+3}")
    for r in range(32):
        A(f"    v_mov_b32 v{SEG+r}, 0")


def V(t): return ('v', t, None)
def M(t): return ('m', t, None)
def DS(t, tag=None): return ('ds', t, tag)
def VM(t): return ('vm', t, None)
def S(t): return ('s', t, None)
def WL(tag): return ('wl', None, tag)
def WV(n): return ('s', f"s_waitcnt vmcnt({n})", None)

def mf(d, a, b, c0=False, ty="bf16"):
    return M(f"v_mfma_f32_32x32x16_{ty} {vr(d,16)}, {vr(a,4)}, {vr(b,4)}, {'0' if c0 else vr(d,16)}")
def chain(t):
    d = ACC + 16 * t
    l = [mf(d, wsf(s, t), HB + 4 * s, s == 0) for s in range(4)]
    l.append(mf(d, WAE + 4 * t, EA))
    l += [mf(d, atf(u, t), SO + 4 * u) for u in range(2)]
    return l
def seg(t, s):
    return mf(SEG + 16 * t, TRM + 4 * s, TRS + 4 * s, ty=MT)
def csm(t, u):
    c = '0' if (t == 0 and u == 0) else vr(CS, 4)
    return M(f"v_mfma_f32_16x16x32_{MT} {vr(CS,4)}, {vr(WX+8*t+4*u,4)}, {vr(PK+8*t+4*u,4)}, {c}")
def list_reads(k):
    return [DS(f"ds_read_b128 {vr(W0D,4)}, v{vL0D} offset:{L_W0 + 128*k}"),
            DS(f"ds_read_b32 v{vW1P}, v{vL1P} offset:{L_W1 + 128*k}"),
            DS(f"ds_read_b32 v{vW0E3}, v{vL0E} offset:{L_W0 + 128*k}", 'L3')]
def list_reads_loop(par):
    k = par + 3
    return [S(f"s_cmp_eq_u32 s{sNT}, 2"), S(f"s_cselect_b32 s{sINC}, s{sDEL}, 128"),
            V(f"v_add_u32 v{vL0D}, s{sINC}, v{vL0D}"),
            DS(f"ds_read_b128 {vr(W0D,4)}, v{vL0D} offset:{L_W0 + 256}"),
            DS(f"ds_read_b32 v{vW1P}, v{vL1P} offset:{L_W1 + 128*k}"),
            DS(f"ds_read_b32 v{vW0E3}, v{vL0E} offset:{L_W0 + 128*k}", 'L3')]
def srd_ops():
    return [S(f"s_cmp_lt_u32 s{sNT}, 4"), S(f"s_cselect_b32 s{sTMP}, 0, {N*128}"),
            S(f"s_cselect_b32 s{S_EA+2}, 0, s{S_EA+2}"), S(f"s_cselect_b32 s{S_P4+2}, 0, s{S_P4+2}"),
            S(f"s_cmp_eq_u32 s{sNT}, 2"), S(f"s_cselect_b32 s{S_H+2}, {N*128}, s{sTMP}")]
def dma_addr():
    l = [V(f"v_and_or_b32 v{W0D+i}, v{W0D+i}, s{sAM}, v{vSWZ[i&1]}") for i in range(4)]
    if os.environ.get("HOTEA"):
        l.append(V(f"v_and_or_b32 v{vW1P}, v{vW1P}, s{sHOT}, v{vEAO}"))
    else:
        l.append(V(f"v_add_u32 v{vW1P}, v{vW1P}, v{vEAO}"))
    l.append(V(f"v_bfe_u32 v{vW0E3}, v{vW0E3}, 7, 16"))
    return l
def dma_pairs(q):
    l = []
    for i in range(4):
        l.append((S(f"s_add_u32 m0, s{sSTG}, {q*ST_SZ + i*1024}"),
                  VM(f"buffer_load_dwordx4 v{W0D+i}, s[{S_H}:{S_H+3}], 0 offen lds")))
    l.append((S(f"s_add_u32 m0, s{sSTG}, {q*ST_SZ + 4096}"),
              VM(f"buffer_load_dwordx4 v{vW1P}, s[{S_EA}:{S_EA+3}], 0 offen{EANT} lds")))
    pos = [S(f"s_mov_b64 exec, s[{sHIGH}:{sHIGH+1}]"),
           VM(f"buffer_load_dwordx2 {vr(PS[q],2)}, v{vW0E3}, s[{S_P4}:{S_P4+3}], s{sP4O} idxen"),
           S("s_mov_b64 exec, -1")]
    return l, pos
def stage_reads(q):
    l = [DS(f"ds_read_b128 {vr(HB+4*s,4)}, v{vHBA[s]} offset:{q*ST_SZ}") for s in range(4)]
    l.append(DS(f"ds_read_b128 {vr(EA,4)}, v{vEAR} offset:{q*ST_SZ}"))
    return l
def nb_ops(q):
    return [V(f"v_and_b32 v{vNB}, 31, v{vW0E}"),
            V(f"v_mad_u32_u24 v{vW0E}, v{vNB}, s{sIDRS}, v{vIDB}"),
            V(f"v_lshl_add_u32 v{PD}, v{vNB}, 4, s{sPAB}")]
def so_reads(q):
    return [DS(f"ds_read_b128 {vr(SO,4)}, v{vW0E}"),
            DS(f"ds_read_b128 {vr(SO+4,4)}, v{vW0E} offset:32"),
            DS(f"ds_read_b96 {vr(PD,3)}, v{PD}", 'PD')]
def pre_ops(q):
    d = DX[q]; p = PS[q]
    return [V(f"v_sub_f32 v{PD}, v{PD}, v{p+2}"),
            V(f"v_sub_f32 v{PD+1}, v{PD+1}, v{p}"),
            V(f"v_sub_f32 v{PD+2}, v{PD+2}, v{p+1}"),
            V(f"v_cvt_pk_bf16_f32 v{PD}, v{PD}, v{PD+1}"),
            V(f"v_cvt_pk_bf16_f32 v{PD+2}, v{PD+2}, v{PD+2}"),
            V(f"v_lshlrev_b32 v{d}, 16, v{PD}"),
            V(f"v_and_b32 v{d+1}, s{sHI}, v{PD}"),
            V(f"v_lshlrev_b32 v{d+2}, 16, v{PD+2}"),
            V(f"v_mul_f32 v{PD+1}, v{d}, v{d}"),
            V(f"v_fma_f32 v{PD+1}, v{d+1}, v{d+1}, v{PD+1}"),
            V(f"v_fma_f32 v{PD+1}, v{d+2}, v{d+2}, v{PD+1}"),
            V(f"v_cvt_pk_bf16_f32 v{PD+1}, v{PD+1}, v{PD+1}"),
            V(f"v_bfi_b32 v{SO+7}, v{vMASK}, v{PD+1}, v{SO+7}")]
def unp_ops(q):
    p = PS[q]
    return [V(f"v_lshlrev_b32 v{p+2}, 16, v{p}"),
            V(f"v_and_b32 v{p}, s{sHI}, v{p}")]
def post_ops(q):
    d = DX[q]
    va = [V(f"v_mul_f32 v{CS}, s{sLN2}, v{CS}"),
          V(f"v_cvt_pk_bf16_f32 v{CS}, v{CS}, v{CS}"),
          V(f"v_and_b32 v{CS}, s{sHI}, v{CS}"),
          V(f"v_mul_f32 v{d}, v{d}, v{CS}"),
          V(f"v_mul_f32 v{d+1}, v{d+1}, v{CS}"),
          V(f"v_mul_f32 v{d+2}, v{d+2}, v{CS}"),
          V(f"{CVT} v{CS+2}, v{d}, v{d+1}"),
          V(f"{CVT} v{CS+3}, v{d+2}, v{d+2}")]
    da = [S(f"s_mov_b64 exec, s[{sHIGH}:{sHIGH+1}]"),
          DS(f"ds_write_b64 v{vSWL}, {vr(CS+2,2)} offset:64"),
          S("s_mov_b64 exec, -1")]
    da += [DS(f"ds_read_b64_tr_b16 {vr(TRM+4*s+2*p,2)}, v{vTRP} offset:{(4*s+p)*MS_RS}", 'TRP' if (s, p) == (1, 1) else None)
           for s in range(2) for p in range(2)]
    pm = [M(f"v_mfma_f32_16x16x32_{MT} {vr(PAC,4)}, {vr(TRM+4*s,4)}, {vr(TRS+4*s,4)}, {vr(PAC,4)}") for s in range(2)]
    return va, da, pm
def m_write(t, qs):
    return [DS(f"ds_write_b64 v{vMWL}, {vr(PK+8*t+2*q,2)} offset:{16*q}") for q in qs]
def trm_reads(tag):
    l = [DS(f"ds_read_b64_tr_b16 {vr(TRM+4*s+2*p,2)}, v{vTRL} offset:{(4*s+p)*MS_RS}") for s in range(2) for p in range(2)]
    l[-1] = (l[-1][0], l[-1][1], tag)
    return l
def trs_reads():
    l = [DS(f"ds_read_b64_tr_b16 {vr(TRS+4*s+2*p,2)}, v{vTRL} offset:{(4*s+p)*MS_RS+64}") for s in range(2) for p in range(2)]
    l[-1] = (l[-1][0], l[-1][1], 'TRS')
    return l
SA_OP = V(f"v_lshl_add_u32 v{vSA}, v{vNB}, 1, v{vSWL}")

def silu_stream(t):
    a = ACC + 16 * t
    l = []
    if F16:
        LO = "dst_sel:WORD_0 dst_unused:UNUSED_PRESERVE src0_sel:WORD_0"
        HI = "dst_sel:WORD_1 dst_unused:UNUSED_PRESERVE src0_sel:WORD_1"
        for g in range(2):
            js = range(4)
            pk = lambda j: PK + 8 * t + 4 * g + j
            tm = lambda j: TMP + 4 * g + j
            l += [V(f"v_cvt_pk_f16_f32 v{pk(j)}, v{a+8*g+2*j}, v{a+8*g+2*j+1}") for j in js]
            l += [V(f"v_exp_f16 v{tm(j)}, v{pk(j)}") for j in js]
            l += [V(f"v_exp_f16_sdwa v{tm(j)}, v{pk(j)} {HI}") for j in js]
            l += [V(f"v_pk_add_f16 v{tm(j)}, v{tm(j)}, s{sONE2}") for j in js]
            l += [V(f"v_rcp_f16_sdwa v{tm(j)}, v{tm(j)} {LO}") for j in js]
            l += [V(f"v_rcp_f16_sdwa v{tm(j)}, v{tm(j)} {HI}") for j in js]
            l += [V(f"v_pk_mul_f16 v{pk(j)}, v{pk(j)}, v{tm(j)}") for j in js]
        return l
    for g in range(2):
        rs = range(8 * g, 8 * g + 8)
        l += [V(f"v_exp_f32 v{TMP+r%8}, v{a+r}") for r in rs]
        l += [V(f"v_add_f32 v{TMP+r%8}, 1.0, v{TMP+r%8}") for r in rs]
        l += [V(f"v_rcp_f32 v{TMP+r%8}, v{TMP+r%8}") for r in rs]
        l += [V(f"v_mul_f32 v{a+r}, v{a+r}, v{TMP+r%8}") for r in rs]
        l += [V(f"v_cvt_pk_bf16_f32 v{PK+8*t+4*g+j}, v{a+8*g+2*j}, v{a+8*g+2*j+1}") for j in range(4)]
    return l

def remap(p):
    g, r = divmod(p, 36)
    if r < 8: n = r
    elif r < 16: n = 8 + (r - 8) // 2
    elif r < 24: n = 12 + (r - 16)
    elif r < 32: n = 20 + (r - 24) // 2
    else: n = 24 + (r - 32)
    return 28 * g + n
def merge(main, side):
    res = []
    if F16:
        side = [((p * 28 + 35) // 36, o) for p, o in side]
    side = sorted(enumerate(side), key=lambda x: (x[1][0], x[0]))
    k = 0
    for i in range(len(main) + 1):
        while k < len(side) and side[k][1][0] <= i:
            ops = side[k][1][1]
            res += ops if isinstance(ops, list) else [ops]
            k += 1
        if i < len(main):
            res.append(main[i])
    assert k == len(side)
    return res

VMW = int(os.environ.get("VMW", "0"))
def wv6():
    if not VMW:
        return [WV(6)]
    l = [WV(6)] if VMW == 2 else []
    l += [S("s_memtime s[64:65]"), S("s_waitcnt lgkmcnt(0)"), WV(6), S("s_memtime s[66:67]"), S("s_waitcnt lgkmcnt(0)"),
          S("s_sub_u32 s64, s66, s64"), S("s_add_u32 s96, s96, s64")]
    return l
SPREAD = int(os.environ.get("SPREAD", "0"))
SPOS = [int(x) for x in os.environ.get("SPOS", "12,23,34,45,56,67").split(",")]
def phaseA(par):
    q = 1 - par
    ch = chain(1)
    pv, pd, pm = post_ops(q)
    nb = nb_ops(q)
    sd = [(0, DS(f"ds_read_b32 v{vW0E}, v{vL0E} offset:{L_W0 + 128*(par+1)}", 'W0E')),
          (0, ch[0]), (5, [WL('TRM1'), seg(1, 0)]), (8, ch[1]), (12, seg(1, 1)), (16, ch[2]),
          (20, csm(1, 0)), (24, ch[3]), (27, csm(1, 1)), (30, ch[4]),
          (36, m_write(0, (0, 1))), (36, ch[5]),
          (38, wv6() + stage_reads(q)), (42, ch[6]),
          (39, pv[0]), (40, pv[1]), (41, pv[2]), (43, pv[3]), (44, pv[4]), (45, pv[5]), (46, pv[6]), (47, [pv[7]] + pd),
          (48, [WL('W0E'), nb[0]]), (49, nb[1]), (50, nb[2]), (51, so_reads(q)),
          (53, unp_ops(q)[0]), (55, unp_ops(q)[1]),
          (64, [WL('TRP'), pm[0]]), (67, pm[1]),
          (60, DS(f"ds_write_b16 v{vSA}, v{vONE}")),
          (72, m_write(0, (2, 3)) + trm_reads('TRM0') + trs_reads() + [DS(f"ds_write_b16 v{vSA}, v{vZERO}")])]
    if SPREAD:
        sd += [(57, list_reads_loop(par))]
    if BAL:
        sd += [(2, V(f"v_mov_b32 v{W0D}, s{sNT}") if BAL == 1 else [S(f"s_sub_u32 s{sPUB}, s{sNT}, s{sBIAS}"), V(f"v_mov_b32 v{W0D}, s{sPUB}")]), (3, V(f"v_mov_b32 v{W0D+1}, s{sPGW}")),
               (4, V(f"v_mov_b32 v{W0D+2}, s{sPGR}")),
               (6, [DS(f"ds_write_b32 v{W0D+1}, v{W0D}"), DS(f"ds_read_b32 v{W0D+3}, v{W0D+2}", 'PG')]),
               (33, [WL('PG'), V(f"v_readfirstlane_b32 s{sPGP}, v{W0D+3}")]),
               (35, [S("s_setprio 0"), S(f"s_cmp_gt_u32 s{sNT}, s{sPGP}"), S(f"s_cbranch_scc0 LM_pg{par}"),
                     S("s_setprio 1"), S(f"LM_pg{par}:")])]
    return merge(silu_stream(0), sd)

def phaseB(par):
    q = 1 - par
    ch = chain(0)
    pr = pre_ops(q)
    da = dma_addr()
    dp, dpos = dma_pairs(q)
    sd = [(0, list_reads_loop(par)),
          (31, srd_ops()),
          (2, [WL('PD'), pr[0]]), (3, pr[1]), (4, pr[2]), (6, pr[3]), (7, pr[4]), (9, pr[5]), (10, pr[6]),
          (11, pr[7]), (13, pr[8]), (14, pr[9]), (15, pr[10]), (17, pr[11]), (18, pr[12]),
          (4, ch[0]), (8, [WL('TRS'), seg(0, 0)]), (12, ch[1]), (16, seg(0, 1)), (20, ch[2]),
          (23, csm(0, 0)), (27, ch[3]), (30, csm(0, 1)), (33, ch[4]),
          (36, m_write(1, (0, 1))), (19, SA_OP), (39, ch[5]), (46, ch[6]),
          (21, [WL('L3'), da[0]]), (22, da[1]), (24, da[2]), (25, da[3]), (26, da[4]), (28, da[5]),
          (39, dp[0][0]), (41, dp[0][1]), (43, dp[1][0]), (44, dp[1][1]), (47, dp[2][0]), (48, dp[2][1]),
          (49, dp[3][0]), (51, dp[3][1]), (52, dp[4][0]), (54, dp[4][1]), (56, dpos),
          (72, m_write(1, (2, 3)) + trm_reads('TRM1'))]
    if SPREAD:
        sd = [(0, srd_ops()),
          (2, [WL('L3'), pr[0]]), (3, pr[1]), (4, pr[2]), (6, pr[3]), (7, pr[4]), (13, pr[5]), (14, pr[6]),
          (15, pr[7]), (17, pr[8]), (18, pr[9]), (21, pr[10]), (22, pr[11]), (24, pr[12]),
          (4, ch[0]), (8, [WL('TRS'), seg(0, 0)]), (12, ch[1]), (16, seg(0, 1)), (20, ch[2]),
          (23, csm(0, 0)), (27, ch[3]), (30, csm(0, 1)), (33, ch[4]),
          (36, m_write(1, (0, 1))), (25, SA_OP), (39, ch[5]), (46, ch[6]),
          (5, da[0]), (9, da[1]), (10, da[2]), (11, da[3]), (26, da[4]), (28, da[5]),
          (72, m_write(1, (2, 3)) + trm_reads('TRM1'))]
        for i in range(5):
            sd += [(SPOS[i] - 2, dp[i][0]), (SPOS[i], dp[i][1])]
        sd += [(SPOS[5], dpos)]
    if par == 1 and not MB:
        sd += [(60, V(f"v_add_u32 v{vL0E}, 256, v{vL0E}")),
               (64, V(f"v_add_u32 v{vL1P}, 256, v{vL1P}"))]
    return merge(silu_stream(1), sd)

def resolve(body):
    n = len(body)
    res = []
    for i, op in enumerate(body):
        if op[0] != 'wl':
            res.append(op[1]); continue
        cnt = 0
        for d in range(1, n + 1):
            o = body[(i - d) % n]
            if o[0] == 'ds':
                if o[2] == op[2]:
                    break
                cnt += 1
        else:
            raise Exception("tag not found " + op[2])
        res.append(f"s_waitcnt lgkmcnt({min(cnt, 15)})")
    return res

def resolve_lin(body, start):
    res = []
    for i in range(start, len(body)):
        op = body[i]
        if op[0] != 'wl':
            res.append(op[1]); continue
        cnt = 0
        for d in range(1, i + 1):
            o = body[i - d]
            if o[0] == 'ds':
                if o[2] == op[2]:
                    break
                cnt += 1
        else:
            raise Exception("tag not found " + op[2])
        res.append(f"s_waitcnt lgkmcnt({min(cnt, 15)})")
    return res
eE32, eHH, eH16, eL16, eNODE, eSTO, ePOFF, eT = PS0, PS0 + 1, PS0 + 2, W0D, W0D + 1, W0D + 2, W0D + 3, PS1
def whreg(f):
    return WSF + 4 * f if f < 14 else SO + 4 * (f - 14)
WHORD = (8, 9, 10, 11, 12, 13, 14, 15, 0, 1, 2, 3, 4, 5, 6, 7)
def wh_pre():
    return [V(f"v_and_b32 v{eL16}, 63, v0"), V(f"v_lshlrev_b32 v{eL16}, 4, v{eL16}")] + \
           [S(f"s_mov_b32 s{sWH+j}, {WF_OFF + 24*1024 + 4096*j}") for j in range(4)]
def wh_load(f):
    return VM(f"buffer_load_dwordx4 {vr(whreg(f),4)}, v{eL16}, s[{S_WS}:{S_WS+3}], s{sWH + f//4} offen offset:{(f%4)*1024}")
def tailB(par):
    sd = [(0, wh_pre() + [S(f"s_mov_b32 s{sTMP}, {par*ST_SZ}")]),
          (8, [WL('TRS'), seg(0, 0)]), (16, seg(0, 1)), (23, csm(0, 0)), (30, csm(0, 1)),
          (36, m_write(1, (0, 1))),
          (52, [WV(16)] + stage_reads(par)[:4]),
          (72, m_write(1, (2, 3)) + trm_reads('TRM1'))]
    for i, f in enumerate(WHORD):
        sd.append((2 + 2 * i + (0 if i < 3 else 2), wh_load(f)))
    return merge(silu_stream(1), sd)
def emit(ops):
    for o in ops:
        assert o[0] != 'wl'
        A("    " + o[1])
def emit_dma(q):
    dp, dpos = dma_pairs(q)
    for a, b in dp:
        emit([a, S("s_nop 0"), b])
    emit(dpos)

fill_start = len(out)
A(f"    s_cmp_lg_u32 s{sNT}, 0")
A("    s_cbranch_scc1 LM_g01")
A("    s_waitcnt vmcnt(0)")
A("    s_branch LM_nog")
A("LM_g01:")
for k in range(2):
    emit(list_reads(k))
    A("    s_waitcnt lgkmcnt(0)")
    emit(dma_addr())
    emit_dma(k)
A("LM_nog:")
A(f"    s_cmp_lg_u32 s{sBASE}, 0")
A("    s_cbranch_scc1 LM_noat2")
A(f"    s_waitcnt vmcnt({12 + MPI})")
at_block()
A("LM_noat2:")
A(f"    s_cmp_eq_u32 s{sNT}, 0")
A("    s_cbranch_scc1 LM_tiles_done")
A(f"    ds_read_b32 v{vW0E}, v{vL0E} offset:{L_W0}")
emit(list_reads(2))
for r in list(range(TRM, TRM + 16)) + list(range(PK + 8, PK + 16)) + list(range(CS, CS + 4)) + list(range(DX[1], DX[1] + 3)):
    A(f"    v_mov_b32 v{r}, 0")
A("    s_waitcnt lgkmcnt(0)")
emit(nb_ops(0))
emit([SA_OP])
emit(dma_addr())
A("    s_waitcnt vmcnt(6)")
emit(stage_reads(0))
emit(so_reads(0))
emit(unp_ops(0))
A("    s_waitcnt lgkmcnt(0)")
emit(pre_ops(0))
emit_dma(0)
emit(chain(0))
A("    s_nop 15")
if MB:
    A(f"    s_mov_b32 s{sNT}, 400")
    STAMP()
HALF = None
body = []
marks = []
for par in range(2):
    body += phaseA(par)
    body.append(('br', 2 + par, None))
    body += phaseB(par)
    body.append(('br', par, None))
XF = os.environ.get("XF", "").split(",")
def keep(o):
    if o[0] in ('br', 'wl'): return True
    t = o[1]
    if 'nodma' in XF and o[0] == 'vm': return False
    if 'noea' in XF and o[0] == 'vm' and f"s[{S_EA}:" in t: return False
    if 'noh' in XF and o[0] == 'vm' and f"s[{S_H}:" in t: return False
    if 'nopos' in XF and o[0] == 'vm' and f"s[{S_P4}:" in t: return False
    if 'noadd' in XF and t.startswith('ds_add'): return False
    if 'nomw' in XF and t.startswith('ds_write'): return False
    if 'notrans' in XF and (t.startswith('v_exp') or t.startswith('v_rcp')): return False
    if 'norcp' in XF and t.startswith('v_rcp'): return False
    if 'halfrcp' in XF and t.startswith('v_rcp') and 'WORD_1' in t: return False
    if 'novalu' in XF and o[0] == 'v': return False
    if 'nomfma' in XF and o[0] == 'm': return False
    if 'nods' in XF and o[0] == 'ds' and o[2] is None: return False
    return True
body = [o for o in body if keep(o)]
flat = [o for o in body if o[0] != 'br']
txt = resolve(flat)
A("LM_loop:")
k = 0
loop_lines = []
for o in body:
    if o[0] == 'br':
        l = [f"s_sub_u32 s{sNT}, s{sNT}, 1"]
        if PROF == 4 and o[1] < 2:
            for kk, si in zip(PRB, PRS):
                l += [f"s_cmp_eq_u32 s{sNT}, {kk}", f"s_cbranch_scc0 LM_prb{o[1]}_{kk}", f"s_memtime s[{82+2*si}:{83+2*si}]", f"LM_prb{o[1]}_{kk}:"]
        if o[1] >= 2:
            l = [f"s_cmp_eq_u32 s{sNT}, s{sTAIL}", f"s_cbranch_scc1 LM_tail{o[1]-2}"]
        elif o[1] == 0:
            l += [f"s_cmp_eq_u32 s{sNT}, 0", "s_cbranch_scc1 LM_drain0"]
        else:
            l += [f"s_cmp_lg_u32 s{sNT}, 0", "s_cbranch_scc1 LM_loop"]
        for x in l:
            A("    " + x); loop_lines.append(x)
    else:
        A("    " + txt[k]); loop_lines.append(txt[k]); k += 1
def drain(par):
    l = [S("s_waitcnt lgkmcnt(0)"), seg(1, 0), seg(1, 1), csm(1, 0), csm(1, 1), S("s_nop 9")]
    pv, pd, pm = post_ops(par)
    return l + pv + pd + [S("s_waitcnt lgkmcnt(0)")] + pm
tail_txt = {}
for par in range(2):
    pre = phaseA(1 - par) + phaseB(1 - par) + phaseA(par)
    pre = [o for o in pre if keep(o)]
    tl = [o for o in tailB(par) if keep(o)]
    tail_txt[par] = resolve_lin(pre + tl, len(pre)) + [o[1] for o in drain(par)]
emit(drain(1))
A("    s_branch LM_tiles_done")
for par in range(2):
    A(f"LM_tail{par}:")
    for x in tail_txt[par]:
        A("    " + x)
    A("    s_branch LM_epif")
A("LM_drain0:")
emit(drain(0))
A("LM_tiles_done:")
A(f"    s_mov_b32 s{S_H+2}, {N*128}")
A(f"    s_mov_b32 s{S_EA+2}, {E*32}")
A(f"    s_mov_b32 s{S_P4+2}, {N}")
errs = lint(out[fill_start:out.index("LM_loop:")] + loop_lines + loop_lines + [o[1] for o in drain(1)], "loop")
half = loop_lines.index("s_cbranch_scc1 LM_drain0") + 1
errs += lint(loop_lines[:half] + [o[1] for o in drain(0)], "drain0")
for par in range(2):
    cut = loop_lines.index(f"s_cbranch_scc1 LM_tail{par}") + 1
    errs += lint(loop_lines + loop_lines[:cut] + tail_txt[par], f"tail{par}")
for e in errs:
    print("LINT", e)
nv = sum(1 for l in loop_lines if l.startswith("v_") and not l.startswith("v_mfma"))
print("loop: instrs", len(loop_lines), "valu", nv, "per tile", nv / 2)

A("    s_waitcnt vmcnt(0) lgkmcnt(0)")
A(f"    s_add_u32 s{sBASE}, s{sBASE}, {CAP}")
A(f"    s_cmp_ge_u32 s{sBASE}, s{sT}")
A("    s_cbranch_scc1 LM_epi")
lane_consts()
if TROW:
    A(f"    s_lshl_b32 s3, s2, 5")
    A(f"    s_lshl_b32 s4, s{sW}, 2")
    A(f"    s_add_u32 s3, s3, s4")
    A(f"    s_add_u32 s3, s3, {TBL_OFF}")
    A(f"    v_mul_u32_u24 v{X}, {4*TRS_}, v{xLANE}")
    for j in range(4):
        A(f"    buffer_load_dword v{T_+j}, v{X}, s[{S_WS}:{S_WS+3}], s3 offen")
        A(f"    s_add_u32 s3, s3, {TRS_}")
else:
    A(f"    s_lshl_b32 s3, s2, 13")
    A(f"    s_lshl_b32 s4, s{sW}, 2")
    A(f"    s_add_u32 s3, s3, s4")
    A(f"    s_add_u32 s3, s3, {TBL_OFF}")
    A(f"    v_lshlrev_b32 v{X}, 5, v{xLANE}")
    A(f"    v_add_u32 v{X+1}, 4096, v{X}")
    for j in range(4):
        A(f"    buffer_load_dword v{T_+j}, v{X+j//2}, s[{S_WS}:{S_WS+3}], s3 offen offset:{2048*(j%2)}")
A("    s_waitcnt vmcnt(0)")
A("    s_branch LM_slowbase")
HD = TRM
def whf(q, tp):
    return whreg(2 * q + tp)
def epilogue(fast):
    epi_start = len(out)
    A(f"    v_and_b32 v{eE32}, 31, v0")
    A(f"    v_bfe_u32 v{eHH}, v0, 5, 1")
    A(f"    v_add_u32 v{eNODE}, s{sNODE}, v{eE32}")
    A(f"    v_lshlrev_b32 v{eSTO}, 7, v{eNODE}")
    A(f"    v_lshl_add_u32 v{eSTO}, v{eHH}, 3, v{eSTO}")
    if not fast:
        A(f"    v_lshlrev_b32 v{eH16}, 4, v{eHH}")
        emit(wh_pre())
        for f in WHORD:
            emit([wh_load(f)])
        A(f"    v_lshl_add_u32 v{eT}, v{eNODE}, 7, v{eH16}")
        for s in range(4):
            A(f"    buffer_load_dwordx4 {vr(HB+4*s,4)}, v{eT}, s[{S_H}:{S_H+3}], 0 offen offset:{32*s}")
        for t in range(2):
            for q in range(4):
                A(f"    buffer_load_dwordx2 {vr(HD+8*t+2*q,2)}, v{eSTO}, s[{S_H}:{S_H+3}], 0 offen offset:{64*t+16*q}")
    else:
        A(f"    s_add_u32 s{sTMP}, s{sTMP}, s{sSTG}")
    if fast or LOUT:
        if not fast:
            A(f"    s_mov_b32 s{sTMP}, s{sSTG}")
        A(f"    v_lshrrev_b32 v{eT}, 3, v{eE32}          ; i")
        A(f"    v_and_b32 v{eH16}, 7, v{eE32}            ; r")
        A(f"    v_lshl_add_u32 v{ePOFF}, v{eT}, 10, s{sTMP}")
        A(f"    v_lshl_add_u32 v{ePOFF}, v{eH16}, 7, v{ePOFF}")
        A(f"    v_lshl_add_u32 v{ePOFF}, v{eHH}, 3, v{ePOFF}")
        A(f"    v_and_b32 v{eT}, 1, v{eT}")
        A(f"    v_xor_b32 v{eT}, v{eT}, v{eH16}          ; x")
        A(f"    v_lshl_add_u32 v{ePOFF}, v{eT}, 4, v{ePOFF}")
        for c in range(8):
            A(f"    v_xor_b32 v{WX+c}, {16*c}, v{ePOFF}")
    if fast:
        for c in range(8):
            A(f"    ds_read_b64 {vr(HD+2*c,2)}, v{WX+c}")
    if LOUT:
        A(f"    v_and_b32 v{WX+8}, 63, v0")
        A(f"    v_lshl_add_u32 v{WX+9}, v{WX+8}, 4, s{sTMP}      ; lds read addr")
        A(f"    v_lshrrev_b32 v{WX+8}, 3, v{WX+8}")
        A(f"    v_add_u32 v{WX+8}, s{sNODE}, v{WX+8}")
        A(f"    v_lshl_add_u32 v{WX+10}, v{WX+8}, 7, v{vSWZ[0]}")
        A(f"    v_lshl_add_u32 v{WX+11}, v{WX+8}, 7, v{vSWZ[1]}")
    for r in range(32):
        A(f"    v_mul_f32 v{SEG+r}, s{sLN2}, v{SEG+r}")
    for j in range(16):
        A(f"    v_cvt_pk_bf16_f32 v{PK+j}, v{SEG+2*j}, v{SEG+2*j+1}")
    NL = 0 if fast else 12
    def mm():
        A(f"    s_waitcnt vmcnt({8 + NL + (0 if fast else 3)})")
        for tp in range(2):
            for i, q in enumerate((4, 5, 6, 7)):
                c = "0" if i == 0 else vr(ACC+16*tp,16)
                A(f"    v_mfma_f32_32x32x16_bf16 {vr(ACC+16*tp,16)}, {vr(whf(q,tp),4)}, {vr(PK+4*(q-4),4)}, {c}")
        A(f"    s_waitcnt vmcnt({0 if fast else 8 + 3})")
        for tp in range(2):
            for q in range(4):
                A(f"    v_mfma_f32_32x32x16_bf16 {vr(ACC+16*tp,16)}, {vr(whf(q,tp),4)}, {vr(HB+4*q,4)}, {vr(ACC+16*tp,16)}")
    if fast:
        A("    s_nop 0")
        mm()
    A("    s_mov_b64 exec, 0x01ffffff")
    A(f"    v_lshl_add_u32 v{eT}, v{eE32}, 4, s{sPAB}")
    A(f"    ds_read_b96 {vr(TMP+4,3)}, v{eT}")
    A(f"    v_mul_u32_u24 v{ePOFF}, 6, v{eNODE}")
    A(f"    v_add_u32 v{ePOFF}, {N*128}, v{ePOFF}")
    A(f"    v_cvt_pk_bf16_f32 v{CS}, v{PAC}, v{PAC+1}")
    A(f"    v_cvt_pk_bf16_f32 v{CS+1}, v{PAC+2}, v{PAC+2}")
    A(f"    v_lshlrev_b32 v{TMP}, 16, v{CS}")
    A(f"    v_and_b32 v{TMP+1}, s{sHI}, v{CS}")
    A(f"    v_lshlrev_b32 v{TMP+2}, 16, v{CS+1}")
    A("    s_waitcnt lgkmcnt(0)")
    for c in range(3):
        A(f"    v_add_f32 v{TMP+c}, v{TMP+c}, v{TMP+4+c}")
    for c in range(3):
        A(f"    v_cvt_pk_bf16_f32 v{CS+c}, v{TMP+c}, v{TMP+c}")
    for c in range(3):
        A(f"    buffer_store_short v{CS+c}, v{ePOFF}, s[{S_OUT}:{S_OUT+3}], 0 offen offset:{2*c}" + PST)
    A("    s_mov_b64 exec, -1")
    if not fast:
        mm()
        A("    s_nop 15")
    for j in range(16):
        a0, a1 = ACC + 2 * j, ACC + 2 * j + 1
        A(f"    v_cvt_pk_bf16_f32 v{TMP}, v{a0}, v{a1}")
        A(f"    v_lshlrev_b32 v{a0}, 16, v{TMP}")
        A(f"    v_and_b32 v{a1}, s{sHI}, v{TMP}")
    A(f"    s_mov_b32 s3, 0x{LOG2E:08x}")
    for g0 in range(0, 32, 8):
        rs = range(g0, g0 + 8)
        for r in rs: A(f"    v_mul_f32 v{TMP+r%8}, s3, v{ACC+r}")
        for r in rs: A(f"    v_exp_f32 v{TMP+r%8}, v{TMP+r%8}")
        for r in rs: A(f"    v_add_f32 v{TMP+r%8}, 1.0, v{TMP+r%8}")
        for r in rs: A(f"    v_rcp_f32 v{TMP+r%8}, v{TMP+r%8}")
        for r in rs: A(f"    v_mul_f32 v{ACC+r}, v{ACC+r}, v{TMP+r%8}")
    if not fast:
        A("    s_waitcnt vmcnt(3)")
    for j in range(16):
        a0, a1 = ACC + 2 * j, ACC + 2 * j + 1
        hv = HD + j
        A(f"    v_cvt_pk_bf16_f32 v{TMP}, v{a0}, v{a1}")
        A(f"    v_lshlrev_b32 v{a0}, 16, v{TMP}")
        A(f"    v_and_b32 v{a1}, s{sHI}, v{TMP}")
        A(f"    v_lshlrev_b32 v{TMP+1}, 16, v{hv}")
        A(f"    v_and_b32 v{TMP+2}, s{sHI}, v{hv}")
        A(f"    v_add_f32 v{a0}, v{a0}, v{TMP+1}")
        A(f"    v_add_f32 v{a1}, v{a1}, v{TMP+2}")
        A(f"    v_cvt_pk_bf16_f32 v{PK+j}, v{a0}, v{a1}")
        if LOUT and j % 2 == 1:
            A(f"    ds_write_b64 v{WX+j//2}, {vr(PK+j-1,2)}")
    if LOUT:
        for i in range(4):
            A(f"    ds_read_b128 {vr(SEG+4*i,4)}, v{WX+9} offset:{1024*i}")
        for i in range(4):
            if i == 3:
                A("    s_mov_b64 exec, 0xff")
            A(f"    s_waitcnt lgkmcnt({3-i})")
            A(f"    buffer_store_dwordx4 {vr(SEG+4*i,4)}, v{WX+10+(i&1)}, s[{S_OUT}:{S_OUT+3}], 0 offen offset:{1024*i}" + OST)
    else:
        A(f"    s_mov_b64 exec, s[{sM25}:{sM25+1}]")
        for t in range(2):
            for q in range(4):
                A(f"    buffer_store_dwordx2 {vr(PK+8*t+2*q,2)}, v{eSTO}, s[{S_OUT}:{S_OUT+3}], 0 offen offset:{64*t+16*q}" + OST)
    pre = tail_txt[0][-30:] if fast else []
    for e in lint(pre + out[epi_start:], "epi"):
        print("LINT", e)
A("LM_epi:")
_sv = _stamp[0]
STAMP()
STAMP(4)
epilogue(0)
A("    s_branch LM_fin")
A("LM_epif:")
_stamp[0] = _sv
STAMP()
STAMP(4)
epilogue(1)
A("LM_fin:")
if PROF:
    A("    s_mov_b64 exec, -1")
    prof_dump("LP", "LM_end", sW, 82, _stamp[0])
A("LM_end:")
A("    s_endpgm")

A('.section .rodata,"a"')
for name, nv in (("egnn_sort_kernel", 88), ("egnn_main_kernel", 256)):
    A(".p2align 6")
    A(f".amdhsa_kernel {name}")
    A(f"  .amdhsa_next_free_vgpr {nv}")
    A("  .amdhsa_next_free_sgpr 100")
    A(f"  .amdhsa_accum_offset {nv}")
    A("  .amdhsa_group_segment_fixed_size 0")
    A("  .amdhsa_kernarg_size 88")
    A("  .amdhsa_user_sgpr_count 2")
    A("  .amdhsa_user_sgpr_kernarg_segment_ptr 1")
    A("  .amdhsa_system_sgpr_workgroup_id_x 1")
    A(".end_amdhsa_kernel")

path = sys.argv[1] if len(sys.argv) > 1 else f"cdna_kernels/{NAME}.s"
open(path, "w").write("\n".join(out) + "\n")
print("wrote", path, len(out), "lines; sort lds", SORT_LDS, "main lds", MAIN_LDS, "vgprs", NVGPR)
```
